```python
import torch

def _softmax(x, axis=-1):
    return torch.softmax(x, dim=axis)

def _gelu(x):
    return torch.nn.functional.gelu(x, approximate='tanh')

def _silu(x):
    return torch.nn.functional.silu(x)

def _sigmoid(x):
    return torch.sigmoid(x)

def _layernorm(x, axis=-1, eps=1e-05):
    m = x.mean(dim=axis, keepdim=True)
    v = x.var(dim=axis, keepdim=True, unbiased=False)
    return (x - m) / torch.sqrt(v + eps)

def _scatter_add(tgt, idx, src, axis=0):
    return tgt.clone().index_add_(axis, idx, src)

def _segment_sum(src, seg, n):
    out = torch.zeros((n,) + src.shape[1:], dtype=src.dtype)
    return out.index_add_(0, seg, src)

def _pad(x, pw):
    flat = tuple((v for pair in reversed(pw) for v in pair))
    return torch.nn.functional.pad(x, flat)
kernel_name = 'sequential_preLN__linear_kernel_hedgehog__mixer_gmlp__prompt'

def setup_inputs():

    _w = lambda a: (lambda t: t.to(torch.bfloat16) if t.is_floating_point() else t)(torch.as_tensor(a))

    def _A_setup():
        B, S, D, H = (1, 2048, 1024, 32)
        Dh = D // H
        return {'x': _w((lambda *s: torch.randn(*s, dtype=torch.bfloat16) * 0.05)(B, S, D)), 'wqkv': _w((lambda *s: torch.randn(*s, dtype=torch.bfloat16) * 0.2)(D, 3 * D)), 'w_phi': _w((lambda *s: torch.randn(*s, dtype=torch.bfloat16) * 0.2)(H, Dh, Dh) * Dh ** (-0.5)), 'wo': _w((lambda *s: torch.randn(*s, dtype=torch.bfloat16) * 0.05)(D, D))}
    _A_in = _A_setup()

    def _B_setup():
        B, S, D, F = (1, 2048, 1024, 3584)
        Fh = F // 2
        return {'x': _w((lambda *s: torch.randn(*s, dtype=torch.bfloat16) * 0.05)(B, S, D)), 'w_in': _w((lambda *s: torch.randn(*s, dtype=torch.bfloat16) * 0.2)(D, 2 * Fh)), 'w_sp': _w(0.01 * (lambda *s: torch.randn(*s, dtype=torch.bfloat16) * 0.2)(S, S)), 'b_sp': _w(1.0 + 0.01 * (lambda *s: torch.randn(*s, dtype=torch.bfloat16) * 0.05)(S)), 'w_out': _w((lambda *s: torch.randn(*s, dtype=torch.bfloat16) * 0.05)(Fh, D))}
    _B_in = _B_setup()
    return {'A_x': _A_in['x'], 'A_wqkv': _A_in['wqkv'], 'A_w_phi': _A_in['w_phi'], 'A_wo': _A_in['wo'], 'B_x': _B_in['x'], 'B_w_in': _B_in['w_in'], 'B_w_sp': _B_in['w_sp'], 'B_b_sp': _B_in['b_sp'], 'B_w_out': _B_in['w_out']}

def reference(A_x, A_wqkv, A_w_phi, A_wo, B_x, B_w_in, B_w_sp, B_b_sp, B_w_out):

    def _A_ref(x, wqkv, w_phi, wo):
        B, S, D = x.shape
        H = 32
        Dh = D // H
        qkv = (lambda x, *d: x.permute(*d))((x @ wqkv).reshape(B, S, 3, H, Dh), 2, 0, 3, 1, 4)
        q, k, v = (qkv[0], qkv[1], qkv[2])
        pq = torch.einsum('bhsd,hdf->bhsf', q, w_phi)
        pk = torch.einsum('bhsd,hdf->bhsf', k, w_phi)
        phi_q = torch.concatenate([_softmax(pq, axis=-1), _softmax(-pq, axis=-1)], axis=-1)
        phi_k = torch.concatenate([_softmax(pk, axis=-1), _softmax(-pk, axis=-1)], axis=-1)
        kv = torch.einsum('bhsf,bhsd->bhfd', phi_k, v)
        z = torch.einsum('bhsf->bhf', phi_k)
        num = torch.einsum('bhqf,bhfd->bhqd', phi_q, kv)
        den = torch.einsum('bhqf,bhf->bhq', phi_q, z)[..., None] + 1e-06
        o = num / den
        return (lambda x, *d: x.permute(*d))(o, 0, 2, 1, 3).reshape(B, S, D) @ wo

    def _B_ref(x, w_in, w_sp, b_sp, w_out):
        B, S, D = x.shape
        F = w_in.shape[-1]
        Fh = F // 2
        z = _gelu(torch.einsum('bsd,df->bsf', x, w_in))
        z1 = z[..., :Fh].clone()
        z2 = _layernorm(z[..., Fh:], axis=-1)
        g = torch.einsum('ts,bsf->btf', w_sp, z2) + b_sp[None, :, None]
        return torch.einsum('bsf,fd->bsd', z1 * g, w_out)
    x = A_x
    h = x + _A_ref(_layernorm(x, axis=-1), A_wqkv, A_w_phi, A_wo)
    h2 = h + _B_ref(_layernorm(h, axis=-1), B_w_in, B_w_sp, B_b_sp, B_w_out)
    return h2
```

```python
class Asm:
    def __init__(self):
        self.L = []
        self.nlab = 0
    def __call__(self, s=""):
        for line in s.split("\n"):
            line = line.strip()
            if not line:
                continue
            if line.endswith(":") or line.startswith("."):
                self.L.append(line)
            else:
                self.L.append("    " + line)
    def label(self, base="L"):
        self.nlab += 1
        return f".{base}_{self.nlab}"
    def text(self):
        return "\n".join(self.L) + "\n"

def vr(b, n=1):
    return f"v{b}" if n == 1 else f"v[{b}:{b+n-1}]"
def ar(b, n=1):
    return f"a{b}" if n == 1 else f"a[{b}:{b+n-1}]"
def sr(b, n=1):
    return f"s{b}" if n == 1 else f"s[{b}:{b+n-1}]"

def kernel_begin(a, name):
    a(".text")
    a(f".globl {name}")
    a(".p2align 8")
    a(f".type {name},@function")
    a(f"{name}:")

def kernel_desc(a, name, nvgpr, accum_offset, nsgpr=102, kernarg=96):
    a('.section .rodata,"a"')
    a(".p2align 6")
    a(f".amdhsa_kernel {name}")
    a.L.append(f"  .amdhsa_next_free_vgpr {nvgpr}")
    a.L.append(f"  .amdhsa_next_free_sgpr {nsgpr}")
    a.L.append(f"  .amdhsa_accum_offset {accum_offset}")
    a.L.append("  .amdhsa_group_segment_fixed_size 0")
    a.L.append(f"  .amdhsa_kernarg_size {kernarg}")
    a.L.append("  .amdhsa_user_sgpr_count 2")
    a.L.append("  .amdhsa_user_sgpr_kernarg_segment_ptr 1")
    a.L.append("  .amdhsa_system_sgpr_workgroup_id_x 1")
    a.L.append("  .amdhsa_float_denorm_mode_32 3")
    a.L.append("  .amdhsa_float_denorm_mode_16_64 3")
    a(".end_amdhsa_kernel")
    a(".text")

class Regs:
    def __init__(self, start, limit):
        self.n = start; self.limit = limit; self.hi = start
    def alloc(self, cnt=1, align=1):
        b = (self.n + align - 1) // align * align
        self.n = b + cnt
        assert self.n <= self.limit, f"out of regs {self.n} > {self.limit}"
        self.hi = max(self.hi, self.n)
        return b
```

```python
import re

TRANS = ("v_exp_f32","v_log_f32","v_rcp_f32","v_rsq_f32","v_sqrt_f32","v_sin_f32","v_cos_f32","v_rcp_iflag_f32")
def _regs(tok):
    tok = tok.strip()
    tok = re.sub(r"^-|^abs\(|\)$|^\||\|$|^neg\(", "", tok)
    tok = re.sub(r"^-|^abs\(|\)$|^\||\|$", "", tok)
    m = re.fullmatch(r"([vsa])(\d+)", tok)
    if m: return {(m.group(1), int(m.group(2)))}
    m = re.fullmatch(r"([vsa])\[(\d+):(\d+)\]", tok)
    if m: return {(m.group(1), i) for i in range(int(m.group(2)), int(m.group(3))+1)}
    if tok == "vcc": return {("s", 106), ("s", 107)}
    if tok == "vcc_lo": return {("s", 106)}
    if tok == "vcc_hi": return {("s", 107)}
    if tok == "m0": return {("s", 124)}
    if tok == "exec": return {("s", 126), ("s", 127)}
    return set()

class I:
    __slots__ = ("text","op","kind","wr","rd","A","B","C","passes","dpp","nops","trans","wide_store_data","lds_dma","sdwa_dst")
    def __init__(self, text):
        self.text = text
        t = text.split(";")[0].strip()
        self.op = t.split()[0] if t else ""
        rest = t[len(self.op):].strip()
        ops = [x.strip() for x in re.split(r",(?![^\[]*\])", rest)] if rest else []
        mods = ""
        if ops:
            parts = ops[-1].split()
            ops[-1] = parts[0]; mods = " ".join(parts[1:])
        op = self.op
        for suf in ("_e32","_e64","_dpp","_sdwa"):
            if op.endswith(suf): op = op[:-len(suf)]
        self.wr = set(); self.rd = set(); self.A = self.B = self.C = set(); self.passes = 0
        self.dpp = bool(re.search(r"quad_perm|row_shr|row_shl|row_ror|row_mirror|row_half_mirror|row_bcast|wave_|row_newbcast", mods))
        self.nops = 1; self.trans = op in TRANS; self.wide_store_data = set(); self.lds_dma = False
        self.sdwa_dst = bool(re.search(r"dst_sel:(WORD|BYTE)", mods))
        R = [_regs(x) for x in ops]
        if op == "s_nop":
            self.kind = "nop"; self.nops = int(ops[0], 0) + 1
        elif op.startswith("v_mfma"):
            self.kind = "mfma"; self.wr = R[0]; self.A, self.B, self.C = R[1], R[2], R[3]
            self.rd = R[1] | R[2] | R[3]
            self.passes = 8 if "32x32x16" in op else 4
        elif op.startswith("v_"):
            self.kind = "valu"
            if op.startswith("v_permlane") and "swap" in op:
                self.wr = R[0] | R[1]; self.rd = R[0] | R[1]; self.kind = "permlane"
            elif op.startswith("v_cmp"):
                self.wr = R[0]; self.rd = set().union(*R[1:])
                if op.startswith("v_cmpx"): self.wr |= _regs("exec")
            elif op in ("v_readfirstlane_b32","v_readlane_b32"):
                self.wr = R[0]; self.rd = set().union(*R[1:]); self.kind = "readlane"
            elif re.match(r"v_(add|sub|subrev|addc|subb)_co", op):
                self.wr = R[0] | R[1]; self.rd = set().union(*R[2:])
            else:
                self.wr = R[0]; self.rd = set().union(*R[1:]) if len(R) > 1 else set()
                if op in ("v_fmac_f32","v_dot2c_f32_bf16","v_pk_fmac_f16") or self.dpp or self.sdwa_dst: self.rd |= R[0]
        elif op.startswith("ds_"):
            self.kind = "ds"
            if op.startswith("ds_read") or op.startswith("ds_bpermute") or op.startswith("ds_swizzle") or "rtn" in op:
                self.wr = R[0]; self.rd = set().union(*R[1:])
            else:
                self.rd = set().union(*R)
        elif op.startswith("buffer_") or op.startswith("global_"):
            self.kind = "vmem"
            if " lds" in (" " + mods) or op.startswith("global_load_lds"):
                self.lds_dma = True; self.rd = set().union(*R) | _regs("m0")
            elif "load" in op:
                self.wr = R[0]; self.rd = set().union(*R[1:])
            elif op in ("buffer_wbl2","buffer_inv"):
                pass
            else:
                self.rd = set().union(*R)
                if "atomic" in op and "sc0" in mods: self.wr = R[0]
                if op.endswith("x4") or op.endswith("x3"):
                    self.wide_store_data = R[0] if op.startswith("buffer_") else R[1]
        elif op.startswith("s_"):
            self.kind = "salu"
            if op.startswith("s_cmp") or op.startswith("s_cbranch") or op in ("s_branch","s_barrier","s_waitcnt","s_endpgm","s_setprio","s_sleep","s_bitcmp1_b32","s_bitcmp0_b32","s_atomic_add"):
                self.rd = set().union(*R) if R else set()
            else:
                self.wr = R[0] if R else set(); self.rd = set().union(*R[1:]) if len(R) > 1 else set()
                if "saveexec" in op: self.wr |= _regs("exec")
        else:
            self.kind = "other"

def isv(s): return {r for r in s if r[0] in "va"}
def iss(s): return {r for r in s if r[0] == "s"}
VAL = ("valu","permlane","readlane")

def need(p, c):
    n = 0
    if p.kind in VAL:
        w = isv(p.wr)
        if c.kind == "mfma" and w & c.rd: n = max(n, 2)
        if c.kind == "permlane" and w & c.rd: n = max(n, 2)
        if c.kind == "valu" and c.dpp and w & c.rd: n = max(n, 2)
        if c.kind == "readlane" and w & c.rd: n = max(n, 1)
        if p.trans and c.kind in VAL and (w & c.rd): n = max(n, 1)
        if p.sdwa_dst and c.kind in VAL and (w & (c.rd | c.wr)): n = max(n, 1)
        if p.op.startswith("v_dot") and (w & (c.rd | c.wr)):
            same = c.op == p.op
            if not same: n = max(n, 3)
            else:
                srcs = c.text.split(";")[0].split(",")
                ab = _regs(srcs[1]) | _regs(srcs[2].split()[0])
                if w & ab: n = max(n, 3)
        ws = iss(p.wr)
        if ws:
            if c.kind in VAL and ws & c.rd: n = max(n, 4 if c.kind == "readlane" else 2)
            if c.kind == "valu" and c.op.startswith("v_cndmask") and ("s",106) in ws: n = max(n, 2)
            if c.kind == "vmem" and ws & c.rd: n = max(n, 5)
            if c.kind == "salu" and ws & c.rd: n = max(n, 1)
            if ("s",126) in ws and c.kind in VAL + ("mfma",): n = max(n, 5)
    if p.kind == "mfma":
        big = {8: 12, 4: 8}[p.passes]; mid = {8: 10, 4: 6}[p.passes]; war = {8: 7, 4: 3}[p.passes]
        if c.kind == "mfma":
            if p.wr & (c.A | c.B): n = max(n, big)
            if p.wr & c.C and not (p.wr == c.C and p.passes == c.passes): n = max(n, mid)
            if p.wr & c.wr and not (p.wr == c.wr): n = max(n, big)
        elif c.kind in VAL or c.kind in ("ds","vmem"):
            if p.wr & (c.rd | c.wr): n = max(n, big)
            if c.kind in VAL and p.C & c.wr: n = max(n, war)
    if p.kind == "salu" and ("s",124) in p.wr and c.kind == "vmem" and c.lds_dma: n = max(n, 1)
    if p.kind == "vmem" and p.wide_store_data and (p.wide_store_data & c.wr): n = max(n, 2)
    return n

MAXD = 12
def fix(lines):
    out = []
    for _pass in range(8):
        ins = []
        for ln in lines:
            s = ln.strip()
            if not s or s.startswith(";") or s.startswith("@") or s.startswith(".") and not s.endswith(":") : ins.append(None)
            elif s.endswith(":"): ins.append(None)
            else: ins.append(I(s))
        labels = {lines[i].strip()[:-1]: i for i in range(len(lines)) if lines[i].strip().endswith(":")}
        preds = {}
        for i, x in enumerate(ins):
            if x is not None and (x.op.startswith("s_cbranch") or x.op == "s_branch"):
                tgt = x.text.split(";")[0].split()[-1]
                if tgt in labels: preds.setdefault(labels[tgt], []).append(i)
        add = {}
        def back(c, start, dist, seen, via_branch):
            worst = 0; i = start
            while i >= 0 and dist < MAXD:
                x = ins[i]
                if x is None:
                    if i in preds and i not in seen:
                        for b in preds[i]:
                            worst = max(worst, back(c, b, dist, seen | {i}, True))
                    if lines[i].strip().endswith("_kernel:"): break
                    i -= 1; continue
                if x.op == "s_endpgm": break
                if x.op == "s_branch" and not (via_branch and i == start): break
                worst = max(worst, need(x, c) - dist)
                dist += x.nops + add.get(i, 0)
                i -= 1
            return worst
        for i, c in enumerate(ins):
            if c is None or c.kind == "nop": continue
            w = back(c, i-1, 0, frozenset(), False)
            if w > 0: add[i] = w
        if not add: return lines
        new = []
        for i, ln in enumerate(lines):
            if i in add: new.append(f"    s_nop {add[i]-1}")
            new.append(ln)
        lines = new
    raise RuntimeError("hazard fix did not converge")
```

```python
import sys
from asmlib import *
import hazard

NAME = "sequential_preLN__linear_kernel_hedgehog__mixer_gmlp__prompt"
KA = dict(x=0, wqkv=8, wphi=16, wo=24, w_in=40, w_sp=48, b_sp=56, w_out=64, out=72, dbg=80, ws=88)
MB = 1 << 20
WS = dict(XN=0, O=4*MB, H=8*MB, Z2=12*MB, Z2N=20*MB, P=28*MB, KVP=36*MB, ZP=44*MB, HST=45*MB, ZST=46*MB, CS=47*MB,
          KVF=48*MB, ZF=48*MB+256*1024)
LOG2E = 1.4426950408889634
import struct
def f32(x): return "0x%08x" % struct.unpack("<I", struct.pack("<f", x))[0]
MF = "v_mfma_f32_32x32x16_bf16"

class Kern:
    def __init__(self, name, nwg, threads, lds):
        self.a = Asm(); self.name = name; self.nwg = nwg; self.threads = threads; self.lds = lds
        self.a.label = self._label
        self.nlab = 0
        self.V = Regs(1, 256); self.S = Regs(4, 100)
        self.ptr = {}
        kernel_begin(self.a, name)
        self.Lend = self._label("end")
    def _label(self, base="L"):
        self.nlab += 1
        return f".{self.name[:-7]}_{base}{self.nlab}"
    def guard(self):
        a = self.a
        a(f"s_cmp_ge_u32 s2, {self.nwg}")
        a(f"s_cbranch_scc1 {self.Lend}")
    def load_ptrs(self, names):
        for n in names:
            r = self.S.alloc(2, 2); self.ptr[n] = r
            self.a(f"s_load_dwordx2 {sr(r,2)}, s[0:1], {KA[n]}")
    def srd(self, ptr, off, size, soff=None, d=None):
        a = self.a
        if d is None: d = self.S.alloc(4, 4)
        p = self.ptr[ptr]
        if off:
            a(f"s_add_u32 {sr(d)}, {sr(p)}, {off}")
            a(f"s_addc_u32 {sr(d+1)}, {sr(p+1)}, 0")
            if soff is not None:
                a(f"s_add_u32 {sr(d)}, {sr(d)}, {sr(soff)}")
                a(f"s_addc_u32 {sr(d+1)}, {sr(d+1)}, 0")
        elif soff is not None:
            a(f"s_add_u32 {sr(d)}, {sr(p)}, {sr(soff)}")
            a(f"s_addc_u32 {sr(d+1)}, {sr(p+1)}, 0")
        else:
            a(f"s_mov_b32 {sr(d)}, {sr(p)}")
            a(f"s_mov_b32 {sr(d+1)}, {sr(p+1)}")
        a(f"s_mov_b32 {sr(d+2)}, {size}")
        a(f"s_mov_b32 {sr(d+3)}, 0x20000")
        return d
    def tilemap(self, GN, pm, pn):
        a = self.a; S = self.S
        self.s_mi, self.s_ni = S.alloc(), S.alloc()
        t0, t1, t2 = self.st[0:3]
        xn = GN // pn; lx = xn.bit_length() - 1
        magic = (4096 + pn - 1) // pn
        for i in range(pm*pn): assert (i*magic) >> 12 == i // pn
        a(f"s_and_b32 {sr(t0)}, s2, 7")
        a(f"s_lshr_b32 {sr(t1)}, s2, 3")
        a(f"s_mul_i32 {sr(self.s_mi)}, {sr(t1)}, {magic}")
        a(f"s_lshr_b32 {sr(self.s_mi)}, {sr(self.s_mi)}, 12")
        a(f"s_mul_i32 {sr(t2)}, {sr(self.s_mi)}, {pn}")
        a(f"s_sub_u32 {sr(self.s_ni)}, {sr(t1)}, {sr(t2)}")
        a(f"s_lshr_b32 {sr(t1)}, {sr(t0)}, {lx}")
        a(f"s_and_b32 {sr(t2)}, {sr(t0)}, {xn-1}")
        a(f"s_mul_i32 {sr(t1)}, {sr(t1)}, {pm}")
        a(f"s_mul_i32 {sr(t2)}, {sr(t2)}, {pn}")
        a(f"s_add_u32 {sr(self.s_mi)}, {sr(self.s_mi)}, {sr(t1)}")
        a(f"s_add_u32 {sr(self.s_ni)}, {sr(self.s_ni)}, {sr(t2)}")
    def ids(self):
        a = self.a
        self.st = [self.S.alloc() for _ in range(6)]
        self.vl = self.V.alloc(); self.vt = [self.V.alloc() for _ in range(6)]
        self.s_w = self.S.alloc()
        a(f"v_lshrrev_b32 {vr(self.vt[0])}, 6, v0")
        a(f"v_and_b32 {vr(self.vl)}, 63, v0")
        a(f"v_readfirstlane_b32 {sr(self.s_w)}, {vr(self.vt[0])}")
    def finish(self):
        a = self.a
        a(f"{self.Lend}:")
        a("s_endpgm")
        a.L = hazard.fix(a.L)
        nv = (self.V.hi + 7) // 8 * 8
        kernel_desc(a, self.name, nv, nv, nsgpr=102)
        hdr = f"; @launch kernel={self.name} grid=({self.nwg},1,1) block=({self.threads},1,1) lds={self.lds}"
        return hdr, a.text()

class Phase:
    def __init__(self, NT, lda, ldw, nseg, lead=2, ncls=4):
        self.NT, self.lda, self.ldw, self.nseg, self.lead, self.ncls = NT, lda, ldw, nseg, lead, ncls
        self.nL = 4 + 2*nseg

class Loader:
    def __init__(self, k, slot, S):
        self.k = k; self.slot = slot; self.NS = S
        Sg = k.S
        self.s_slot, self.s_mA, self.s_mW, self.s_kl, self.s_kf, self.s_k, self.s_cls, self.s_offA, self.s_offW, self.s_cnt, self.s_lw = [Sg.alloc() for _ in range(11)]
        self.s_off2 = Sg.alloc()
    def init(self):
        k = self.k; a = k.a
        a(f"s_and_b32 {sr(self.s_lw)}, {sr(k.s_w)}, 3")
        a(f"s_lshl_b32 {sr(self.s_mA)}, {sr(self.s_lw)}, 12")
        a(f"s_lshl_b32 {sr(self.s_mW)}, {sr(self.s_lw)}, 11")
        a(f"s_add_u32 {sr(self.s_mW)}, {sr(self.s_mW)}, 16384")
        a(f"s_mov_b32 {sr(self.s_slot)}, 0")
        a(f"s_sub_u32 {sr(self.s_cls)}, {sr(k.s_mi)}, {sr(k.s_ni)}")
        a(f"s_and_b32 {sr(self.s_cls)}, {sr(self.s_cls)}, 3")
    def setup(self, ph):
        k = self.k; a = k.a; vt = k.vt; vl = k.vl; st = k.st
        ph.vA = k.V.alloc(4); ph.vW = k.V.alloc(2)
        a(f"v_lshrrev_b32 {vr(vt[0])}, 3, {vr(vl)}")
        a(f"v_and_b32 {vr(vt[1])}, 7, {vr(vl)}")
        a(f"v_lshrrev_b32 {vr(vt[2])}, 4, {vr(vl)}")
        a(f"v_xor_b32 {vr(vt[3])}, {vr(vt[1])}, {vr(vt[2])}")
        a(f"s_lshl_b32 {sr(st[0])}, {sr(self.s_lw)}, 5")
        a(f"v_add_u32 {vr(vt[4])}, {sr(st[0])}, {vr(vt[0])}")
        a(f"v_mul_u32_u24 {vr(vt[4])}, {ph.lda}, {vr(vt[4])}")
        a(f"v_lshl_add_u32 {vr(ph.vA)}, {vr(vt[3])}, 4, {vr(vt[4])}")
        a(f"v_xor_b32 {vr(ph.vA+1)}, 64, {vr(ph.vA)}")
        a(f"v_add_u32 {vr(ph.vA+1)}, {8*ph.lda-1024}, {vr(ph.vA+1)}")
        a(f"v_add_u32 {vr(ph.vA+2)}, {16*ph.lda-2048}, {vr(ph.vA)}")
        a(f"v_add_u32 {vr(ph.vA+3)}, {16*ph.lda-2048}, {vr(ph.vA+1)}")
        a(f"v_and_b32 {vr(vt[2])}, 1, {vr(vt[2])}")
        a(f"v_lshlrev_b32 {vr(vt[2])}, 2, {vr(vt[2])}")
        a(f"v_xor_b32 {vr(vt[3])}, {vr(vt[1])}, {vr(vt[2])}")
        a(f"s_lshl_b32 {sr(st[0])}, {sr(self.s_lw)}, 4")
        a(f"v_add_u32 {vr(vt[4])}, {sr(st[0])}, {vr(vt[0])}")
        a(f"v_mul_u32_u24 {vr(vt[4])}, {ph.ldw}, {vr(vt[4])}")
        a(f"v_lshl_add_u32 {vr(ph.vW)}, {vr(vt[3])}, 4, {vr(vt[4])}")
        a(f"v_xor_b32 {vr(ph.vW+1)}, 32, {vr(ph.vW)}")
        a(f"v_add_u32 {vr(ph.vW+1)}, {8*ph.ldw-1024}, {vr(ph.vW+1)}")
    def start(self, ph):
        a = self.k.a
        a(f"s_mov_b32 {sr(self.s_kl)}, {sr(self.s_cls)}")
        a(f"s_cmp_eq_u32 {sr(self.s_cls)}, 0")
        a(f"s_cselect_b32 {sr(self.s_kf)}, 1, 0")
    def issue(self, ph):
        k = self.k; a = k.a
        L1 = a.label("nk"); L2 = a.label("nk")
        a(f"""s_add_u32 {sr(self.s_k)}, {sr(self.s_kf)}, {ph.lead}
              s_min_u32 {sr(self.s_k)}, {sr(self.s_k)}, {ph.NT-1}
              s_cmp_le_u32 {sr(self.s_kl)}, {sr(self.s_k)}
              s_cbranch_scc1 {L1}
              s_mov_b32 {sr(self.s_k)}, {sr(self.s_kf)}
              s_add_u32 {sr(self.s_kf)}, {sr(self.s_kf)}, 1
              s_and_b32 {sr(self.s_offA)}, {sr(self.s_kf)}, 3
              s_cmp_eq_u32 {sr(self.s_offA)}, {sr(self.s_cls)}
              s_addc_u32 {sr(self.s_kf)}, {sr(self.s_kf)}, 0
              s_branch {L2}
              {L1}:
              s_mov_b32 {sr(self.s_k)}, {sr(self.s_kl)}
              s_add_u32 {sr(self.s_kl)}, {sr(self.s_kl)}, 4
              {L2}:
              s_add_u32 m0, {sr(self.s_slot)}, {sr(self.s_mA)}
              s_lshl_b32 {sr(self.s_offA)}, {sr(self.s_k)}, 7
              s_mul_i32 {sr(self.s_offW)}, {sr(self.s_k)}, {64*ph.ldw}""")
        for j in range(4):
            a(f"buffer_load_dwordx4 {vr(ph.vA+j)}, {sr(ph.sA,4)}, {sr(self.s_offA)} offen offset:{1024*j} lds")
        for s in range(ph.nseg):
            if s == 0:
                a(f"s_add_u32 m0, {sr(self.s_slot)}, {sr(self.s_mW)}")
                so = self.s_offW
            else:
                a(f"s_add_u32 m0, m0, 8192")
                a(f"s_add_u32 {sr(self.s_off2)}, {sr(self.s_offW)}, {ph.segoff[s]}")
                so = self.s_off2
            for j in range(2):
                a(f"buffer_load_dwordx4 {vr(ph.vW+j)}, {sr(ph.sW,4)}, {sr(so)} offen offset:{1024*j} lds")
        a(f"""s_add_u32 {sr(self.s_slot)}, {sr(self.s_slot)}, {self.slot}
              s_cmp_eq_u32 {sr(self.s_slot)}, {self.slot*self.NS}
              s_cselect_b32 {sr(self.s_slot)}, 0, {sr(self.s_slot)}""")
    def run(self, phases):
        a = self.k.a; S = self.NS
        nL = phases[0].nL
        assert all(p.nL == nL for p in phases)
        tot = sum(p.NT for p in phases)
        self.start(phases[0])
        Lp = a.label("lpro")
        a(f"s_mov_b32 {sr(self.s_cnt)}, {S-1}")
        a(f"{Lp}:")
        self.issue(phases[0])
        a(f"""s_sub_u32 {sr(self.s_cnt)}, {sr(self.s_cnt)}, 1
              s_cmp_lg_u32 {sr(self.s_cnt)}, 0
              s_cbranch_scc1 {Lp}""")
        for p in phases[1:]: self.setup(p)
        a(f"s_waitcnt vmcnt({(S-2)*nL})")
        a("s_barrier")
        for i, p in enumerate(phases):
            n = p.NT - (S-1 if i == 0 else 0)
            if i: self.start(p)
            Lp = a.label("lloop")
            a(f"s_mov_b32 {sr(self.s_cnt)}, {n}")
            a(f"{Lp}:")
            a(f"s_waitcnt vmcnt({(S-3)*nL})")
            a("s_barrier")
            self.issue(p)
            a(f"""s_sub_u32 {sr(self.s_cnt)}, {sr(self.s_cnt)}, 1
                  s_cmp_lg_u32 {sr(self.s_cnt)}, 0
                  s_cbranch_scc1 {Lp}""")
        for t in range(tot-S+1, tot-1):
            a(f"s_waitcnt vmcnt({(tot-1-(t+1))*nL})")
            a("s_barrier")

class Compute:
    def __init__(self, k, slot, S, TN, wmode):
        self.k = k; self.slot = slot; self.NS = S; self.TM = 2; self.TN = TN; self.wmode = wmode
        V = k.V; Sg = k.S
        self.fA = [V.alloc(8, 4) for _ in range(4)]
        self.fW = [V.alloc(4*TN, 4) for _ in range(4)]
        self.vAa = V.alloc(4); self.nWa = 2 if wmode == 'seg' else 1
        self.vWa = V.alloc(self.nWa)
        self.s_rs, self.s_delta, self.s_slotc, self.s_cnt, self.s_wm, self.s_wn = [Sg.alloc() for _ in range(6)]
    def init(self):
        k = self.k; a = k.a; vt = k.vt; vl = k.vl; st = k.st
        a(f"""s_lshr_b32 {sr(self.s_wm)}, {sr(k.s_w)}, 1
              s_and_b32 {sr(self.s_wn)}, {sr(k.s_w)}, 1
              s_lshl_b32 {sr(st[0])}, {sr(self.s_wm)}, 13
              v_and_b32 {vr(vt[0])}, 31, {vr(vl)}
              v_lshrrev_b32 {vr(vt[1])}, 5, {vr(vl)}
              v_bfe_u32 {vr(vt[2])}, {vr(vt[0])}, 1, 3
              v_xor_b32 {vr(vt[2])}, {vr(vt[2])}, {vr(vt[1])}
              v_lshlrev_b32 {vr(vt[2])}, 4, {vr(vt[2])}
              v_lshl_add_u32 {vr(vt[2])}, {vr(vt[0])}, 7, {vr(vt[2])}
              v_add_u32 {vr(self.vAa)}, {sr(st[0])}, {vr(vt[2])}""")
        for ks in range(1, 4):
            a(f"v_xor_b32 {vr(self.vAa+ks)}, {ks*32}, {vr(self.vAa)}")
        a(f"""v_and_b32 {vr(vt[0])}, 15, {vr(vl)}
              v_lshrrev_b32 {vr(vt[2])}, 2, {vr(vt[0])}
              v_lshl_add_u32 {vr(vt[2])}, {vr(vt[1])}, 3, {vr(vt[2])}
              v_lshlrev_b32 {vr(vt[2])}, 7, {vr(vt[2])}
              v_bfe_u32 {vr(vt[3])}, {vr(vl)}, 4, 1
              v_xor_b32 {vr(vt[3])}, {vr(vt[3])}, {vr(vt[1])}
              v_lshl_add_u32 {vr(vt[2])}, {vr(vt[3])}, 5, {vr(vt[2])}
              v_bfe_u32 {vr(vt[3])}, {vr(vt[0])}, 3, 1
              v_lshl_add_u32 {vr(vt[2])}, {vr(vt[3])}, 6, {vr(vt[2])}
              v_and_b32 {vr(vt[3])}, 3, {vr(vt[0])}
              v_lshl_add_u32 {vr(vt[2])}, {vr(vt[3])}, 3, {vr(vt[2])}""")
        if self.wmode == 'sub':
            a(f"s_lshl_b32 {sr(st[0])}, {sr(self.s_wn)}, 6")
            a(f"v_xor_b32 {vr(vt[2])}, {sr(st[0])}, {vr(vt[2])}")
            a(f"v_add_u32 {vr(self.vWa)}, 16384, {vr(vt[2])}")
        else:
            a(f"s_lshl_b32 {sr(st[0])}, {sr(self.s_wn)}, 13")
            a(f"s_add_u32 {sr(st[0])}, {sr(st[0])}, 16384")
            a(f"v_add_u32 {vr(self.vWa)}, {sr(st[0])}, {vr(vt[2])}")
            a(f"v_xor_b32 {vr(self.vWa+1)}, 64, {vr(self.vWa)}")
        a(f"s_mov_b32 {sr(self.s_rs)}, 0")
        a(f"s_mov_b32 {sr(self.s_slotc)}, {self.slot}")
    def reads(self, ks):
        A_ = [f"ds_read_b128 {vr(self.fA[ks]+4*i,4)}, {vr(self.vAa+ks)} offset:{i*4096}" for i in range(2)]
        W_ = []
        for j in range(self.TN):
            ad, off = (self.vWa, j*8192) if self.wmode == 'sub' else (self.vWa+j, 0)
            W_.append([f"ds_read_b64_tr_b16 {vr(self.fW[ks]+4*j+2*h,2)}, {vr(ad)} offset:{off+ks*2048+h*512}" for h in range(2)])
        out = W_[0] + A_
        for w in W_[1:]: out += w
        return out
    def mfmas(self, ks, acc, swap):
        out = []
        for j in range(self.TN):
            for i in range(2):
                d = acc + (i*self.TN+j)*16
                x, y = vr(self.fW[ks]+4*j,4), vr(self.fA[ks]+4*i,4)
                if swap[j]: x, y = y, x
                out.append(f"{MF} {vr(d,16)}, {x}, {y}, {vr(d,16)}")
        return out
    def addr_upd(self):
        S = self.NS
        return [[f"s_add_u32 {sr(self.s_rs)}, {sr(self.s_rs)}, 1",
                 f"s_cmp_eq_u32 {sr(self.s_rs)}, {S}",
                 f"s_cselect_b32 {sr(self.s_delta)}, {(-(S-1)*self.slot) & 0xffffffff}, {sr(self.s_slotc)}",
                 f"s_cselect_b32 {sr(self.s_rs)}, 0, {sr(self.s_rs)}"]]
    def first(self):
        a = self.k.a
        a("s_barrier")
        for x in self.reads(0) + self.reads(1): a(x)
    def tile(self, acc, swap, last=False):
        a = self.k.a
        R = 2 + 2*self.TN
        def emit(mm, fill, pre=None):
            n = len(mm); per = -(-len(fill)//n) if fill else 0; kf = 0
            for i, m in enumerate(mm):
                a(m)
                if i == 0 and pre:
                    for x in pre: a(x)
                for _ in range(per):
                    if kf < len(fill):
                        f = fill[kf]; kf += 1
                        for x in (f if isinstance(f, list) else [f]): a(x)
        upd = lambda r: f"v_add_u32 {vr(r)}, {sr(self.s_delta)}, {vr(r)}"
        for ks in range(4):
            if last and ks == 3: a("s_waitcnt lgkmcnt(0)")
            else: a(f"s_waitcnt lgkmcnt({R})")
            mm = self.mfmas(ks, acc, swap)
            if ks == 0:
                fill = self.reads(2) + ([] if last else self.addr_upd() + [upd(self.vAa), upd(self.vAa+1)])
                emit(mm, fill)
            elif ks == 1:
                fill = self.reads(3) + ([] if last else [upd(self.vWa+i) for i in range(self.nWa)] + [upd(self.vAa+2), upd(self.vAa+3)])
                emit(mm, fill)
            elif last:
                emit(mm, [])
            elif ks == 2:
                emit(mm, self.reads(0), pre=["s_barrier"])
            else:
                emit(mm, self.reads(1))
    def loop(self, n, acc, swap):
        a = self.k.a
        Lp = a.label("cloop")
        a(f"s_mov_b32 {sr(self.s_cnt)}, {n}")
        a(".p2align 6")
        a(f"{Lp}:")
        self.tile(acc, swap)
        a(f"""s_sub_u32 {sr(self.s_cnt)}, {sr(self.s_cnt)}, 1
              s_cmp_lg_u32 {sr(self.s_cnt)}, 0
              s_cbranch_scc1 {Lp}""")

def pack16(a, src, dst):
    for i in range(8):
        a(f"v_cvt_pk_bf16_f32 {vr(dst+i)}, {vr(src+2*i)}, {vr(src+2*i+1)}")
def swap8(a, p):
    for h in range(2):
        a(f"v_permlane32_swap_b32 {vr(p+4*h)}, {vr(p+4*h+2)}")
        a(f"v_permlane32_swap_b32 {vr(p+4*h+1)}, {vr(p+4*h+3)}")
def unpack8(a, p, dst):
    for i in range(8):
        a(f"v_lshlrev_b32 {vr(dst+2*i)}, 16, {vr(p+i)}")
        a(f"v_and_b32 {vr(dst+2*i+1)}, 0xffff0000, {vr(p+i)}")
def wave_sum(a, v, t, full=True):
    for m in ("quad_perm:[1,0,3,2]", "quad_perm:[2,3,0,1]", "row_half_mirror", "row_mirror"):
        a(f"v_add_f32_dpp {vr(v)}, {vr(v)}, {vr(v)} {m} row_mask:0xf bank_mask:0xf")
    for op in ("v_permlane16_swap_b32", "v_permlane32_swap_b32")[:2 if full else 1]:
        a(f"v_mov_b32 {vr(t)}, {vr(v)}")
        a(f"{op} {vr(v)}, {vr(t)}")
        a(f"v_add_f32 {vr(v)}, {vr(v)}, {vr(t)}")
def softmax_pm(a, p, em, outp, outm, t2, s_l2e):
    x, y, u, w = t2, t2+1, t2+2, t2+3
    a(f"v_max3_f32 {vr(x)}, {vr(p)}, {vr(p+1)}, {vr(p+2)}")
    a(f"v_max3_f32 {vr(y)}, -{vr(p)}, -{vr(p+1)}, -{vr(p+2)}")
    for i in range(3, 15, 2):
        a(f"v_max3_f32 {vr(x)}, {vr(x)}, {vr(p+i)}, {vr(p+i+1)}")
        a(f"v_max3_f32 {vr(y)}, {vr(y)}, -{vr(p+i)}, -{vr(p+i+1)}")
    a(f"v_max_f32 {vr(x)}, {vr(x)}, {vr(p+15)}")
    a(f"v_max_f32_e64 {vr(y)}, {vr(y)}, -{vr(p+15)}")
    a(f"v_permlane32_swap_b32 {vr(x)}, {vr(y)}")
    a(f"v_max_f32 {vr(x)}, {vr(x)}, {vr(y)}")
    a(f"v_mul_f32_e64 {vr(x)}, -{sr(s_l2e)}, {vr(x)}")
    a(f"v_mov_b32 {vr(y)}, {vr(x)}")
    a(f"v_permlane32_swap_b32 {vr(x)}, {vr(y)}")
    for i in range(0, 16, 2):
        a(f"v_pk_fma_f32 {vr(em+i,2)}, {vr(p+i,2)}, {sr(s_l2e,2)}, {vr(x,2)} op_sel:[0,0,1] op_sel_hi:[1,0,1] neg_lo:[1,0,0] neg_hi:[1,0,0]")
        a(f"v_pk_fma_f32 {vr(p+i,2)}, {vr(p+i,2)}, {sr(s_l2e,2)}, {vr(x,2)} op_sel:[0,0,0] op_sel_hi:[1,0,0]")
    for i in range(16):
        a(f"v_exp_f32 {vr(em+i)}, {vr(em+i)}")
        a(f"v_exp_f32 {vr(p+i)}, {vr(p+i)}")
    a(f"v_pk_add_f32 {vr(x,2)}, {vr(p,2)}, {vr(p+2,2)}")
    a(f"v_pk_add_f32 {vr(u,2)}, {vr(em,2)}, {vr(em+2,2)}")
    for i in range(4, 16, 2):
        a(f"v_pk_add_f32 {vr(x,2)}, {vr(x,2)}, {vr(p+i,2)}")
        a(f"v_pk_add_f32 {vr(u,2)}, {vr(u,2)}, {vr(em+i,2)}")
    a(f"v_add_f32 {vr(x)}, {vr(x)}, {vr(y)}")
    a(f"v_add_f32 {vr(y)}, {vr(u)}, {vr(w)}")
    a(f"v_permlane32_swap_b32 {vr(x)}, {vr(y)}")
    a(f"v_add_f32 {vr(x)}, {vr(x)}, {vr(y)}")
    a(f"v_rcp_f32 {vr(x)}, {vr(x)}")
    a(f"v_mov_b32 {vr(y)}, {vr(x)}")
    a(f"v_permlane32_swap_b32 {vr(x)}, {vr(y)}")
    for i in range(0, 16, 2):
        a(f"v_pk_mul_f32 {vr(p+i,2)}, {vr(p+i,2)}, {vr(x,2)} op_sel:[0,0] op_sel_hi:[1,0]")
        a(f"v_pk_mul_f32 {vr(em+i,2)}, {vr(em+i,2)}, {vr(x,2)} op_sel:[0,1] op_sel_hi:[1,1]")
    pack16(a, p, outp); pack16(a, em, outm)

def load_wphi(k, c, dst, tmp):
    a = k.a; st = k.st; vt = k.vt
    a(f"s_lshl_b32 {sr(st[0])}, {sr(k.s_ni)}, 1")
    a(f"s_add_u32 {sr(st[0])}, {sr(st[0])}, {sr(c.s_wn)}")
    a(f"s_lshl_b32 {sr(st[0])}, {sr(st[0])}, 11")
    sP = k.srd("wphi", 0, 2048, soff=st[0])
    a(f"v_and_b32 {vr(vt[0])}, 31, {vr(k.vl)}")
    a(f"v_lshrrev_b32 {vr(vt[1])}, 5, {vr(k.vl)}")
    a(f"v_lshlrev_b32 {vr(vt[1])}, 8, {vr(vt[1])}")
    a(f"v_lshl_add_u32 {vr(vt[0])}, {vr(vt[0])}, 1, {vr(vt[1])}")
    for j in range(2):
        for e in range(8):
            d = 16*j + 8*(e >> 2) + (e & 3)
            a(f"buffer_load_ushort {vr(tmp+8*j+e)}, {vr(vt[0])}, {sr(sP,4)}, 0 offen offset:{d*64}")
    def fin():
        for i in range(8):
            a(f"v_lshl_or_b32 {vr(dst+i)}, {vr(tmp+2*i+1)}, 16, {vr(tmp+2*i)}")
    return fin

def row_addr(k, c, dst, ld, colbytes_wn, colbytes_ni):
    a = k.a; st = k.st; vt = k.vt
    a(f"s_lshl_b32 {sr(st[0])}, {sr(c.s_wm)}, 6")
    a(f"v_and_b32 {vr(vt[0])}, 31, {vr(k.vl)}")
    a(f"v_add_u32 {vr(vt[0])}, {sr(st[0])}, {vr(vt[0])}")
    a(f"v_mul_u32_u24 {vr(vt[0])}, {ld}, {vr(vt[0])}")
    a(f"v_lshrrev_b32 {vr(vt[1])}, 5, {vr(k.vl)}")
    a(f"v_lshl_add_u32 {vr(vt[0])}, {vr(vt[1])}, 4, {vr(vt[0])}")
    a(f"s_mul_i32 {sr(st[0])}, {sr(c.s_wn)}, {colbytes_wn}")
    a(f"s_mul_i32 {sr(st[1])}, {sr(k.s_ni)}, {colbytes_ni}")
    a(f"s_add_u32 {sr(st[0])}, {sr(st[0])}, {sr(st[1])}")
    a(f"v_add_u32 {vr(dst)}, {sr(st[0])}, {vr(vt[0])}")

def rowblk_srd(k, ptr, off, ld):
    a = k.a
    a(f"s_mul_i32 {sr(k.st[0])}, {sr(k.s_mi)}, {128*ld}")
    return k.srd(ptr, off, 128*ld, soff=k.st[0])

def gemm_head(name, nwg, GN, pm, pn, slot, S, ptrs):
    k = Kern(name, nwg, 512, slot*S)
    k.guard(); k.load_ptrs(ptrs); k.ids(); k.tilemap(GN, pm, pn)
    k.Lload = k.a.label("loader")
    k.a("s_waitcnt lgkmcnt(0)")
    k.a(f"s_cmp_ge_u32 {sr(k.s_w)}, 4")
    k.a(f"s_cbranch_scc1 {k.Lload}")
    return k
def w_srd(k, ptr, off, ldw, K, colstride):
    a = k.a
    a(f"s_mul_i32 {sr(k.st[0])}, {sr(k.s_ni)}, {colstride}")
    d = k.srd(ptr, off[0]+off[1], 0, soff=k.st[0])
    a(f"s_sub_u32 {sr(d+2)}, {K*ldw-off[1]}, {sr(k.st[0])}")
    return d
def loader_part(k, slot, S, specs):
    a = k.a
    a("s_endpgm")
    a(f"{k.Lload}:")
    vsave = k.V.n; k.V.n = 8
    L = Loader(k, slot, S); L.init()
    for ph, (ap, ao), (wp, wo_, cs) in specs:
        ph.sA = rowblk_srd(k, ap, ao, ph.lda)
        ph.sW = w_srd(k, wp, wo_, ph.ldw, ph.NT*64, cs)
    L.setup(specs[0][0])
    L.run([s[0] for s in specs])
    k.V.n = vsave

def k_ln():
    k = Kern("ln_kernel", 256, 256, 0); a = k.a; V = k.V
    k.guard(); k.load_ptrs(["x", "w_in", "ws"]); k.ids()
    st = k.st; vt = k.vt
    a("s_waitcnt lgkmcnt(0)")
    sX = k.srd("x", 0, 4*MB); sN = k.srd("ws", WS["XN"], 4*MB)
    sW = k.srd("w_in", 0, 1024*7168); sC = k.srd("ws", WS["CS"], 16*3584*4)
    raw = V.alloc(16, 4); f = V.alloc(16, 2); wr = V.alloc(32, 4); cs = V.alloc(8, 4); voff = V.alloc(); vw = V.alloc()
    a(f"s_lshl_b32 {sr(st[0])}, s2, 3")
    a(f"s_lshl_b32 {sr(st[1])}, {sr(k.s_w)}, 1")
    a(f"s_add_u32 {sr(st[0])}, {sr(st[0])}, {sr(st[1])}")
    a(f"s_lshl_b32 {sr(st[3])}, {sr(st[0])}, 11")
    a(f"v_lshlrev_b32 {vr(voff)}, 4, {vr(k.vl)}")
    for r in range(2):
        for h in range(2):
            a(f"buffer_load_dwordx4 {vr(raw+8*r+4*h,4)}, {vr(voff)}, {sr(sX,4)}, {sr(st[3])} offen offset:{r*2048+h*1024}")
    a(f"s_mul_i32 {sr(st[1])}, s2, 1171")
    a(f"s_lshr_b32 {sr(st[1])}, {sr(st[1])}, 16")
    for i in range(256): assert (i*1171) >> 16 == i // 56
    a(f"s_mul_i32 {sr(st[2])}, {sr(st[1])}, 56")
    a(f"s_sub_u32 {sr(st[2])}, s2, {sr(st[2])}")
    a(f"v_lshrrev_b32 {vr(vt[0])}, 3, v0")
    a(f"v_mul_u32_u24 {vr(vt[0])}, 7168, {vr(vt[0])}")
    a(f"v_and_b32 {vr(vt[1])}, 7, v0")
    a(f"v_lshl_add_u32 {vr(vw)}, {vr(vt[1])}, 4, {vr(vt[0])}")
    a(f"s_mul_i32 {sr(st[4])}, {sr(st[1])}, {256*7168}")
    a(f"s_lshl_b32 {sr(st[5])}, {sr(st[2])}, 7")
    a(f"s_add_u32 {sr(st[4])}, {sr(st[4])}, {sr(st[5])}")
    a(f"v_add_u32 {vr(vw)}, {sr(st[4])}, {vr(vw)}")
    for it in range(8):
        a(f"buffer_load_dwordx4 {vr(wr+4*it,4)}, {vr(vw)}, {sr(sW,4)}, 0 offen")
        a(f"v_add_u32 {vr(vw)}, {32*7168}, {vr(vw)}")
    s1, s2, t = vt[2], vt[3], vt[4]
    pr = V.alloc(2, 2)
    for r in range(2):
        a(f"s_waitcnt vmcnt({8+2-2*r})" if r == 0 else "s_waitcnt vmcnt(10)")
        unpack8(a, raw+8*r, f)
        a(f"v_pk_add_f32 {vr(pr,2)}, {vr(f,2)}, {vr(f+2,2)}")
        for i in range(4, 16, 2): a(f"v_pk_add_f32 {vr(pr,2)}, {vr(pr,2)}, {vr(f+i,2)}")
        a(f"v_add_f32 {vr(s1)}, {vr(pr)}, {vr(pr+1)}")
        wave_sum(a, s1, t)
        a(f"v_mul_f32 {vr(pr)}, {f32(-1/1024)}, {vr(s1)}")
        for i in range(0, 16, 2): a(f"v_pk_add_f32 {vr(f+i,2)}, {vr(f+i,2)}, {vr(pr,2)} op_sel_hi:[1,0]")
        a(f"v_pk_mul_f32 {vr(pr,2)}, {vr(f,2)}, {vr(f,2)}")
        for i in range(2, 16, 2): a(f"v_pk_fma_f32 {vr(pr,2)}, {vr(f+i,2)}, {vr(f+i,2)}, {vr(pr,2)}")
        a(f"v_add_f32 {vr(s2)}, {vr(pr)}, {vr(pr+1)}")
        wave_sum(a, s2, t)
        a(f"v_mov_b32 {vr(t)}, {f32(1e-5)}")
        a(f"v_fmac_f32 {vr(t)}, {f32(1/1024)}, {vr(s2)}")
        a(f"v_rsq_f32 {vr(pr)}, {vr(t)}")
        for i in range(0, 16, 2): a(f"v_pk_mul_f32 {vr(f+i,2)}, {vr(f+i,2)}, {vr(pr,2)} op_sel_hi:[1,0]")
        pack16(a, f, raw+8*r)
        for h in range(2):
            a(f"buffer_store_dwordx4 {vr(raw+8*r+4*h,4)}, {vr(voff)}, {sr(sN,4)}, {sr(st[3])} offen offset:{r*2048+h*1024}")
    a("s_waitcnt vmcnt(4)")
    for it in range(8):
        for i in range(4):
            d = cs+2*i if it == 0 else f+2*i
            a(f"v_lshlrev_b32 {vr(d)}, 16, {vr(wr+4*it+i)}")
            a(f"v_and_b32 {vr(d+1)}, 0xffff0000, {vr(wr+4*it+i)}")
            if it: a(f"v_pk_add_f32 {vr(cs+2*i,2)}, {vr(cs+2*i,2)}, {vr(d,2)}")
    for i in range(8):
        a(f"v_add_f32_dpp {vr(cs+i)}, {vr(cs+i)}, {vr(cs+i)} row_ror:8 row_mask:0xf bank_mask:0xf")
        for op in ("v_permlane16_swap_b32", "v_permlane32_swap_b32"):
            a(f"v_mov_b32 {vr(t)}, {vr(cs+i)}")
            a(f"{op} {vr(cs+i)}, {vr(t)}")
            a(f"v_add_f32 {vr(cs+i)}, {vr(cs+i)}, {vr(t)}")
    a(f"s_lshl_b32 {sr(st[1])}, {sr(st[1])}, 2")
    a(f"s_add_u32 {sr(st[1])}, {sr(st[1])}, {sr(k.s_w)}")
    a(f"s_mul_i32 {sr(st[1])}, {sr(st[1])}, {3584*4}")
    a(f"s_lshl_b32 {sr(st[2])}, {sr(st[2])}, 8")
    a(f"s_add_u32 {sr(st[1])}, {sr(st[1])}, {sr(st[2])}")
    a(f"v_lshlrev_b32 {vr(vt[0])}, 5, {vr(k.vl)}")
    a(f"v_add_u32 {vr(vt[0])}, {sr(st[1])}, {vr(vt[0])}")
    a(f"v_cmp_gt_u32 vcc, 8, {vr(k.vl)}")
    a(f"v_mov_b32 {vr(vt[1])}, 0x7ffffff0")
    a(f"v_cndmask_b32 {vr(vt[0])}, {vr(vt[1])}, {vr(vt[0])}, vcc")
    a(f"buffer_store_dwordx4 {vr(cs,4)}, {vr(vt[0])}, {sr(sC,4)}, 0 offen")
    a(f"buffer_store_dwordx4 {vr(cs+4,4)}, {vr(vt[0])}, {sr(sC,4)}, 0 offen offset:16")
    return k.finish()

def k_kv():
    slot, S = 32768, 4
    k = gemm_head("kv_kernel", 256, 16, 4, 8, slot, S, ["wqkv", "wphi", "ws"]); a = k.a; V = k.V; st = k.st; vt = k.vt
    c = Compute(k, slot, S, 2, 'sub'); c.init()
    acc = V.alloc(64, 4); wphi = V.alloc(8, 4); ident = V.alloc(8, 4); ones = V.alloc(4, 4)
    kvp = V.alloc(32, 4); zp = V.alloc(32, 4); t4 = V.alloc(4, 2)
    s_l2e = k.S.alloc(2, 2)
    a(f"s_mov_b32 {sr(s_l2e)}, {f32(LOG2E)}")
    fin = load_wphi(k, c, wphi, kvp)
    a(f"v_and_b32 {vr(vt[0])}, 31, {vr(k.vl)}")
    a(f"v_lshrrev_b32 {vr(vt[1])}, 5, {vr(k.vl)}")
    a(f"v_lshlrev_b32 {vr(vt[1])}, 2, {vr(vt[1])}")
    a(f"v_sub_u32 {vr(vt[0])}, {vr(vt[0])}, {vr(vt[1])}")
    a(f"v_mov_b32 {vr(vt[2])}, 0x3f80")
    a(f"v_mov_b32 {vr(vt[3])}, 0x3f800000")
    for j in range(2):
        for d in range(4):
            t0 = 16*j + 8*(d >> 1) + 2*(d & 1)
            a(f"v_cmp_eq_u32 vcc, {t0}, {vr(vt[0])}")
            a(f"v_cndmask_b32 {vr(ident+4*j+d)}, 0, {vr(vt[2])}, vcc")
            a(f"v_cmp_eq_u32 vcc, {t0+1}, {vr(vt[0])}")
            a(f"v_cndmask_b32 {vr(ident+4*j+d)}, {vr(ident+4*j+d)}, {vr(vt[3])}, vcc")
    for i in range(4): a(f"v_mov_b32 {vr(ones+i)}, 0x3f803f80")
    for i in range(64): a(f"v_mov_b32 {vr(acc+i)}, 0")
    a("s_waitcnt vmcnt(0)")
    fin()
    c.first()
    c.loop(15, acc, [0, 1]); c.tile(acc, [0, 1], last=True)
    T = c.fA[0]
    kp, vp, pk, em, php, phm = T, T+8, T+16, T+32, T+48, T+56
    for i in range(2):
        pack16(a, acc+(2*i)*16, kp); pack16(a, acc+(2*i+1)*16, vp)
        a(f"{MF} {vr(pk,16)}, {vr(wphi,4)}, {vr(kp,4)}, 0")
        a(f"{MF} {vr(pk,16)}, {vr(wphi+4,4)}, {vr(kp+4,4)}, {vr(pk,16)}")
        softmax_pm(a, pk, em, php, phm, t4, s_l2e)
        for sgn, ph, tr in ((0, php, pk), (1, phm, em)):
            a(f"{MF} {vr(tr,16)}, {vr(ph,4)}, {vr(ident,4)}, 0")
            a(f"{MF} {vr(tr,16)}, {vr(ph+4,4)}, {vr(ident+4,4)}, {vr(tr,16)}")
        for sgn, ph, tr in ((0, php, pk), (1, phm, em)):
            pack16(a, tr, ph)
            for h in range(2):
                cin = "0" if (i == 0 and h == 0) else None
                a(f"{MF} {vr(kvp+16*sgn,16)}, {vr(ph+4*h,4)}, {vr(vp+4*h,4)}, {cin or vr(kvp+16*sgn,16)}")
                a(f"{MF} {vr(zp+16*sgn,16)}, {vr(ph+4*h,4)}, {vr(ones,4)}, {cin or vr(zp+16*sgn,16)}")
    a(f"s_lshl_b32 {sr(st[0])}, {sr(k.s_ni)}, 1")
    a(f"s_add_u32 {sr(st[0])}, {sr(st[0])}, {sr(c.s_wn)}")
    a(f"s_lshl_b32 {sr(st[0])}, {sr(st[0])}, 4")
    a(f"s_add_u32 {sr(st[0])}, {sr(st[0])}, {sr(k.s_mi)}")
    a(f"s_lshl_b32 {sr(st[0])}, {sr(st[0])}, 1")
    a(f"s_add_u32 {sr(st[2])}, {sr(st[0])}, {sr(c.s_wm)}")
    a(f"s_lshl_b32 {sr(st[0])}, {sr(st[2])}, 13")
    sK = k.srd("ws", WS["KVP"], 8192, soff=st[0])
    a(f"s_lshl_b32 {sr(st[0])}, {sr(st[2])}, 8")
    sZ = k.srd("ws", WS["ZP"], 256, soff=st[0])
    a(f"v_lshlrev_b32 {vr(vt[0])}, 4, {vr(k.vl)}")
    a(f"v_add_u32 {vr(vt[1])}, 4096, {vr(vt[0])}")
    a(f"v_and_b32 {vr(vt[2])}, 31, {vr(k.vl)}")
    a(f"v_lshlrev_b32 {vr(vt[2])}, 8, {vr(vt[2])}")
    a(f"v_lshrrev_b32 {vr(vt[3])}, 5, {vr(k.vl)}")
    a(f"v_lshl_add_u32 {vr(vt[2])}, {vr(vt[3])}, 7, {vr(vt[2])}")
    for q in range(8):
        a(f"buffer_store_dwordx4 {vr(kvp+4*q,4)}, {vr(vt[q>>2])}, {sr(sK,4)}, 0 offen offset:{(q&3)*1024}")
        a(f"buffer_store_dwordx4 {vr(zp+4*q,4)}, {vr(vt[2])}, {sr(sZ,4)}, 0 offen offset:{q*16}")
    ph = Phase(16, 2048, 6144, 2); ph.segoff = [0, 2048]
    loader_part(k, slot, S, [(ph, ("ws", WS["XN"]), ("wqkv", (0, 2048), 128))])
    return k.finish()

def k_red():
    k = Kern("red_kernel", 184, 64, 0); a = k.a; V = k.V
    k.guard(); k.load_ptrs(["ws"]); k.ids(); st = k.st; vt = k.vt
    Lcs = a.label("cs")
    a("s_waitcnt lgkmcnt(0)")
    a("s_cmp_ge_u32 s2, 128")
    a(f"s_cbranch_scc1 {Lcs}")
    buf = V.alloc(128, 4); ac = V.alloc(16, 4)
    a(f"s_lshr_b32 {sr(st[1])}, s2, 2")
    a(f"s_and_b32 {sr(st[2])}, s2, 3")
    a(f"s_lshl_b32 {sr(st[0])}, {sr(st[1])}, 18")
    sK = k.srd("ws", WS["KVP"], 32*8192, soff=st[0])
    a(f"s_lshl_b32 {sr(st[0])}, {sr(st[1])}, 13")
    sZ = k.srd("ws", WS["ZP"], 32*256, soff=st[0])
    a(f"s_lshl_b32 {sr(st[0])}, s2, 10")
    sKF = k.srd("ws", WS["KVF"], 1024, soff=st[0]); sZF = k.srd("ws", WS["ZF"], 1024, soff=st[0])
    a(f"s_lshl_b32 {sr(st[3])}, {sr(st[2])}, 11")
    a(f"v_lshlrev_b32 {vr(vt[0])}, 4, {vr(k.vl)}")
    a(f"v_add_u32 {vr(vt[1])}, {sr(st[3])}, {vr(vt[0])}")
    a(f"s_lshl_b32 {sr(st[3])}, {sr(st[2])}, 5")
    a(f"v_lshrrev_b32 {vr(vt[2])}, 5, {vr(k.vl)}")
    a(f"v_lshlrev_b32 {vr(vt[2])}, 7, {vr(vt[2])}")
    a(f"v_add_u32 {vr(vt[2])}, {sr(st[3])}, {vr(vt[2])}")
    for g in range(4):
        for p in range(8):
            part = g*8+p
            a(f"s_mov_b32 {sr(st[4])}, {part*8192}")
            a(f"s_mov_b32 {sr(st[5])}, {part*256}")
            a(f"buffer_load_dwordx4 {vr(buf+16*p,4)}, {vr(vt[1])}, {sr(sK,4)}, {sr(st[4])} offen")
            a(f"buffer_load_dwordx4 {vr(buf+16*p+4,4)}, {vr(vt[1])}, {sr(sK,4)}, {sr(st[4])} offen offset:1024")
            a(f"buffer_load_dwordx4 {vr(buf+16*p+8,4)}, {vr(vt[2])}, {sr(sZ,4)}, {sr(st[5])} offen")
            a(f"buffer_load_dwordx4 {vr(buf+16*p+12,4)}, {vr(vt[2])}, {sr(sZ,4)}, {sr(st[5])} offen offset:16")
        a("s_waitcnt vmcnt(0)")
        for p in range(8):
            for i in range(0, 16, 2):
                if g == 0 and p == 0:
                    a(f"v_pk_add_f32 {vr(ac+i,2)}, {vr(buf+i,2)}, {vr(buf+16+i,2)}")
                elif g == 0 and p == 1: pass
                else: a(f"v_pk_add_f32 {vr(ac+i,2)}, {vr(ac+i,2)}, {vr(buf+16*p+i,2)}")
    pack16(a, ac, buf)
    a(f"buffer_store_dwordx4 {vr(buf,4)}, {vr(vt[0])}, {sr(sKF,4)}, 0 offen")
    a(f"buffer_store_dwordx4 {vr(buf+4,4)}, {vr(vt[0])}, {sr(sZF,4)}, 0 offen")
    a("s_endpgm")
    a(f"{Lcs}:")
    sC = k.srd("ws", WS["CS"], 17*3584*4)
    a(f"s_sub_u32 {sr(st[0])}, s2, 128")
    a(f"s_lshl_b32 {sr(st[0])}, {sr(st[0])}, 8")
    a(f"v_lshlrev_b32 {vr(vt[0])}, 2, {vr(k.vl)}")
    a(f"v_add_u32 {vr(vt[0])}, {sr(st[0])}, {vr(vt[0])}")
    for p in range(16):
        a(f"s_mov_b32 {sr(st[4])}, {p*3584*4}")
        a(f"buffer_load_dword {vr(buf+p)}, {vr(vt[0])}, {sr(sC,4)}, {sr(st[4])} offen")
    a("s_waitcnt vmcnt(0)")
    for p in range(1, 16): a(f"v_add_f32 {vr(buf)}, {vr(buf)}, {vr(buf+p)}")
    a(f"s_mov_b32 {sr(st[4])}, {16*3584*4}")
    a(f"buffer_store_dword {vr(buf)}, {vr(vt[0])}, {sr(sC,4)}, {sr(st[4])} offen")
    return k.finish()

def k_q():
    slot, S = 24576, 5
    k = gemm_head("q_kernel", 256, 16, 4, 8, slot, S, ["wqkv", "wphi", "ws"]); a = k.a; V = k.V; st = k.st; vt = k.vt
    c = Compute(k, slot, S, 1, 'sub'); c.init()
    acc = V.alloc(32, 4); wphi = V.alloc(8, 4); kvf = V.alloc(16, 4); zf = V.alloc(16, 4)
    T = V.alloc(64, 4); t4 = V.alloc(4, 2); vo = V.alloc()
    s_l2e = k.S.alloc(2, 2)
    a(f"s_mov_b32 {sr(s_l2e)}, {f32(LOG2E)}")
    fin = load_wphi(k, c, wphi, T)
    a(f"s_lshl_b32 {sr(st[0])}, {sr(k.s_ni)}, 1")
    a(f"s_add_u32 {sr(st[0])}, {sr(st[0])}, {sr(c.s_wn)}")
    a(f"s_lshl_b32 {sr(st[0])}, {sr(st[0])}, 12")
    sKF = k.srd("ws", WS["KVF"], 4096, soff=st[0]); sZF = k.srd("ws", WS["ZF"], 4096, soff=st[0])
    a(f"v_lshlrev_b32 {vr(vt[0])}, 4, {vr(k.vl)}")
    for j in range(4):
        a(f"buffer_load_dwordx4 {vr(kvf+4*j,4)}, {vr(vt[0])}, {sr(sKF,4)}, 0 offen offset:{j*1024}")
        a(f"buffer_load_dwordx4 {vr(zf+4*j,4)}, {vr(vt[0])}, {sr(sZF,4)}, 0 offen offset:{j*1024}")
    sO = rowblk_srd(k, "ws", WS["O"], 2048)
    row_addr(k, c, vo, 2048, 64, 128)
    for i in range(32): a(f"v_mov_b32 {vr(acc+i)}, 0")
    a("s_waitcnt vmcnt(0)")
    fin()
    c.first()
    c.loop(15, acc, [0]); c.tile(acc, [0], last=True)
    qp, pk, em, php, phm = T, T+16, T+32, T+48, T+56
    for i in range(2):
        pack16(a, acc+16*i, qp)
        a(f"{MF} {vr(pk,16)}, {vr(wphi,4)}, {vr(qp,4)}, 0")
        a(f"{MF} {vr(pk,16)}, {vr(wphi+4,4)}, {vr(qp+4,4)}, {vr(pk,16)}")
        softmax_pm(a, pk, em, php, phm, t4, s_l2e)
        for j in range(4):
            a(f"{MF} {vr(em,16)}, {vr(zf+4*j,4)}, {vr(php+4*j,4)}, {'0' if j == 0 else vr(em,16)}")
        for j in range(4):
            a(f"{MF} {vr(pk,16)}, {vr(kvf+4*j,4)}, {vr(php+4*j,4)}, {'0' if j == 0 else vr(pk,16)}")
        a(f"v_add_f32 {vr(t4)}, {f32(1e-6)}, {vr(em)}")
        a(f"v_rcp_f32 {vr(t4)}, {vr(t4)}")
        for e in range(0, 16, 2):
            a(f"v_pk_mul_f32 {vr(pk+e,2)}, {vr(pk+e,2)}, {vr(t4,2)} op_sel_hi:[1,0]")
        o = acc+16*i
        pack16(a, pk, o); swap8(a, o)
        a(f"s_mov_b32 {sr(st[0])}, {i*32*2048}")
        for h in range(2):
            a(f"buffer_store_dwordx4 {vr(o+4*h,4)}, {vr(vo)}, {sr(sO,4)}, {sr(st[0])} offen offset:{h*32}")
    ph = Phase(16, 2048, 6144, 1)
    loader_part(k, slot, S, [(ph, ("ws", WS["XN"]), ("wqkv", (0, 0), 128))])
    return k.finish()

def k_res(name, resptr, aoff, lda, NT, wptr, outptr, stats):
    slot, S = 24576, 5
    k = gemm_head(name, 256, 16, 4, 8, slot, S, list(dict.fromkeys([wptr, "ws", resptr[0], outptr[0]]))); a = k.a; V = k.V; st = k.st; vt = k.vt
    c = Compute(k, slot, S, 1, 'sub'); c.init()
    acc = V.alloc(32, 4); T = V.alloc(16, 4); vo = V.alloc(); s12 = V.alloc(2, 2); one = V.alloc()
    sR = rowblk_srd(k, resptr[0], resptr[1], 2048); sO = rowblk_srd(k, outptr[0], outptr[1], 2048)
    row_addr(k, c, vo, 2048, 64, 128)
    for i in range(2):
        a(f"s_mov_b32 {sr(st[0])}, {i*32*2048}")
        for h in range(2):
            a(f"buffer_load_dwordx4 {vr(T+8*i+4*h,4)}, {vr(vo)}, {sr(sR,4)}, {sr(st[0])} offen offset:{h*32}")
    if stats:
        vs = V.alloc()
        a(f"s_lshl_b32 {sr(st[0])}, {sr(k.s_ni)}, 1")
        a(f"s_add_u32 {sr(st[0])}, {sr(st[0])}, {sr(c.s_wn)}")
        a(f"s_lshl_b32 {sr(st[0])}, {sr(st[0])}, 14")
        a(f"s_lshl_b32 {sr(st[1])}, {sr(k.s_mi)}, 10")
        a(f"s_add_u32 {sr(st[0])}, {sr(st[0])}, {sr(st[1])}")
        a(f"s_lshl_b32 {sr(st[1])}, {sr(c.s_wm)}, 9")
        a(f"s_add_u32 {sr(st[0])}, {sr(st[0])}, {sr(st[1])}")
        sS = k.srd("ws", WS["HST"], 512, soff=st[0])
        a(f"v_and_b32 {vr(vt[0])}, 31, {vr(k.vl)}")
        a(f"v_lshrrev_b32 {vr(vt[1])}, 5, {vr(k.vl)}")
        a(f"v_lshlrev_b32 {vr(vt[1])}, 2, {vr(vt[1])}")
        a(f"v_lshl_add_u32 {vr(vs)}, {vr(vt[0])}, 3, {vr(vt[1])}")
        a(f"v_mov_b32 {vr(one)}, 0x3f803f80")
    a("s_waitcnt vmcnt(0)")
    for i in range(2):
        swap8(a, T+8*i); unpack8(a, T+8*i, acc+16*i)
    c.first()
    c.loop(NT-1, acc, [0]); c.tile(acc, [0], last=True)
    for i in range(2):
        o = T+8*i
        pack16(a, acc+16*i, o); swap8(a, o)
        a(f"s_mov_b32 {sr(st[0])}, {i*32*2048}")
        for h in range(2):
            a(f"buffer_store_dwordx4 {vr(o+4*h,4)}, {vr(vo)}, {sr(sO,4)}, {sr(st[0])} offen offset:{h*32}")
        if stats:
            stat8(a, [o], s12, one)
            a(f"buffer_store_dword {vr(s12)}, {vr(vs)}, {sr(sS,4)}, 0 offen offset:{i*256}")
    ph = Phase(NT, lda, 2048, 1)
    loader_part(k, slot, S, [(ph, ("ws", aoff), (wptr, (0, 0), 128))])
    return k.finish()

def stat8(a, packs, s12, one):
    first = True
    for o in packs:
        for e in range(8):
            a(f"v_dot2_f32_bf16 {vr(s12)}, {vr(o+e)}, {vr(one)}, {'0' if first else vr(s12)}")
            a(f"v_dot2_f32_bf16 {vr(s12+1)}, {vr(o+e)}, {vr(o+e)}, {'0' if first else vr(s12+1)}")
            first = False
    a(f"v_permlane32_swap_b32 {vr(s12)}, {vr(s12+1)}")
    a(f"v_add_f32 {vr(s12)}, {vr(s12)}, {vr(s12+1)}")

def ln_fold_setup(k, c, tmp, rs, cs, colbase):
    a = k.a; st = k.st; vt = k.vt
    a(f"s_lshl_b32 {sr(st[0])}, {sr(k.s_mi)}, 10")
    a(f"s_lshl_b32 {sr(st[1])}, {sr(c.s_wm)}, 9")
    a(f"s_add_u32 {sr(st[0])}, {sr(st[0])}, {sr(st[1])}")
    sS = k.srd("ws", WS["HST"], 32*16384)
    a(f"v_and_b32 {vr(vt[0])}, 31, {vr(k.vl)}")
    a(f"v_lshrrev_b32 {vr(vt[1])}, 5, {vr(k.vl)}")
    a(f"v_lshlrev_b32 {vr(vt[2])}, 18, {vr(vt[1])}")
    a(f"v_lshl_add_u32 {vr(vt[0])}, {vr(vt[0])}, 3, {vr(vt[2])}")
    for p in range(16):
        for i in range(2):
            a(f"buffer_load_dwordx2 {vr(tmp+32*i+2*p,2)}, {vr(vt[0])}, {sr(sS,4)}, {sr(st[0])} offen offset:{i*256}")
        if p < 15: a(f"s_add_u32 {sr(st[0])}, {sr(st[0])}, 16384")
    a(f"s_lshl_b32 {sr(st[0])}, {sr(k.s_ni)}, 9")
    a(f"s_lshl_b32 {sr(st[1])}, {sr(c.s_wn)}, 8")
    a(f"s_add_u32 {sr(st[0])}, {sr(st[0])}, {sr(st[1])}")
    sC = k.srd("ws", WS["CS"] + (16*3584 + colbase)*4, 256, soff=st[0])
    a(f"v_lshlrev_b32 {vr(vt[1])}, 4, {vr(vt[1])}")
    for q in range(8):
        a(f"buffer_load_dwordx4 {vr(cs+4*q,4)}, {vr(vt[1])}, {sr(sC,4)}, 0 offen offset:{q*32}")
    a("s_waitcnt vmcnt(8)")
    for i in range(2):
        b = tmp+32*i
        for p in range(1, 16): a(f"v_pk_add_f32 {vr(b,2)}, {vr(b,2)}, {vr(b+2*p,2)}")
        a(f"v_permlane32_swap_b32 {vr(b)}, {vr(b+1)}")
        a(f"v_add_f32 {vr(b)}, {vr(b)}, {vr(b+1)}")
        a(f"v_mul_f32 {vr(b)}, {f32(1/1024)}, {vr(b)}")
        a(f"v_mov_b32 {vr(b+1)}, {vr(b)}")
        a(f"v_permlane32_swap_b32 {vr(b)}, {vr(b+1)}")
        a(f"v_fma_f32 {vr(b+1)}, -{vr(b)}, {vr(b)}, {vr(b+1)}")
        a(f"v_max_f32 {vr(b+1)}, 0, {vr(b+1)}")
        a(f"v_add_f32 {vr(b+1)}, {f32(1e-5)}, {vr(b+1)}")
        a(f"v_rsq_f32 {vr(rs+2*i)}, {vr(b+1)}")
        a(f"v_mul_f32_e64 {vr(rs+2*i+1)}, -{vr(b)}, {vr(rs+2*i)}")
    a("s_waitcnt vmcnt(0)")

GC0 = -2*0.7978845608028654*LOG2E
GC1 = GC0*0.044715
def gelu16(a, x, cs, rs, u, s_gc, v_c0):
    for e in range(0, 16, 2):
        a(f"v_pk_mul_f32 {vr(u+e,2)}, {vr(cs+e,2)}, {vr(rs,2)} op_sel:[0,1] op_sel_hi:[1,1]")
    for e in range(0, 16, 2):
        a(f"v_pk_fma_f32 {vr(x+e,2)}, {vr(x+e,2)}, {vr(rs,2)}, {vr(u+e,2)} op_sel_hi:[1,0,1]")
    for e in range(0, 16, 2):
        a(f"v_pk_mul_f32 {vr(u+e,2)}, {vr(x+e,2)}, {vr(x+e,2)}")
    for e in range(0, 16, 2):
        a(f"v_pk_fma_f32 {vr(u+e,2)}, {vr(u+e,2)}, {sr(s_gc,2)}, {vr(v_c0,2)} op_sel_hi:[1,0,0]")
    for e in range(0, 16, 2):
        a(f"v_pk_mul_f32 {vr(u+e,2)}, {vr(u+e,2)}, {vr(x+e,2)}")
    for e in range(16): a(f"v_exp_f32 {vr(u+e)}, {vr(u+e)}")
    for e in range(0, 16, 2):
        a(f"v_pk_add_f32 {vr(u+e,2)}, {vr(u+e,2)}, {sr(s_gc,2)} op_sel:[0,1] op_sel_hi:[1,1]")
    for e in range(16): a(f"v_rcp_f32 {vr(u+e)}, {vr(u+e)}")
    for e in range(0, 16, 2):
        a(f"v_pk_mul_f32 {vr(x+e,2)}, {vr(x+e,2)}, {vr(u+e,2)}")

def gelu_consts(k):
    a = k.a
    s_gc = k.S.alloc(2, 2); v_c0 = k.V.alloc(2, 2)
    a(f"s_mov_b32 {sr(s_gc)}, {f32(GC1)}")
    a(f"s_mov_b32 {sr(s_gc+1)}, 1.0")
    a(f"v_mov_b32 {vr(v_c0)}, {f32(GC0)}")
    return s_gc, v_c0

def k_z2():
    slot, S = 32768, 4
    k = gemm_head("z2_kernel", 224, 14, 4, 7, slot, S, ["w_in", "ws"]); a = k.a; V = k.V; st = k.st; vt = k.vt
    c = Compute(k, slot, S, 2, 'seg'); c.init()
    acc = V.alloc(64, 4); cs = V.alloc(32, 4); rs = V.alloc(4, 2); vo = V.alloc(); vs = V.alloc(); s12 = V.alloc(2, 2); one = V.alloc()
    s_gc, v_c0 = gelu_consts(k)
    ln_fold_setup(k, c, acc, rs, cs, 1792)
    sO = rowblk_srd(k, "ws", WS["Z2"], 3584)
    row_addr(k, c, vo, 3584, 128, 256)
    a(f"s_lshl_b32 {sr(st[0])}, {sr(k.s_ni)}, 1")
    a(f"s_add_u32 {sr(st[0])}, {sr(st[0])}, {sr(c.s_wn)}")
    a(f"s_lshl_b32 {sr(st[0])}, {sr(st[0])}, 14")
    a(f"s_lshl_b32 {sr(st[1])}, {sr(k.s_mi)}, 10")
    a(f"s_add_u32 {sr(st[0])}, {sr(st[0])}, {sr(st[1])}")
    a(f"s_lshl_b32 {sr(st[1])}, {sr(c.s_wm)}, 9")
    a(f"s_add_u32 {sr(st[0])}, {sr(st[0])}, {sr(st[1])}")
    sS = k.srd("ws", WS["ZST"], 512, soff=st[0])
    a(f"v_and_b32 {vr(vt[0])}, 31, {vr(k.vl)}")
    a(f"v_lshrrev_b32 {vr(vt[1])}, 5, {vr(k.vl)}")
    a(f"v_lshlrev_b32 {vr(vt[1])}, 2, {vr(vt[1])}")
    a(f"v_lshl_add_u32 {vr(vs)}, {vr(vt[0])}, 3, {vr(vt[1])}")
    a(f"v_mov_b32 {vr(one)}, 0x3f803f80")
    for i in range(64): a(f"v_mov_b32 {vr(acc+i)}, 0")
    c.first()
    c.loop(15, acc, [0, 0]); c.tile(acc, [0, 0], last=True)
    T = c.fA[0]
    for i in range(2):
        a(f"s_mov_b32 {sr(st[0])}, {i*32*3584}")
        for j in range(2):
            x = acc+(2*i+j)*16; o = T+16+(2*i+j)*8
            gelu16(a, x, cs+16*j, rs+2*i, T, s_gc, v_c0)
            pack16(a, x, o); swap8(a, o)
            for h in range(2):
                a(f"buffer_store_dwordx4 {vr(o+4*h,4)}, {vr(vo)}, {sr(sO,4)}, {sr(st[0])} offen offset:{j*64+h*32}")
        stat8(a, [T+16+16*i, T+24+16*i], s12, one)
        a(f"buffer_store_dword {vr(s12)}, {vr(vs)}, {sr(sS,4)}, 0 offen offset:{i*256}")
    ph = Phase(16, 2048, 7168, 2); ph.segoff = [0, 128]
    loader_part(k, slot, S, [(ph, ("ws", WS["H"]), ("w_in", (0, 3584), 256))])
    return k.finish()

def k_norm():
    k = Kern("norm_kernel", 256, 256, 0); a = k.a; V = k.V
    k.guard(); k.load_ptrs(["ws"]); k.ids(); st = k.st; vt = k.vt
    a("s_waitcnt lgkmcnt(0)")
    a(f"s_mul_i32 {sr(st[0])}, s2, {8*3584}")
    sZ = k.srd("ws", WS["Z2"], 8*3584, soff=st[0]); sN = k.srd("ws", WS["Z2N"], 8*3584, soff=st[0])
    sS = k.srd("ws", WS["ZST"], 28*16384)
    raw = V.alloc(32, 4); stt = V.alloc(16, 2); f = V.alloc(8, 2); vo = V.alloc(); t = V.alloc()
    a(f"v_lshlrev_b32 {vr(vo)}, 4, v0")
    a(f"v_cmp_gt_u32 vcc, 224, v0")
    a(f"v_mov_b32 {vr(vt[0])}, 0x7ffffff0")
    a(f"v_cndmask_b32 {vr(vo)}, {vr(vt[0])}, {vr(vo)}, vcc")
    a(f"v_and_b32 {vr(vt[1])}, 31, {vr(k.vl)}")
    a(f"v_lshlrev_b32 {vr(vt[1])}, 14, {vr(vt[1])}")
    a(f"s_lshl_b32 {sr(st[1])}, s2, 6")
    a(f"v_add_u32 {vr(vt[1])}, {sr(st[1])}, {vr(vt[1])}")
    for r in range(8):
        a(f"buffer_load_dwordx2 {vr(stt+2*r,2)}, {vr(vt[1])}, {sr(sS,4)}, 0 offen offset:{r*8}")
    for r in range(8):
        a(f"s_mov_b32 {sr(st[2])}, {r*3584}")
        a(f"buffer_load_dwordx4 {vr(raw+4*r,4)}, {vr(vo)}, {sr(sZ,4)}, {sr(st[2])} offen")
    a("s_waitcnt vmcnt(8)")
    for r in range(8):
        b = stt+2*r
        wave_sum(a, b, t, full=False); wave_sum(a, b+1, t, full=False)
        a(f"v_mul_f32 {vr(b)}, {f32(1/1792)}, {vr(b)}")
        a(f"v_mul_f32 {vr(b+1)}, {f32(1/1792)}, {vr(b+1)}")
        a(f"v_fma_f32 {vr(b+1)}, -{vr(b)}, {vr(b)}, {vr(b+1)}")
        a(f"v_max_f32 {vr(b+1)}, 0, {vr(b+1)}")
        a(f"v_add_f32 {vr(b+1)}, {f32(1e-5)}, {vr(b+1)}")
        a(f"v_rsq_f32 {vr(b+1)}, {vr(b+1)}")
        a(f"v_mul_f32_e64 {vr(b)}, -{vr(b)}, {vr(b+1)}")
    a("s_waitcnt vmcnt(0)")
    for r in range(8):
        b = stt+2*r; w = raw+4*r
        for i in range(4):
            a(f"v_lshlrev_b32 {vr(f+2*i)}, 16, {vr(w+i)}")
            a(f"v_and_b32 {vr(f+2*i+1)}, 0xffff0000, {vr(w+i)}")
            a(f"v_pk_fma_f32 {vr(f+2*i,2)}, {vr(f+2*i,2)}, {vr(b,2)}, {vr(b,2)} op_sel:[0,1,0] op_sel_hi:[1,1,0]")
            a(f"v_cvt_pk_bf16_f32 {vr(w+i)}, {vr(f+2*i)}, {vr(f+2*i+1)}")
        a(f"s_mov_b32 {sr(st[2])}, {r*3584}")
        a(f"buffer_store_dwordx4 {vr(w,4)}, {vr(vo)}, {sr(sN,4)}, {sr(st[2])} offen")
    return k.finish()

def k_sp():
    slot, S = 32768, 4
    k = gemm_head("sp_kernel", 224, 14, 4, 7, slot, S, ["w_in", "w_sp", "b_sp", "ws"]); a = k.a; V = k.V; st = k.st; vt = k.vt
    c = Compute(k, slot, S, 2, 'seg'); c.init()
    acc = V.alloc(64, 4); acc2 = V.alloc(64, 4); cs = V.alloc(32, 4); rs = V.alloc(4, 2); vo = V.alloc()
    s_gc, v_c0 = gelu_consts(k)
    a(f"s_lshl_b32 {sr(st[0])}, {sr(k.s_mi)}, 8")
    a(f"s_lshl_b32 {sr(st[1])}, {sr(c.s_wm)}, 7")
    a(f"s_add_u32 {sr(st[0])}, {sr(st[0])}, {sr(st[1])}")
    sB = k.srd("b_sp", 0, 128, soff=st[0])
    a(f"v_and_b32 {vr(vt[0])}, 31, {vr(k.vl)}")
    a(f"v_lshlrev_b32 {vr(vt[0])}, 1, {vr(vt[0])}")
    for i in range(2):
        a(f"buffer_load_ushort {vr(acc2+32*i)}, {vr(vt[0])}, {sr(sB,4)}, 0 offen offset:{i*64}")
    ln_fold_setup(k, c, acc, rs, cs, 0)
    sO = rowblk_srd(k, "ws", WS["P"], 3584)
    row_addr(k, c, vo, 3584, 128, 256)
    for i in range(2):
        a(f"v_lshlrev_b32 {vr(acc2+32*i)}, 16, {vr(acc2+32*i)}")
        for e in range(1, 32): a(f"v_mov_b32 {vr(acc2+32*i+e)}, {vr(acc2+32*i)}")
    for i in range(64): a(f"v_mov_b32 {vr(acc+i)}, 0")
    c.first()
    c.loop(16, acc, [0, 0])
    c.loop(31, acc2, [0, 0]); c.tile(acc2, [0, 0], last=True)
    T = c.fA[0]
    for i in range(2):
        a(f"s_mov_b32 {sr(st[0])}, {i*32*3584}")
        for j in range(2):
            x = acc+(2*i+j)*16; g = acc2+(2*i+j)*16; o = T+16+(2*i+j)*8
            gelu16(a, x, cs+16*j, rs+2*i, T, s_gc, v_c0)
            for e in range(0, 16, 2):
                a(f"v_pk_mul_f32 {vr(x+e,2)}, {vr(x+e,2)}, {vr(g+e,2)}")
            pack16(a, x, o); swap8(a, o)
            for h in range(2):
                a(f"buffer_store_dwordx4 {vr(o+4*h,4)}, {vr(vo)}, {sr(sO,4)}, {sr(st[0])} offen offset:{j*64+h*32}")
    p1 = Phase(16, 2048, 7168, 2); p1.segoff = [0, 128]
    p2 = Phase(32, 4096, 3584, 2); p2.segoff = [0, 128]
    loader_part(k, slot, S, [(p1, ("ws", WS["H"]), ("w_in", (0, 0), 256)),
                             (p2, ("w_sp", 0), ("ws", (WS["Z2N"], 0), 256))])
    return k.finish()

def build():
    ks = [k_ln(), k_kv(), k_red(), k_q(),
          k_res("wo_kernel", ("x", 0), WS["O"], 2048, 16, "wo", ("ws", WS["H"]), True),
          k_z2(), k_norm(), k_sp(),
          k_res("out_kernel", ("ws", WS["H"]), WS["P"], 3584, 28, "w_out", ("out", 0), False)]
    ref = open(f"cdna_kernels/{NAME}.s.ref").read().split("\n")
    head = [l for l in ref if l.startswith(";") and "@launch" not in l and "Override launch" not in l and "grid=ceil" not in l]
    txt = "\n".join(head) + "\n" + "\n".join(h for h, _ in ks) + '\n.amdgcn_target "amdgcn-amd-amdhsa--gfx950"\n' + "".join(t for _, t in ks)
    return txt

if __name__ == "__main__":
    out = sys.argv[1] if len(sys.argv) > 1 else f"cdna_kernels/{NAME}.s"
    open(out, "w").write(build())
```

```python
import sys, struct
from asmlib import *
import hazard

NAME = "sequential_preLN__linear_kernel_hedgehog__mixer_gmlp__prompt"
KNAME = NAME + "_kernel"
MB = 1 << 20; KB = 1024
WS = dict(O=0, H=4*MB, Z2N=8*MB, P=16*MB, KVP=24*MB, KVF=32*MB, XST=32*MB+128*KB, ACC=33*MB, FLG=34*MB, STAMP=64*MB)
A_HST, A_ZST, A_CKV, A_CIN, A_Z, A_XST, A_CQ = 0, 16*KB, 32*KB, 40*KB, 56*KB, 64*KB, 80*KB
F_X, F_B2, F_B3, F_B4, F_B6, F_CKV, F_B1A, F_B1B, F_C3, F_C4, F_B5 = range(11)
A_RING, W_RING, MISC = 0, 65536, 147456
M_RS, M_CS, M_ZS, M_ZF, M_CNT, M_KVF, M_CP = MISC, MISC+1024, MISC+2048, MISC+3072, MISC+3584, MISC+4096, MISC+12288
M_WPH = M_KVF+4096
M_G = M_KVF
M_XP = M_KVF

LDS_BYTES = 163840
LOG2E = 1.4426950408889634
GC0 = -2*0.7978845608028654*LOG2E; GC1 = GC0*0.044715
MF = "v_mfma_f32_32x32x16_bf16"; MF16 = "v_mfma_f32_16x16x32_bf16"
def f32(x): return "0x%08x" % struct.unpack("<I", struct.pack("<f", x))[0]
OPT = dict(stamp=False, T0=1, T1=7, T2=11, TQ=2, TQw=2, TQp=1, rb=0, rw=2, rn=4, rl=0, rprio=2, prefetch=1, preQ=9, hl2=6, c3=0, hc3=0, hsleep=1, hn=6, c3s=5, c3n=0, late=1, opol=1, zerokv=1, pK=2, mK=1, pA4=3, pW4=4, pW2=10, pW3=5, pW6=10, spf=0, grpsp=1, leadsp=1, forcesp=0, grpout=1, leadout=1, rotz1=12, forcez1=1, ncwo=8, grpwo=1, leadwo=1, forcewo=0, shift=3, rotwo=15, ncout=4, forceout=0, rotout=0)

a = Asm()
HOOK = None
V = Regs(1, 256); S = Regs(4, 102)
P = {}
def lab(b="L"): return a.label(b)

def srd(ptr, off, size, soff=None, d=None):
    if d is None: d = S.alloc(4, 4)
    p = P[ptr]
    if off and soff is not None:
        a(f"s_add_u32 {sr(d+2)}, {sr(soff)}, {off}")
        a(f"s_add_u32 {sr(d)}, {sr(p)}, {sr(d+2)}")
        a(f"s_addc_u32 {sr(d+1)}, {sr(p+1)}, 0")
    elif off or soff is not None:
        a(f"s_add_u32 {sr(d)}, {sr(p)}, {off if off else sr(soff)}")
        a(f"s_addc_u32 {sr(d+1)}, {sr(p+1)}, 0")
    else:
        a(f"s_mov_b64 {sr(d,2)}, {sr(p,2)}")
    a(f"s_mov_b32 {sr(d+2)}, {size}")
    a(f"s_mov_b32 {sr(d+3)}, 0x20000")
    return d
def stamp(i):
    if not OPT["stamp"]: return
    if i == 0: a(f"s_memrealtime {sr(s_m,2)}"); return
    a(f"s_memrealtime {sr(s_tm,2)}")
    a("s_waitcnt lgkmcnt(0)")
    if i == 1: a(f"v_writelane_b32 {vr(v_stamp)}, {sr(s_m)}, 0")
    if OPT.get("clk") and i < 26:
        a(f"s_memtime {sr(s_m,2)}"); a("s_waitcnt lgkmcnt(0)"); a(f"v_writelane_b32 {vr(v_stamp)}, {sr(s_m)}, {36+i}")
    a(f"v_writelane_b32 {vr(v_stamp)}, {sr(s_tm)}, {i}")
def stamp_out():
    if not OPT["stamp"]: return
    a(f"s_lshl_b32 {sr(st[0])}, s2, 3")
    a(f"s_add_u32 {sr(st[0])}, {sr(st[0])}, {sr(s_w)}")
    a(f"s_lshl_b32 {sr(st[0])}, {sr(st[0])}, 8")
    a(f"s_add_u32 {sr(st[0])}, {sr(st[0])}, {WS['STAMP']}")
    a(f"v_lshl_add_u32 {vr(vt[0])}, {vr(vl)}, 2, {sr(st[0])}")
    a(f"global_store_dword {vr(vt[0])}, {vr(v_stamp)}, {sr(P['ws'],2)}")
TR = {}
def tb_init(role):
    if OPT.get("trace") != role: return
    TR['v'] = V.alloc(8); TR['i'] = S.alloc(); TR['t'] = S.alloc(2, 2); TR['b'] = 0
    a(f"s_mov_b32 {sr(TR['i'])}, -1")
    for i in range(8): a(f"v_mov_b32 {vr(TR['v']+i)}, 0")
def tb_bank(b):
    if TR: TR['b'] = b
def BAR():
    if not TR: a("s_barrier"); return
    a("s_waitcnt lgkmcnt(0)")
    a(f"v_mov_b32 {vr(TR['v']+7)}, {sr(TR['t'])}")
    a(f"v_cmp_eq_u32 vcc, {sr(TR['i'])}, {vr(TR['v']+6)}")
    a(f"v_cndmask_b32 {vr(TR['v']+TR['b'])}, {vr(TR['v']+TR['b'])}, {vr(TR['v']+7)}, vcc")
    a(f"v_subrev_u32 {vr(TR['v']+6)}, 1, {vr(TR['v']+6)}")
    a("s_barrier")
    a(f"s_memrealtime {sr(TR['t'],2)}")
def tb_reset():
    if TR: a(f"v_subrev_u32 {vr(TR['v']+6)}, 1, {vr(vl)}")
def tb_out():
    if not TR: return
    a(f"s_lshl_b32 {sr(st[0])}, s2, 3")
    a(f"s_add_u32 {sr(st[0])}, {sr(st[0])}, {sr(s_w)}")
    a(f"s_lshl_b32 {sr(st[0])}, {sr(st[0])}, 11")
    a(f"s_add_u32 {sr(st[0])}, {sr(st[0])}, {WS['STAMP']+MB}")
    a(f"v_lshl_add_u32 {vr(vt[0])}, {vr(vl)}, 2, {sr(st[0])}")
    for i in range(8): a(f"global_store_dword {vr(vt[0])}, {vr(TR['v']+i)}, {sr(P['ws'],2)} offset:{256*i}")
    TR.clear()
def pack16(src, dst):
    for i in range(8): a(f"v_cvt_pk_bf16_f32 {vr(dst+i)}, {vr(src+2*i)}, {vr(src+2*i+1)}")
def swap8(p):
    for h in range(2):
        a(f"v_permlane32_swap_b32 {vr(p+4*h)}, {vr(p+4*h+2)}")
        a(f"v_permlane32_swap_b32 {vr(p+4*h+1)}, {vr(p+4*h+3)}")
def unpack8(p, dst):
    for i in range(8):
        a(f"v_lshlrev_b32 {vr(dst+2*i)}, 16, {vr(p+i)}")
        a(f"v_and_b32 {vr(dst+2*i+1)}, 0xffff0000, {vr(p+i)}")
def wave_sum(vs, t, full=True):
    for m in ("quad_perm:[1,0,3,2]", "quad_perm:[2,3,0,1]", "row_half_mirror", "row_mirror"):
        for v in vs: a(f"v_add_f32_dpp {vr(v)}, {vr(v)}, {vr(v)} {m} row_mask:0xf bank_mask:0xf")
    for op in ("v_permlane16_swap_b32", "v_permlane32_swap_b32")[:2 if full else 1]:
        for i, v in enumerate(vs): a(f"v_mov_b32 {vr(t+i)}, {vr(v)}")
        for i, v in enumerate(vs): a(f"{op} {vr(v)}, {vr(t+i)}")
        for i, v in enumerate(vs): a(f"v_add_f32 {vr(v)}, {vr(v)}, {vr(t+i)}")
NREP = 4
def signal(kind, grp, pre=None):
    a(f"s_lshl_b32 {sr(st[0])}, {sr(grp)}, 11")
    if pre: a(pre)
    for r in range(NREP): a(f"s_atomic_add {sr(s_one)}, {sr(sF,2)}, {sr(st[0])} offset:{kind*32768+128*r}")
def arrive(kind, grp):
    L = lab("arr")
    a(f"v_mov_b32 {vr(vt[0])}, {M_CNT+4*kind}")
    a(f"v_mov_b32 {vr(vt[1])}, 1")
    a("s_mov_b64 exec, 1")
    a("s_waitcnt vmcnt(0)")
    a(f"ds_add_rtn_u32 {vr(vt[2])}, {vr(vt[0])}, {vr(vt[1])}")
    a("s_waitcnt lgkmcnt(0)")
    a(f"v_readfirstlane_b32 {sr(st[0])}, {vr(vt[2])}")
    a("s_mov_b64 exec, -1")
    a(f"s_cmp_lg_u32 {sr(st[0])}, 3")
    a(f"s_cbranch_scc1 {L}")
    signal(kind, grp)
    a(f"{L}:")
def HM(): return 4 if OPT.get('late') == 2 else 1
def handoff(kind):
    if not OPT.get("late"):
        a("s_barrier"); arrive(kind, s_mi); return
    if OPT["late"] == 2:
        a("s_barrier"); signal(kind, s_mi, pre="s_waitcnt vmcnt(0)"); return
    L = lab("ho")
    a("s_waitcnt vmcnt(0)")
    a("s_barrier")
    a(f"s_cmp_lg_u32 {sr(s_w)}, 0"); a(f"s_cbranch_scc1 {L}")
    signal(kind, s_mi)
    a(f"{L}:")
def ctr_off(d, grp, rep):
    a(f"s_and_b32 {sr(d)}, {sr(rep)}, {NREP-1}")
    a(f"s_lshl4_add_u32 {sr(d)}, {sr(grp)}, {sr(d)}")
    a(f"s_lshl_b32 {sr(d)}, {sr(d)}, 7")
def poll(kind, grp, rep, n, bar=None, lazy=None, second=None):
    L = lab("poll"); D = lab("pdone")
    ctr_off(st[0], grp, rep)
    if second: ctr_off(st[2], second[1], second[2])
    a(f"{L}:")
    a(f"s_load_dword {sr(s_pv)}, {sr(sF,2)}, {sr(st[0])} offset:{kind*32768} glc")
    if second: a(f"s_load_dword {sr(s_pv+1)}, {sr(sF,2)}, {sr(st[2])} offset:{second[0]*32768} glc")
    if bar: bar()
    a(f"s_sub_u32 {sr(s_to)}, {sr(s_to)}, 1")
    a("s_waitcnt lgkmcnt(0)")
    a(f"s_cbranch_scc1 {D}")
    if second: a(f"s_min_u32 {sr(s_pv)}, {sr(s_pv)}, {sr(s_pv+1)}")
    if lazy:
        Z = lab("pz")
        a(f"s_cmp_lg_u32 {sr(s_pv)}, 0"); a(f"s_cbranch_scc1 {Z}"); a(f"s_sleep {lazy}"); a(f"{Z}:")
    a(f"s_cmp_lt_u32 {sr(s_pv)}, {n}")
    a(f"s_cbranch_scc1 {L}")
    a(f"{D}:")
    a(f"s_max_i32 {sr(s_to)}, {sr(s_to)}, 0")

class Ph:
    def __init__(s, name, NT, mf, am, lda, wm_, ldw, nseg, lead, nc, force=True):
        s.name, s.NT, s.mf, s.am, s.lda, s.wm, s.ldw, s.nseg, s.lead, s.nc, s.force = name, NT, mf, am, lda, wm_, ldw, nseg, lead, nc, force
        s.ld = {}
P1K = Ph("kv", 16, 16, 'row', 2048, 'sub', 6144, 2, 2, 4, force=False);  P1K.segoff = 2048
P1Q = Ph("q",  16, 16, 'row', 2048, 'sub', 6144, 1, 2, 4, force=False)
P2  = Ph("wo", 16, 16, 'frag', 0, 'sub', 2048, 1, 2, 4, force=False)
P3  = Ph("z2", 16, 16, 'frag', 0, 'seg', 7168, 2, 2, 4, force=False);    P3.segoff = 128
P4  = Ph("z1", 16, 16, 'frag', 0, 'seg', 7168, 2, 2, 4, force=False);    P4.segoff = 128
P5  = Ph("sp", 32, 16, 'row', 4096, 'blk', 0, 2, 2, 4, force=False)
P6  = Ph("out", 28, 16, 'frag', 0, 'sub', 2048, 1, 2, 4, force=False)
for _p, _b in zip((P1K, P1Q, P2, P3, P4, P5, P6), (0, 16, 32, 48, 64, 80, 112)): _p.base = _b

def order_list(ph, c):
    G = OPT.get('grp'+ph.name, 0); NT = ph.NT >> G
    lead = OPT.get('lead'+ph.name, ph.lead); force = OPT.get('force'+ph.name, ph.force)
    kl = c; kf = 1 if c == 0 else 0; ks = ph.nc if c == 0 else c; out = []
    for i in range(NT):
        t = min(kf + (NT if (i == 0 and force) else lead), NT-1)
        if kl <= t: out.append(kl); kl += ph.nc
        else:
            out.append(kf); kf += 1
        if kf == ks: kf += 1; ks += ph.nc
    assert sorted(out) == list(range(NT))
    if OPT.get('zero'+ph.name) and out[0] != 0:
        assert out[1] == 0; out[0], out[1] = out[1], out[0]
    return [(k << G) + b for k in out for b in range(1 << G)]
def special_list(ph):
    rel = (lambda c, b: 2*c+b) if OPT.get('grp'+ph.name, 0) else (lambda c, b: c+4*b)
    return [order_list(ph, c).index(rel(c, b)) for b in range(2) for c in range(4)]
def special_pos(ph, bit_src, dst):
    pos = special_list(ph)
    tab = sum(p << (4*i) for i, p in enumerate(pos))
    a(f"s_sub_u32 {sr(st[0])}, {sr(s_mi)}, {sr(s_c8)}")
    a(f"s_and_b32 {sr(st[0])}, {sr(st[0])}, 3")
    a(f"s_and_b32 {sr(dst)}, {sr(bit_src)}, 4")
    a(f"s_add_u32 {sr(st[0])}, {sr(st[0])}, {sr(dst)}")
    a(f"s_lshl_b32 {sr(st[0])}, {sr(st[0])}, 2")
    a(f"s_lshr_b32 {sr(dst)}, {tab:#x}, {sr(st[0])}")
    a(f"s_and_b32 {sr(dst)}, {sr(dst)}, 15")
    return max(pos)
def order_table(ph, dst, mul, lane_off):
    shift = 0
    if OPT.get("reuse", 3) & {P1Q: 1, P4: 2}.get(ph, 0):
        ph = {P1Q: P1K, P4: P3}[ph]; shift = 4
    ph.nc = OPT.get('nc'+ph.name, ph.nc); ph.lead = OPT.get('lead'+ph.name, ph.lead); ph.force = OPT.get('force'+ph.name, ph.force)
    NT, nc, lead = ph.NT, ph.nc, ph.lead
    c, rot = st[1], st[2]
    if nc in (2, 4):
        a(f"s_sub_u32 {sr(c)}, {sr(s_mi)}, {sr(s_c8)}"); a(f"s_and_b32 {sr(c)}, {sr(c)}, {nc-1}")
    else: a(f"s_mov_b32 {sr(c)}, {sr(s_c8)}")
    if ph is P1K:
        a(f"s_xor_b32 {sr(rot)}, {sr(s_mi)}, {sr(s_nj)}"); a(f"s_and_b32 {sr(rot)}, {sr(rot)}, 8")
    elif ph is P5:
        a(f"s_and_b32 {sr(rot)}, {sr(s_mi)}, 12"); a(f"s_lshl_b32 {sr(rot)}, {sr(rot)}, 1")
    elif OPT.get('rmul'+ph.name):
        a(f"s_and_b32 {sr(rot)}, {sr(s_mi)}, 3"); a(f"s_mul_i32 {sr(rot)}, {sr(rot)}, {OPT['rmul'+ph.name]}")
    else: a(f"s_and_b32 {sr(rot)}, {sr(s_mi)}, {8 if ph is P3 else OPT.get('rot'+ph.name, 0)}")
    mg = (1024 + nc - 1)//nc
    a(f"s_sub_u32 {sr(c)}, {nc}, {sr(c)}")
    l1, l0, lf, y, t = vt[0], vt[1], vt[2], vt[3], vt[4]
    G = OPT.get('grp'+ph.name, 0); NTs = NT >> G; kk = vl
    if G: kk = dst; a(f"v_lshrrev_b32 {vr(kk)}, {G}, {vr(vl)}")
    def Lq(d, x, add, clamp):
        if clamp:
            a(f"v_add_u32 {vr(d)}, {add}, {vr(x)}"); a(f"v_min_u32 {vr(d)}, {NTs-1}, {vr(d)}"); a(f"v_add_u32 {vr(d)}, {sr(c)}, {vr(d)}")
        elif add: a(f"v_add3_u32 {vr(d)}, {vr(x)}, {sr(c)}, {add}")
        else: a(f"v_add_u32 {vr(d)}, {sr(c)}, {vr(x)}")
        if nc & (nc-1): a(f"v_mul_u32_u24 {vr(d)}, {mg}, {vr(d)}"); a(f"v_lshrrev_b32 {vr(d)}, 10, {vr(d)}")
        else: a(f"v_lshrrev_b32 {vr(d)}, {nc.bit_length()-1}, {vr(d)}")
    Lq(l1, kk, -1, False); Lq(l0, kk, 0, False); Lq(lf, kk, lead, True)
    if ph.force: a(f"v_max_u32 {vr(lf)}, 1, {vr(lf)}")
    a(f"v_sub_u32 {vr(lf)}, {vr(lf)}, {vr(l1)}")
    a(f"v_add_u32 {vr(lf)}, {vr(lf)}, {vr(kk)}")
    a(f"v_subrev_u32 {vr(y)}, {lead}, {vr(kk)}"); a(f"v_max_i32 {vr(y)}, 0, {vr(y)}")
    Lq(t, y, -1, False)
    a(f"v_sub_u32 {vr(y)}, {vr(y)}, {vr(t)}")
    a(f"v_add_u32 {vr(y)}, {vr(y)}, {vr(l1)}")
    if ph.force:
        a(f"v_cmp_eq_u32 vcc, 0, {vr(l1)}"); a(f"v_cndmask_b32 {vr(y)}, {vr(y)}, {vr(l1)}, vcc")
    a(f"v_cmp_ne_u32 vcc, {vr(l0)}, {vr(l1)}")
    a(f"v_cndmask_b32 {vr(y)}, {vr(lf)}, {vr(y)}, vcc")
    if OPT.get('zero'+ph.name):
        a(f"v_max_u32 {vr(y)}, 1, {vr(y)}")
        for b in range(1 << G): a(f"v_writelane_b32 {vr(y)}, 0, {b}")
    if G:
        a(f"v_and_b32 {vr(l0)}, {(1 << G)-1}, {vr(vl)}"); a(f"v_lshl_add_u32 {vr(y)}, {vr(y)}, {G}, {vr(l0)}")
    if shift:
        a(f"v_add_u32 {vr(y)}, {shift}, {vr(y)}"); a(f"v_and_b32 {vr(y)}, 15, {vr(y)}")
    a(f"v_cmp_gt_u32 vcc, {NT}, {vr(vl)}")
    a(f"v_cndmask_b32 {vr(y)}, {vr(vl)}, {vr(y)}, vcc")
    a(f"v_add_lshl_u32 {vr(y)}, {vr(y)}, {lane_off & 63}, 2")
    a(f"v_add_u32 {vr(t)}, {sr(rot)}, {vr(vl)}")
    if NT & (NT-1) == 0: a(f"v_and_b32 {vr(t)}, {NT-1}, {vr(t)}")
    else:
        a(f"v_subrev_u32 {vr(l0)}, {NT}, {vr(t)}"); a(f"v_min_u32 {vr(t)}, {vr(t)}, {vr(l0)}")
    a(f"v_mul_u32_u24 {vr(t)}, {mul}, {vr(t)}")
    a(f"ds_permute_b32 {vr(dst)}, {vr(y)}, {vr(t)}")

class Loader:
    def __init__(s, kind):
        s.kind = kind
        s.slot, s.off, s.j = [S.alloc() for _ in range(3)]
        s.d = [S.alloc(4, 4) for _ in range(4)]
        s.v = [V.alloc(16) for _ in range(4)]; s.tab = [V.alloc() for _ in range(4)]
        s.off2 = S.alloc(); s.cnt = S.alloc()
    def cap(s, ph): return 4 if s.kind == 'A' else 10//ph.nseg
    def ninst(s, ph): return 8 if s.kind == 'A' else 8*ph.nseg
    def lin(s, ph): return (ph.am == 'frag') if s.kind == 'A' else (ph.wm == 'blk')
    def setup(s, ph, i, only_table=False):
        ph.ld[s.kind] = i
        v = s.v[i]; d = s.d[i]
        mul = 16384 if s.lin(ph) else 128 if s.kind == 'A' else 64*ph.ldw
        order_table(ph, s.tab[i], mul, 0)
        if only_table: return
        if s.kind == 'A':
            if ph.am == 'row':
                def mk():
                    a(f"s_mul_i32 {sr(st[0])}, {sr(s_mi)}, {128*ph.lda}")
                    srd("x" if ph is not P5 else "w_sp", 0, 128*ph.lda, soff=st[0], d=d)
                a(f"""v_lshrrev_b32 {vr(vt[0])}, 3, {vr(vl)}
                      v_lshl_add_u32 {vr(vt[0])}, {sr(s_lw)}, 6, {vr(vt[0])}
                      v_mul_u32_u24 {vr(vt[0])}, {ph.lda}, {vr(vt[0])}
                      v_lshrrev_b32 {vr(vt[2])}, 4, {vr(vl)}
                      v_and_b32 {vr(vt[1])}, 7, {vr(vl)}
                      v_xor_b32 {vr(vt[1])}, {vr(vt[1])}, {vr(vt[2])}
                      v_lshl_add_u32 {vr(v)}, {vr(vt[1])}, 4, {vr(vt[0])}
                      v_xor_b32 {vr(v+1)}, 64, {vr(v)}
                      v_add_u32 {vr(v+1)}, {8*ph.lda-1024}, {vr(v+1)}
                      v_add_u32 {vr(v+2)}, {16*ph.lda-2048}, {vr(v)}
                      v_add_u32 {vr(v+3)}, {16*ph.lda-2048}, {vr(v+1)}""")
                steps = [32*ph.lda]
            else:
                base = {P2: "O", P3: "H", P4: "H", P6: "P"}[ph]
                def mk():
                    a(f"s_mul_i32 {sr(st[0])}, {sr(s_mi)}, {ph.NT*16384}")
                    srd("ws", WS[base], ph.NT*16384, soff=st[0], d=d)
                a(f"s_lshl_b32 {sr(st[0])}, {sr(s_lw)}, 13")
                a(f"v_lshl_add_u32 {vr(v)}, {vr(vl)}, 4, {sr(st[0])}")
        else:
            if ph.wm == 'blk':
                def mk():
                    a(f"s_lshl_b32 {sr(st[0])}, {sr(s_n7)}, 19")
                    srd("ws", WS["Z2N"], 32*16384, soff=st[0], d=d)
                a(f"v_lshlrev_b32 {vr(v)}, 4, {vr(vl)}")
            else:
                ptr, col0, n, sh = {P1K: ("wqkv", 2048, s_nj, 7), P1Q: ("wqkv", 0, s_nj, 7), P2: ("wo", 0, s_nj, 7),
                                    P3: ("w_in", 3584, s_n7, 8), P4: ("w_in", 0, s_n7, 8), P6: ("w_out", 0, s_nj, 7)}[ph]
                def mk():
                    a(f"s_lshl_b32 {sr(st[0])}, {sr(n)}, {sh}")
                    srd(ptr, col0, 0, soff=st[0], d=d)
                    a(f"s_sub_u32 {sr(d+2)}, {ph.NT*64*ph.ldw-col0}, {sr(st[0])}")
                a(f"v_lshrrev_b32 {vr(vt[0])}, 3, {vr(vl)}")
                if ph.am == 'row':
                    a(f"v_lshrrev_b32 {vr(vt[2])}, 2, {vr(vl)}"); a(f"v_and_b32 {vr(vt[2])}, 4, {vr(vt[2])}")
                else:
                    a(f"v_and_b32 {vr(vt[2])}, 6, {vr(vt[0])}")
                a(f"""v_mul_u32_u24 {vr(vt[0])}, {ph.ldw}, {vr(vt[0])}
                      v_and_b32 {vr(vt[1])}, 7, {vr(vl)}
                      v_xor_b32 {vr(vt[1])}, {vr(vt[1])}, {vr(vt[2])}
                      v_lshl_add_u32 {vr(v)}, {vr(vt[1])}, 4, {vr(vt[0])}""")
                if ph.am == 'row':
                    a(f"v_xor_b32 {vr(v+1)}, 32, {vr(v)}"); a(f"v_add_u32 {vr(v+1)}, {8*ph.ldw-1024}, {vr(v+1)}")
                else: a(f"v_add_u32 {vr(v+1)}, {8*ph.ldw-1024}, {vr(v)}")
                a(f"v_add_u32 {vr(v+2)}, {16*ph.ldw-2048}, {vr(v)}")
                a(f"v_add_u32 {vr(v+3)}, {16*ph.ldw-2048}, {vr(v+1)}")
                steps = [32*ph.ldw] + ([ph.segoff, ph.segoff+32*ph.ldw] if ph.nseg == 2 else [])
        for g in range(1, s.ninst(ph)//4):
            if s.lin(ph): a(f"v_add_u32 {vr(v+g)}, {4096*g}, {vr(v)}")
            else:
                for j in range(4): a(f"v_add_u32 {vr(v+4*g+j)}, {steps[g-1]}, {vr(v+j)}")
        a("s_waitcnt lgkmcnt(0)")
        mk()
    def begin(s, ph):
        if s.kind == 'A': a(f"s_lshl_b32 {sr(s.slot)}, {sr(s_lw)}, 13")
        else: a(f"s_mov_b32 {sr(s.slot)}, {W_RING}")
        a(f"s_mov_b32 {sr(s.j)}, 0")
        a(f"s_mov_b32 m0, {sr(s.slot)}")
        a("s_waitcnt lgkmcnt(0)")
        a(f"v_readlane_b32 {sr(s.off)}, {vr(s.tab[ph.ld[s.kind]])}, 0")
        a("s_nop 4")
    def issue(s, ph, barat=None, count=False):
        i = ph.ld[s.kind]; v = s.v[i]; d = s.d[i]; ng = s.ninst(ph)//4; lin = s.lin(ph)
        pol = " sc1" if lin else ""
        if s.kind == 'A': b = [f"s_add_u32 {sr(s.slot)}, {sr(s.slot)}, 16384", f"s_and_b32 {sr(s.slot)}, {sr(s.slot)}, 0xffff"]
        else: b = [f"s_add_u32 {sr(s.slot)}, {sr(s.slot)}, {8192*ph.nseg}", f"s_cmp_eq_u32 {sr(s.slot)}, {MISC}", f"s_cselect_b32 {sr(s.slot)}, {W_RING}, {sr(s.slot)}"]
        c = [f"s_add_u32 {sr(s.j)}, {sr(s.j)}, 1", f"v_readlane_b32 {sr(s.off2)}, {vr(s.tab[i])}, {sr(s.j)}"]
        e = [f"s_sub_u32 {sr(s.cnt)}, {sr(s.cnt)}, 1", f"s_cmp_lg_u32 {sr(s.cnt)}, 0"] if count else []
        bursts = [c + b + e] if ng == 2 else [b, c, e]
        for g in range(ng):
            for j in range(4):
                if barat == 4*g+j: BAR()
                a(f"buffer_load_dwordx4 {vr(v+g if lin else v+4*g+j)}, {sr(d,4)}, {sr(s.off)} offen offset:{1024*j}{pol} lds")
            if g < ng-1:
                a("s_add_u32 m0, m0, 4096")
                for x in bursts[g]: a(x)
        a(f"s_mov_b32 m0, {sr(s.slot)}")
        a(f"s_mov_b32 {sr(s.off)}, {sr(s.off2)}")
    def rep(s, n, body):
        if n == 1: body(False); return
        L = lab("ll")
        a(f"s_mov_b32 {sr(s.cnt)}, {n}")
        a(f"{L}:")
        body(True)
        a(f"s_cbranch_scc1 {L}")
    def count(s):
        a(f"s_sub_u32 {sr(s.cnt)}, {sr(s.cnt)}, 1")
        a(f"s_cmp_lg_u32 {sr(s.cnt)}, 0")
    def prefill(s, ph, pre):
        s.rep(pre, lambda lp: s.issue(ph, count=lp))
    def run(s, ph, pre, maxper=2, nxt=None, npf=0, cap=None, last=None):
        n = ph.NT; issued = pre; ni = s.ninst(ph); cap = cap or s.cap(ph)
        after = lambda t: min(63, ni*(issued-t-1))
        H = OPT.get("shift", 2)
        iv = []; w = after(0)
        for t in range(-1, n-1):
            new = 0
            while issued < n and (new < maxper or issued <= t+2) and issued - max(t, 0) < cap: new += 1; issued += 1
            iv.append((w, new, t+1 < npf, H if t >= 0 else 0))
            if t < n-2:
                assert issued > t+2
                w = after(t+2)
        assert issued == n
        i = 0
        while i < len(iv):
            j = i
            while j < len(iv) and iv[j] == iv[i]: j += 1
            def body(lp, x=iv[i]):
                a(f"s_waitcnt vmcnt({x[0]})")
                if x[1] == 0: BAR()
                inl = lp and x[1] and not x[2]
                for k in range(x[1]): s.issue(ph, barat=(x[3] if k == 0 else None), count=(inl and k == x[1]-1))
                if lp and not inl: s.count()
            s.rep(j-i, body)
            i = j
        if nxt: nxt()
        if last: last()
        BAR()

class Addr:
    def __init__(s, ph, vA, vW, bufs):
        s.ph = ph; s.vA = vA; s.vW = vW; s.bufs = bufs
        if ph.mf == 32:
            s.TM, s.TN, s.NS = 2, ph.nseg, 4; s.nA = 4; s.nW = 1
        else:
            s.TM, s.TN, s.NS = 4, 2*ph.nseg, 2
            s.nA = 2 if ph.am == 'row' else 1
            s.nW = 4 if ph.wm == 'seg' else 2
        s.full = ph.mf == 16 and ph.nseg == 1
    def init(s):
        ph = s.ph
        r_, g_ = (v_r, v_hf) if ph.mf == 32 else (v_r16, v_g)
        a(f"s_lshl_b32 {sr(st[0])}, {sr(s_wm)}, 13")
        if ph.am == 'row':
            a(f"""v_bfe_u32 {vr(vt[2])}, {vr(r_)}, 1, 3
                  v_xor_b32 {vr(vt[2])}, {vr(vt[2])}, {vr(g_)}
                  v_lshlrev_b32 {vr(vt[2])}, 4, {vr(vt[2])}
                  v_lshl_add_u32 {vr(vt[2])}, {vr(r_)}, 7, {vr(vt[2])}
                  v_add_u32 {vr(s.vA)}, {sr(st[0])}, {vr(vt[2])}""")
            for ks in range(1, s.nA): a(f"v_xor_b32 {vr(s.vA+ks)}, {ks*128//s.nA}, {vr(s.vA)}")
        else:
            a(f"v_lshl_add_u32 {vr(s.vA)}, {vr(vl)}, 4, {sr(st[0])}")
        a(f"v_lshrrev_b32 {vr(vt[2])}, 2, {vr(v_r16)}")
        if ph.am == 'row' and ph.wm == 'sub':
            a(f"""v_lshl_add_u32 {vr(vt[2])}, {vr(v_g)}, 3, {vr(vt[2])}
                  v_lshlrev_b32 {vr(vt[2])}, 7, {vr(vt[2])}
                  v_bfe_u32 {vr(vt[3])}, {vr(vl)}, 4, 1
                  v_lshl_add_u32 {vr(vt[2])}, {vr(vt[3])}, 5, {vr(vt[2])}
                  v_bfe_u32 {vr(vt[3])}, {vr(vl)}, 3, 1
                  v_lshl_add_u32 {vr(vt[2])}, {vr(vt[3])}, 6, {vr(vt[2])}
                  v_and_b32 {vr(vt[3])}, 3, {vr(vl)}
                  v_lshl_add_u32 {vr(vt[2])}, {vr(vt[3])}, 3, {vr(vt[2])}""")
        elif ph.wm == 'blk':
            a(f"""v_lshl_add_u32 {vr(vt[2])}, {vr(v_g)}, 3, {vr(vt[2])}
                  v_bfe_u32 {vr(vt[3])}, {vr(vl)}, 1, 1
                  v_lshl_add_u32 {vr(vt[2])}, {vr(vt[3])}, 2, {vr(vt[2])}
                  v_lshlrev_b32 {vr(vt[2])}, 4, {vr(vt[2])}
                  v_lshl_add_u32 {vr(vt[2])}, {vr(vt[3])}, 10, {vr(vt[2])}
                  v_and_b32 {vr(vt[3])}, 1, {vr(vl)}
                  v_lshl_add_u32 {vr(vt[2])}, {vr(vt[3])}, 3, {vr(vt[2])}""")
        else:
            a(f"""v_lshl_add_u32 {vr(vt[2])}, {vr(v_g)}, 2, {vr(vt[2])}
                  v_bfe_u32 {vr(vt[3])}, {vr(vt[2])}, 1, 2
                  v_lshlrev_b32 {vr(vt[2])}, 7, {vr(vt[2])}
                  v_lshl_add_u32 {vr(vt[2])}, {vr(vt[3])}, 5, {vr(vt[2])}
                  v_and_b32 {vr(vt[3])}, 3, {vr(vl)}
                  v_lshl_add_u32 {vr(vt[2])}, {vr(vt[3])}, 3, {vr(vt[2])}""")
        if ph.wm == 'sub':
            a(f"s_lshl_b32 {sr(st[0])}, {sr(s_wn)}, 6")
            a(f"v_xor_b32 {vr(vt[2])}, {sr(st[0])}, {vr(vt[2])}")
            a(f"v_add_u32 {vr(s.vW)}, {W_RING}, {vr(vt[2])}")
        else:
            a(f"s_lshl_b32 {sr(st[0])}, {sr(s_wn)}, 13")
            a(f"s_add_u32 {sr(st[0])}, {sr(st[0])}, {W_RING}")
            a(f"v_add_u32 {vr(s.vW)}, {sr(st[0])}, {vr(vt[2])}")
        for j in range(1, s.nW): a(f"v_xor_b32 {vr(s.vW+j)}, {64 if ph.wm == 'blk' else 32*j}, {vr(s.vW)}")
        a(f"v_mov_b32 {vr(v_bA)}, {vr(s.vA)}")
        a(f"v_mov_b32 {vr(v_bW)}, {vr(s.vW)}")
        a(f"s_mov_b32 {sr(s_ra)}, 0")
        a(f"s_mov_b32 {sr(s_rw)}, 0")
    def rewind(s):
        a(f"s_mov_b32 {sr(s_ra)}, 0"); a(f"s_mov_b32 {sr(s_rw)}, 0")
        sal, uA, uW = s.upd()
        for x in uA + uW: a(x)
    def fa(s, b, ks, i):
        if s.ph.mf == 32: return s.bufs[0]+8*ks+4*i
        if s.full: return s.bufs[b]+24*ks+4*i
        return s.bufs[0]+32*ks+4*i
    def fw(s, b, ks, j):
        if s.ph.mf == 32: return s.bufs[0]+32+8*ks+4*j
        if s.full: return s.bufs[b]+24*ks+16+4*j
        return s.bufs[0]+32*ks+16+4*j
    def rdA(s, b, ks, i):
        ph = s.ph
        if ph.mf == 32: ad, off = s.vA+ks, i*4096
        elif ph.am == 'row': ad, off = s.vA+ks, i*2048
        else: ad, off = s.vA, i*2048+ks*1024
        return [(s.fa(b,ks,i), f"ds_read_b128 {vr(s.fa(b,ks,i),4)}, {vr(ad)} offset:{off}")]
    def rdW(s, b, ks, j):
        ph = s.ph; out = []
        for h in range(2):
            if ph.am == 'row' and ph.wm == 'sub': ad, off = s.vW+(j&1), (j>>1)*8192+ks*4096+h*512
            elif ph.wm == 'blk': ad, off = s.vW+h, j*2048+ks*512
            else: ad, off = s.vW+j, ks*4096+h*2048
            out.append((s.fw(b,ks,j), f"ds_read_b64_tr_b16 {vr(s.fw(b,ks,j)+2*h,2)}, {vr(ad)} offset:{off}"))
        return out
    def reads(s, b, ks):
        out = s.rdW(b, ks, 0)
        for i in range(s.TM): out += s.rdA(b, ks, i)
        for j in range(1, s.TN): out += s.rdW(b, ks, j)
        return out
    def reads_full(s, b):
        out = s.rdW(b, 0, 0) + s.rdA(b, 0, 0) + s.rdW(b, 1, 0) + s.rdA(b, 1, 0)
        for i in range(1, 4): out += s.rdA(b, 0, i) + s.rdA(b, 1, i)
        return out + s.rdW(b, 0, 1) + s.rdW(b, 1, 1)
    def pending(s, b):
        if s.ph.mf == 32: return s.reads(b, 0) + s.reads(b, 1)
        return s.reads_full(b) if s.full else s.reads(b, 0)
    def upd(s):
        n = s.ph.nseg
        sal = [f"s_add_u32 {sr(s_ra)}, {sr(s_ra)}, 16384", f"s_and_b32 {sr(s_ra)}, {sr(s_ra)}, 0xffff",
               f"s_add_u32 {sr(s_rw)}, {sr(s_rw)}, {8192*n}", [f"s_cmp_eq_u32 {sr(s_rw)}, 81920", f"s_cselect_b32 {sr(s_rw)}, 0, {sr(s_rw)}"]]
        uA = [f"v_add_u32 {vr(s.vA)}, {sr(s_ra)}, {vr(v_bA)}"] + [f"v_xor_b32 {vr(s.vA+k)}, {k*128//s.nA}, {vr(s.vA)}" for k in range(1, s.nA)]
        uW = [f"v_add_u32 {vr(s.vW)}, {sr(s_rw)}, {vr(v_bW)}"] + [f"v_xor_b32 {vr(s.vW+j)}, {64 if s.ph.wm == 'blk' else 32*j}, {vr(s.vW)}" for j in range(1, s.nW)]
        return sal, uA, uW
    def first(s):
        a("s_waitcnt lgkmcnt(0)")
        if OPT.get("fst"): stamp(26 + [P1Q, P4, P5].index(s.ph)) if s.ph in (P1Q, P4, P5) else None
        a("s_barrier")
        if OPT.get("fst"): stamp(40 + [P1Q, P4, P5].index(s.ph)) if s.ph in (P1Q, P4, P5) else None
        for k, (_, x) in enumerate(s.pending(0)):
            a(x)
            if OPT.get("fsp") == 1: a("s_nop 0"); a("s_nop 0")
            if OPT.get("fsp") == 2 and k % 4 == 3: a("s_nop 3"); a("s_nop 3")
        sal, uA, uW = s.upd()
        flat = sal[:3] + sal[3]
        for x in flat: a(x)
        if s.full:
            for x in uA + uW + flat: a(x)
    def tile(s, acc, swap=None, last=False, cs=None, csmode='lane', vm0=False, zero=False, b=0, tail=(), dots=None, cin=None, fin=None, rate=2):
        ph = s.ph; TM, TN = s.TM, s.TN
        op, AR = (MF, 16) if ph.mf == 32 else (MF16, 4)
        swap = swap or [0]*TN
        def mm(ks, j, i):
            d = acc+(i*TN+j)*AR; x, y = s.fw(b,ks,j), s.fa(b,ks,i)
            c = '0' if (zero and ks == 0) else vr(cin+4*i, AR) if (cin is not None and ks == 0) else vr(d, AR)
            t = f"{op} {vr(d,AR)}, {vr(y,4)}, {vr(x,4)}, {c}" if swap[j] else f"{op} {vr(d,AR)}, {vr(x,4)}, {vr(y,4)}, {c}"
            return (t, (x, y))
        def cm(ks, j):
            d = cs+AR*j; w = s.fw(b,ks,j)
            if csmode == 'lane': return (f"{op} {vr(d,AR)}, {vr(v_ones,4)}, {vr(w,4)}, {'0' if ks == 0 else vr(d,AR)}", (w,))
            return (f"{op} {vr(d,AR)}, {vr(w,4)}, {vr(v_ones,4)}, {vr(d,AR)}", (w,))
        sal, uA, uW = s.upd()
        bar = [(["s_waitcnt vmcnt(0)"] if vm0 else []) + ["s_barrier"]]
        def step(ks):
            m = []
            for j in range(TN):
                for i in (range(TM) if j % 2 == 0 else reversed(range(TM))): m.append(mm(ks, j, i))
                if cs is not None: m.append(cm(ks, j))
            return m
        N = lambda x: [] if last else x
        if ph.mf == 32:
            stages = [(step(0), s.reads(b,2) + N(uA[:2])),
                      (step(1), s.reads(b,3) + N(uW + uA[2:])),
                      (step(2), N(bar + s.reads(b,0) + sal[:2])),
                      (step(3), N(s.reads(b,1) + sal[2:]) + list(tail))]
        elif not s.full:
            if OPT.get("sched", 1) and not last and len(tail) <= 1:
                r0 = s.reads(b, 0); fl = sal[:3] + sal[3]
                st1 = bar + r0[:4] + [[r0[4+k], fl[k]] for k in range(5)] + r0[9:] + [x for t in tail for x in t]
                st1 += [[]]*(16-len(st1))
                stages = [(step(0), s.reads(b,1) + uA + uW), (step(1), st1)]
            else:
                stages = [(step(0), s.reads(b,1) + N(uA + uW)),
                          (step(1), N(bar + s.reads(b,0) + sal) + list(tail))]
        else:
            m = [mm(ks, j, i) for j in range(TN) for i in (range(TM) if j % 2 == 0 else reversed(range(TM))) for ks in range(2)]
            if OPT.get("sched", 1) and not last:
                rf = s.reads_full(b^1); fl = sal[:3] + sal[3]; up = uA + uW
                st1 = bar + [[rf[0], rf[1]], [rf[2], rf[3]], [rf[4], rf[5]], [rf[6], rf[7]], rf[8], rf[9], rf[10], rf[11], [rf[12], rf[13]], [rf[14], rf[15]],
                             up[:2], up[2:] + fl[:3-len(up[2:])+1], fl[3-len(up[2:])+1:], [x for t in tail for x in t], []]
                stages = [(m, st1)]
            else:
                stages = [(m, N(bar + s.reads_full(b^1) + uA + uW + sal) + list(tail))]
        if fin:
            m = [mm(ks, j, i) for i in range(4) for j in range(TN) for ks in (range(2) if s.full else (1,))]
            fl = [[] for _ in range(16)]; q = []
            for k in range(16):
                if k >= 6 and (k-6) % 4 == 0: q += fin((k-6)//4, True)
                fl[k], q = q[:rate], q[rate:]
            fl[15] += q + fin(3, False)
            stages[-1] = (m, fl)
        rdone = False
        fifo = [r for r, _ in s.pending(b)]
        def wait_for(need):
            nonlocal fifo
            pos = max([i for i, r in enumerate(fifo) if r in need], default=-1)
            if pos >= 0:
                a(f"s_waitcnt lgkmcnt({min(15, len(fifo)-pos-1)})"); fifo = fifo[pos+1:]
        def put(f):
            if isinstance(f, tuple):
                if f[0] == 'wait': wait_for((f[1],))
                else: fifo.append(f[0]); a(f[1])
            elif isinstance(f, list):
                for x in f: put(x)
            else: a(f)
        for si, stg in enumerate(stages):
            m, fill = stg[0], list(stg[1]); extra = list(stg[2]) if len(stg) > 2 else []
            n = len(m); base, rem = divmod(len(fill), n)
            if ph.mf == 32: cnts = [-(-len(fill)//n)]*n
            elif base == 0: cnts = [1]*n
            else:
                cnts = [(len(fill)*(k+1))//n - (len(fill)*k)//n for k in range(n)]
            for k, (t, need) in enumerate(m):
                if ph.mf == 16 and OPT.get("coarse", 1):
                    grp = (4, n) if not s.full else (2, 8, n)
                    hi = min(g for g in grp if g > k)
                    if OPT.get("shift", 2) and k == 0 and si == len(stages)-1: hi = n
                    need = set().union(*[set(x[1]) for x in m[k:hi]])
                wait_for(need)
                a(t)
                if last and not fifo and not rdone and si == len(stages)-1:
                    a("s_barrier"); rdone = True
                for _ in range(cnts[k]):
                    if fill: put(fill.pop(0))
                if extra and k >= 1: put(extra.pop(0))
            assert not fill and not extra
            if dots is not None:
                z = lambda d, e: '0' if (si == 0 and e == 0) else vr(d)
                for sel, body in ((s_wn, lambda w: [x for e in range(4) for q in range(2) for x in (
                                        f"v_dot2_f32_bf16 {vr(dots+2*q)}, {vr(s.fa(b,si,2*w+q)+e)}, {vr(v_ones)}, {z(dots+2*q, e)}",
                                        f"v_dot2_f32_bf16 {vr(dots+2*q+1)}, {vr(s.fa(b,si,2*w+q)+e)}, {vr(s.fa(b,si,2*w+q)+e)}, {z(dots+2*q+1, e)}")]),
                                  (s_wm, lambda w: [f"v_dot2_f32_bf16 {vr(dots+4+q)}, {vr(s.fw(b,si,2*w+q)+e)}, {vr(v_ones)}, {z(dots+4+q, e)}" for e in range(4) for q in range(2)])):
                    L1, L2 = lab("d1"), lab("d2")
                    a(f"s_cmp_lg_u32 {sr(sel)}, 0"); a(f"s_cbranch_scc1 {L1}")
                    for x in body(0): a(x)
                    a(f"s_branch {L2}"); a(f"{L1}:")
                    for x in body(1): a(x)
                    a(f"{L2}:")
    def loop(s, n, acc, cnt=None, **kw):
        per = 2 if s.full else 1
        if cnt is None:
            if n == 0: return
            assert n % per == 0
            if n == per:
                for b in range(per): s.tile(acc, b=b, **kw)
                return
        L = lab("cl"); D = lab("cd")
        if cnt is None: a(f"s_mov_b32 {sr(s_cnt)}, {n//per}")
        else:
            a(f"s_mov_b32 {sr(s_cnt)}, {sr(cnt)}")
            a(f"s_cmp_eq_u32 {sr(s_cnt)}, 0"); a(f"s_cbranch_scc1 {D}")
        a(".p2align 6")
        a(f"{L}:")
        for b in range(per):
            s.tile(acc, b=b, tail=([[f"s_sub_u32 {sr(s_cnt)}, {sr(s_cnt)}, 1", f"s_cmp_lg_u32 {sr(s_cnt)}, 0"]] if b == per-1 else ()), **kw)
        a(f"s_cbranch_scc1 {L}")
        if cnt is not None: a(f"{D}:")
def compute_common():
    global s_wm, s_wn, s_ra, s_rw, s_cnt, v_r, v_hf, v_r16, v_g, v_bA, v_bW
    s_wm, s_wn, s_ra, s_rw, s_cnt = [S.alloc() for _ in range(5)]
    v_r, v_hf, v_r16, v_g = [V.alloc() for _ in range(4)]
    v_bA, v_bW = 254, 255
    a(f"""s_lshr_b32 {sr(s_wm)}, {sr(s_w)}, 1
          s_and_b32 {sr(s_wn)}, {sr(s_w)}, 1
          v_and_b32 {vr(v_r)}, 31, {vr(vl)}
          v_lshrrev_b32 {vr(v_hf)}, 5, {vr(vl)}
          v_and_b32 {vr(v_r16)}, 15, {vr(vl)}
          v_lshrrev_b32 {vr(v_g)}, 4, {vr(vl)}""")
def quad_reduce(op, x):
    for i in range(4): a(f"v_permlane32_swap_b32 {vr(x+2*i)}, {vr(x+2*i+1)}")
    for i in range(4): a(f"{op} {vr(x+2*i)}, {vr(x+2*i)}, {vr(x+2*i+1)}")
    for p in range(2): a(f"v_permlane16_swap_b32 {vr(x+4*p)}, {vr(x+4*p+2)}")
    for p in range(2): a(f"{op} {vr(x+4*p)}, {vr(x+4*p)}, {vr(x+4*p+2)}")
def quad_bcast(x):
    for p in range(2): a(f"v_mov_b32 {vr(x+4*p+2)}, {vr(x+4*p)}")
    for p in range(2): a(f"v_permlane16_swap_b32 {vr(x+4*p)}, {vr(x+4*p+2)}")
    for i in range(4): a(f"v_mov_b32 {vr(x+2*i+1)}, {vr(x+2*i)}")
    for i in range(4): a(f"v_permlane32_swap_b32 {vr(x+2*i)}, {vr(x+2*i+1)}")
def exps(p, em, x, rs, scp):
    for i in range(4):
        a(f"v_max3_f32 {vr(x+2*i)}, {vr(p+8*i)}, {vr(p+8*i+1)}, {vr(p+8*i+2)}")
        a(f"v_max3_f32 {vr(x+2*i+1)}, -{vr(p+8*i)}, -{vr(p+8*i+1)}, -{vr(p+8*i+2)}")
    for e in (3, 5):
        for i in range(4):
            a(f"v_max3_f32 {vr(x+2*i)}, {vr(x+2*i)}, {vr(p+8*i+e)}, {vr(p+8*i+e+1)}")
            a(f"v_max3_f32 {vr(x+2*i+1)}, {vr(x+2*i+1)}, -{vr(p+8*i+e)}, -{vr(p+8*i+e+1)}")
    for i in range(4):
        a(f"v_max_f32 {vr(x+2*i)}, {vr(x+2*i)}, {vr(p+8*i+7)}")
        a(f"v_max_f32_e64 {vr(x+2*i+1)}, {vr(x+2*i+1)}, -{vr(p+8*i+7)}")
    quad_reduce("v_max_f32", x)
    for q in range(2): a(f"v_mul_f32_e64 {vr(x+4*q)}, -{vr(scp+q)}, {vr(x+4*q)}")
    quad_bcast(x)
    for i in range(4):
        for e in range(8*i, 8*i+8, 2):
            a(f"v_pk_fma_f32 {vr(em+e,2)}, {vr(p+e,2)}, {vr(rs+2*i,2)}, {vr(x+2*i,2)} op_sel:[0,0,1] op_sel_hi:[1,0,1] neg_lo:[1,0,0] neg_hi:[1,0,0]")
            a(f"v_pk_fma_f32 {vr(p+e,2)}, {vr(p+e,2)}, {vr(rs+2*i,2)}, {vr(x+2*i,2)} op_sel:[0,0,0] op_sel_hi:[1,0,0]")
    for e in range(32):
        a(f"v_exp_f32 {vr(em+e)}, {vr(em+e)}")
        a(f"v_exp_f32 {vr(p+e)}, {vr(p+e)}")
def var_eps(m, q, n):
    a(f"v_mul_f32 {vr(m)}, {f32(-1/n)}, {vr(m)}")
    a(f"v_mul_f32 {vr(q)}, {f32(1/n)}, {vr(q)}")
    a(f"v_fma_f32 {vr(q)}, -{vr(m)}, {vr(m)}, {vr(q)}")
    a(f"v_max_f32 {vr(q)}, 0, {vr(q)}")
    a(f"v_add_f32 {vr(q)}, {f32(1e-5)}, {vr(q)}")
def center(x, cs, nm, n=16):
    for e in range(0, n, 2):
        a(f"v_pk_fma_f32 {vr(x+e,2)}, {vr(cs+e,2)}, {vr(nm,2)}, {vr(x+e,2)} op_sel:[0,1,0] op_sel_hi:[1,1,1]")
def gelu16(x, cs, g, u, out=None):
    if out is None: out = x
    center(x, cs, g)
    for e in range(0, 16, 2): a(f"v_pk_mul_f32 {vr(u+e,2)}, {vr(x+e,2)}, {vr(x+e,2)}")
    for e in range(0, 16, 2): a(f"v_pk_fma_f32 {vr(u+e,2)}, {vr(u+e,2)}, {vr(g+2,2)}, {vr(g+2,2)} op_sel:[0,0,1] op_sel_hi:[1,0,1]")
    for e in range(0, 16, 2): a(f"v_pk_mul_f32 {vr(u+e,2)}, {vr(u+e,2)}, {vr(x+e,2)}")
    for e in range(16): a(f"v_exp_f32 {vr(u+e)}, {vr(u+e)}")
    for e in range(0, 16, 2): a(f"v_pk_fma_f32 {vr(u+e,2)}, {vr(u+e,2)}, {vr(g,2)}, {vr(g,2)} op_sel_hi:[1,0,0]")
    for e in range(16): a(f"v_rcp_f32 {vr(u+e)}, {vr(u+e)}")
    for e in range(0, 16, 2): a(f"v_pk_mul_f32 {vr(out+e,2)}, {vr(x+e,2)}, {vr(u+e,2)}")
def build():
    global st, vt, vl, s_w, s_mi, s_nj, s_n7, s_c8, s_lw, s_to, s_m, sF, s_tm, v_stamp
    global sT, sAcc, s_pv, s_one, s_ret
    global Lend
    kernel_begin(a, KNAME)
    Lend, LA, LW, LX = lab("end"), lab("ldA"), lab("ldW"), lab("aux")
    a(f"s_cmp_ge_u32 s2, 256")
    a(f"s_cbranch_scc1 {Lend}")
    pb = S.alloc(24, 4)
    a(f"s_load_dwordx16 {sr(pb,16)}, s[0:1], 0")
    a(f"s_load_dwordx8 {sr(pb+16,8)}, s[0:1], 64")
    for i, n in enumerate(["x","wqkv","wphi","wo","bx","w_in","w_sp","b_sp","w_out","out","dbg","ws"]): P[n] = pb+2*i
    st = [S.alloc() for _ in range(4)]
    s_w, s_mi, s_nj, s_n7, s_c8, s_lw, s_to = [S.alloc() for _ in range(7)]
    s_one = S.alloc(); s_pv = S.alloc(2, 2); s_ret = S.alloc(2, 2); s_m = S.alloc(2, 2); s_tm = S.alloc(2, 2); sF = S.alloc(4, 4); sT = S.alloc(4, 4); sAcc = S.alloc(4, 4)
    vl = V.alloc(); vt = [V.alloc() for _ in range(5)]; v_stamp = V.alloc()
    a(f"""v_lshrrev_b32 {vr(vt[0])}, 6, v0
          v_and_b32 {vr(vl)}, 63, v0
          v_readfirstlane_b32 {sr(s_w)}, {vr(vt[0])}
          s_bfe_u32 {sr(s_c8)}, s2, 0x30003
          s_lshr_b32 {sr(st[0])}, s2, 6
          s_bfe_u32 {sr(st[1])}, s2, 0x20001
          s_lshl2_add_u32 {sr(s_mi)}, {sr(st[1])}, {sr(st[0])}
          s_and_b32 {sr(st[0])}, s2, 1
          s_lshl3_add_u32 {sr(s_nj)}, {sr(st[0])}, {sr(s_c8)}
          s_sub_u32 {sr(s_n7)}, {sr(s_nj)}, {sr(st[0])}
          s_xor_b32 {sr(s_nj)}, {sr(s_nj)}, {4 if OPT.get('remap', 1) else 0}
          s_mov_b32 {sr(s_to)}, 100000
          s_mov_b32 {sr(s_one)}, 1
          s_and_b32 {sr(s_lw)}, {sr(s_w)}, 1""")
    if HOOK: HOOK()
    if OPT["stamp"]: a(f"v_mov_b32 {vr(v_stamp)}, 0")
    stamp(0)
    LC = lab("cmp")
    a(f"""s_cmp_lt_u32 {sr(s_w)}, 4
          s_cbranch_scc1 {LC}
          s_setprio {OPT.get('lprio', 2)}
          s_cmp_eq_u32 {sr(s_w)}, 7
          s_cbranch_scc1 {LX}
          s_cmp_lt_u32 {sr(s_w)}, 6
          s_cbranch_scc1 {LA}""")
    vbase, sbase = V.n, S.n
    main = a.L; late = []
    global split
    def split():
        L = lab("cont"); a(f"s_branch {L}"); a.L = late; a.L += ["@EPOCH0", "@PAD"]; a(f"{L}:")
    for lb, role in ((LW, loaderW), (LA, loaderA), (LX, aux), (LC, compute)):
        V.n, S.n = vbase, sbase
        a.L = main
        a(f"{lb}:"); role(); a("s_endpgm")
    a.L = late
    helper_code()
    a.L = main + late
    a(f"{Lend}:")
    a("s_endpgm")
    a.L = hazard.fix(a.L)
    import layout
    a.L, pads = layout.run(a.L, s_ret, align=OPT.get("al8", 1), pages=OPT.get("pages", 1))
    for e in range(2):
        assert len(pads[e]) <= 12, len(pads[e])
        for k in range(12):
            i = a.L.index(f"    s_call_b64 {sr(s_ret,2)}, .PAD{e}_{k}")
            a.L[i] = f"    s_call_b64 {sr(s_ret,2)}, {pads[e][k]}" if k < len(pads[e]) and OPT.get("warm", 1) else "    s_nop 0"
    print("pads", pads, file=sys.stderr)
    kernel_desc(a, KNAME, 256, 256, nsgpr=102)
    ref = open(f"cdna_kernels/{NAME}.s.ref").read().split("\n")
    head = [l for l in ref if l.startswith(";") and "@launch" not in l and "Override launch" not in l and "grid=ceil" not in l]
    kw = f"kernel={KNAME} " if OPT.get("list") else ""
    return "\n".join(head) + f"\n; @launch {kw}grid=(256,1,1) block=(512,1,1) lds={LDS_BYTES}\n" + '.amdgcn_target "amdgcn-amd-amdhsa--gfx950"\n' + a.text()

def common_srds():
    srd("ws", WS["FLG"], 11*32768, d=sF); srd("ws", WS["ACC"], 86016, d=sAcc)
def helper_stream(ptr, total, ld, col0, lpr, rows, first=None, skip=0):
    if not OPT["prefetch"]: return
    lp2 = 16 if lpr <= 16 else 32
    sh = lp2.bit_length()-1; rpi = 64//lp2
    srd(ptr, 0, total, d=sT)
    a(f"s_and_b32 {sr(st[1])}, s2, 7")
    a(f"s_lshr_b32 {sr(st[0])}, s2, 6")
    a(f"s_lshl3_add_u32 {sr(st[0])}, {sr(st[0])}, {sr(st[1])}")
    a(f"s_lshl3_add_u32 {sr(st[0])}, {sr(st[0])}, {sr(s_w)}")
    a(f"s_mul_i32 {sr(st[0])}, {sr(st[0])}, {rows*ld}")
    if col0: a(f"s_add_u32 {sr(st[0])}, {sr(st[0])}, {col0}")
    a(f"v_lshrrev_b32 {vr(vt[2])}, {sh}, {vr(vl)}")
    a(f"v_mul_u32_u24 {vr(vt[2])}, {ld}, {vr(vt[2])}")
    a(f"v_and_b32 {vr(vt[3])}, {lp2-1}, {vr(vl)}")
    if lpr != lp2: a(f"v_min_u32 {vr(vt[3])}, {lpr-1}, {vr(vt[3])}")
    a(f"v_lshl_add_u32 {vr(vt[2])}, {vr(vt[3])}, 7, {vr(vt[2])}")
    n = first or -(-rows//rpi)
    for i in range(n):
        if i >= skip:
            if OPT.get("hgap"):
                a("s_waitcnt vmcnt(0)"); a(f"s_sleep {OPT['hgap']}")
            a(f"buffer_load_dword {vr(vt[1])}, {vr(vt[2])}, {sr(sT,4)}, {sr(st[0])} offen{' nt' if OPT.get('hnt') else ''}")
        if i < n-1: a(f"s_add_u32 {sr(st[0])}, {sr(st[0])}, {rpi*ld}")
HRET = {}
L_HELP = ".helper_job"
def helper_code():
    if not HRET: return
    buf, ac, u, va, vb, vc = 48, 112, 120, 122, 123, 124
    hid, cnt = 96, 97
    a.L.append("@PAD")
    a(f"{L_HELP}:")
    a(f"""s_and_b32 {sr(st[1])}, s2, 7
          s_lshr_b32 {sr(st[0])}, s2, 6
          s_lshl3_add_u32 {sr(hid)}, {sr(st[0])}, {sr(st[1])}
""")
    srd("w_in", 0, 1024*7168, d=sT)
    a(f"""s_lshr_b32 {sr(st[0])}, {sr(hid)}, 2
          s_lshl3_add_u32 {sr(st[0])}, {sr(st[0])}, {sr(s_w)}
          s_mul_i32 {sr(st[0])}, {sr(st[0])}, {16*7168}
          s_and_b32 {sr(st[1])}, {sr(hid)}, 3
          s_mul_i32 {sr(st[2])}, {sr(st[1])}, 896
          s_add_u32 {sr(st[0])}, {sr(st[0])}, {sr(st[2])}
          v_lshl_add_u32 {vr(va)}, {vr(vl)}, 4, {sr(st[0])}
          v_mov_b32 {vr(vb)}, 0x7ffffff0
          v_cmp_gt_u32 vcc, 56, {vr(vl)}
          v_cndmask_b32 {vr(va)}, {vr(vb)}, {vr(va)}, vcc
          v_lshl_add_u32 {vr(vc)}, {sr(s_w)}, 6, {vr(vl)}
          v_lshlrev_b32 {vr(vb)}, 5, {vr(vc)}
          s_waitcnt lgkmcnt(0)
          s_barrier""")
    def slow_cols(col0):
        a(f"""s_and_b32 {sr(st[0])}, s2, 1
              s_mul_i32 {sr(st[0])}, {sr(st[0])}, 1792
              s_add_u32 {sr(st[0])}, {sr(st[0])}, {col0}
              s_add_u32 {sr(st[1])}, {sr(st[0])}, {sr(sT)}
              s_lshr_b32 {sr(st[1])}, {sr(st[1])}, 7
              s_sub_u32 {sr(st[1])}, 3, {sr(st[1])}
              s_and_b32 {sr(st[1])}, {sr(st[1])}, 7
              s_cmp_lt_u32 {sr(st[1])}, 6
              s_cselect_b32 {sr(st[2])}, 1024, 0
              s_lshl_b32 {sr(st[1])}, {sr(st[1])}, 7
              s_add_u32 {sr(st[0])}, {sr(st[0])}, {sr(st[1])}
              s_lshr_b32 {sr(st[1])}, s2, 6
              s_lshl3_add_u32 {sr(st[1])}, {sr(st[1])}, {sr(s_w)}
              v_and_b32 {vr(vt[2])}, 31, {vr(vl)}
              v_lshl_add_u32 {vr(vt[2])}, {vr(vt[2])}, 5, {sr(st[1])}
              v_mul_u32_u24 {vr(vt[2])}, 7168, {vr(vt[2])}
              v_lshrrev_b32 {vr(vt[3])}, 5, {vr(vl)}
              v_mad_u32_u24 {vr(vt[2])}, {vr(vt[3])}, {sr(st[2])}, {vr(vt[2])}
              buffer_load_dword {vr(vt[1])}, {vr(vt[2])}, {sr(sT,4)}, {sr(st[0])} offen""")
    if OPT.get("hc3", 1) & 1: slow_cols(3584)
    for half, kind in ((0, F_C4),):
        a(f"s_mov_b32 {sr(st[0])}, {3584*half}")
        for r in range(16):
            a(f"buffer_load_dwordx4 {vr(buf+4*r,4)}, {vr(va)}, {sr(sT,4)}, {sr(st[0])} offen")
            if r < 15: a(f"s_add_u32 {sr(st[0])}, {sr(st[0])}, 7168")
        for r in range(16):
            if r % 4 == 0: a(f"s_waitcnt vmcnt({12-r})")
            for e in range(4):
                d = ac+2*e if r == 0 else u
                a(f"v_lshlrev_b32 {vr(d)}, 16, {vr(buf+4*r+e)}")
                a(f"v_and_b32 {vr(d+1)}, 0xffff0000, {vr(buf+4*r+e)}")
                if r: a(f"v_pk_add_f32 {vr(ac+2*e,2)}, {vr(ac+2*e,2)}, {vr(u,2)}")
        for h in range(2): a(f"ds_write_b128 {vr(vb)}, {vr(ac+4*h,4)} offset:{16*h}")
        if OPT.get("hc3", 1) & 2: slow_cols(0)
        if OPT.get("hov", 1): helper_stream("w_sp", 2048*4096, 4096, 0, 32, 8, first=OPT.get("hfirst", 1))
        a(f"""v_lshlrev_b32 {vr(u+1)}, 2, {vr(vc)}
              s_and_b32 {sr(st[1])}, {sr(hid)}, 3
              s_mul_i32 {sr(st[1])}, {sr(st[1])}, 1792
              s_add_u32 {sr(st[1])}, {sr(st[1])}, {A_CIN+7168*half}
              s_waitcnt lgkmcnt(0)
              s_barrier""")
        for w in range(8): a(f"ds_read_b32 {vr(buf+w)}, {vr(u+1)} offset:{2048*w}")
        a("s_waitcnt lgkmcnt(0)")
        for w in range(1, 8): a(f"v_add_f32 {vr(buf)}, {vr(buf)}, {vr(buf+w)}")
        a(f"v_mov_b32 {vr(u)}, {vr(buf)}")
        stamp(35)
        L = lab("h7")
        a(f"s_cmp_eq_u32 {sr(s_w)}, 7"); a(f"s_cbranch_scc1 {L}")
        a("s_waitcnt lgkmcnt(0)")
        a(f"buffer_atomic_add_f32 {vr(u)}, {vr(u+1)}, {sr(sAcc,4)}, {sr(st[1])} offen sc1")
        a(f"{L}:")
        a("s_waitcnt vmcnt(0) lgkmcnt(0)")
        a("s_barrier")
        L = lab("h4")
        a(f"s_cmp_lg_u32 {sr(s_w)}, 0"); a(f"s_cbranch_scc1 {L}")
        a(f"v_lshrrev_b32 {vr(u)}, 2, {vr(vl)}"); a(f"v_and_b32 {vr(u+1)}, 3, {vr(vl)}")
        a(f"v_lshlrev_b32 {vr(u)}, 11, {vr(u)}"); a(f"v_lshl_add_u32 {vr(u)}, {vr(u+1)}, 7, {vr(u)}")
        a(f"v_mov_b32 {vr(u+1)}, 1")
        a(f"s_mov_b32 {sr(st[1])}, {kind*32768}")
        a(f"buffer_atomic_add {vr(u+1)}, {vr(u)}, {sr(sF,4)}, {sr(st[1])} offen sc1")
        a(f"{L}:")
    stamp(30)
    if OPT.get("hfull"):
        srd("w_sp", 0, 2048*4096, d=sT)
        L = lab("hf")
        a(f"""s_lshl3_add_u32 {sr(st[0])}, {sr(hid)}, {sr(s_w)}
              s_lshl_b32 {sr(st[0])}, {sr(st[0])}, 15
              v_lshlrev_b32 {vr(vt[2])}, 4, {vr(vl)}
              s_mov_b32 {sr(cnt)}, 8
              {L}:""")
        for j in range(4): a(f"buffer_load_dwordx4 {vr(buf+4*j,4)}, {vr(vt[2])}, {sr(sT,4)}, {sr(st[0])} offen offset:{1024*j}")
        a(f"""s_add_u32 {sr(st[0])}, {sr(st[0])}, 4096
              s_waitcnt vmcnt({OPT['hfull']-1})
              s_sub_u32 {sr(cnt)}, {sr(cnt)}, 1
              s_cmp_lg_u32 {sr(cnt)}, 0
              s_cbranch_scc1 {L}""")
    else: helper_stream("w_sp", 2048*4096, 4096, 0, 32, 8, skip=OPT.get("hfirst", 1) if OPT.get("hov", 1) else 0)
    if OPT["stamp"]: a("s_waitcnt vmcnt(0)")
    stamp(31)
    if OPT.get("hwo", 0): helper_stream("w_out", 1792*2048, 2048, 0, 16, 7)
    a("s_waitcnt vmcnt(0)")
    stamp(32)
    if OPT.get("hsleep", 1):
        L = lab("hs")
        a(f"s_cmp_lg_u32 {sr(s_w)}, 4"); a(f"s_cbranch_scc1 {L}")
        poll(F_B5, s_c8, s_mi, 16, lambda: a("s_sleep 32"))
        a(f"{L}:")
    a("s_barrier")
    if OPT.get("hl2", 3) & 1:
        a(f"s_lshl_b32 {sr(st[0])}, {sr(s_mi)}, 19")
        srd("w_sp", 0, 128*4096, soff=st[0], d=sT)
        a(f"""v_lshrrev_b32 {vr(vt[2])}, 2, {vr(vl)}
              v_lshl_add_u32 {vr(vt[2])}, {sr(s_w)}, 4, {vr(vt[2])}
              v_lshlrev_b32 {vr(vt[2])}, 12, {vr(vt[2])}
              v_and_b32 {vr(vt[3])}, 3, {vr(vl)}
              v_lshl_add_u32 {vr(vt[2])}, {vr(vt[3])}, 7, {vr(vt[2])}
              s_and_b32 {sr(st[0])}, {sr(s_mi)}, 12
              s_lshl_b32 {sr(st[0])}, {sr(st[0])}, 8""")
        for i in range(OPT.get('hn', 8)):
            a(f"buffer_load_dword {vr(vt[1])}, {vr(vt[2])}, {sr(sT,4)}, {sr(st[0])} offen")
            a(f"s_add_u32 {sr(st[0])}, {sr(st[0])}, 512"); a(f"s_and_b32 {sr(st[0])}, {sr(st[0])}, 4095")
            if OPT.get("hpace", 1): a("s_waitcnt vmcnt(0)")
        stamp(33)
    if OPT.get("hl2", 3) & 4:
        a(f"s_lshl_b32 {sr(st[0])}, {sr(s_mi)}, 19")
        srd("w_sp", 0, 128*4096, soff=st[0], d=sT)
        a(f"""v_lshrrev_b32 {vr(vt[2])}, 2, {vr(vl)}
              v_lshl_add_u32 {vr(vt[2])}, {sr(s_w)}, 4, {vr(vt[2])}
              v_lshlrev_b32 {vr(vt[2])}, 12, {vr(vt[2])}
              s_and_b32 {sr(st[0])}, {sr(s_mi)}, 12
              s_add_u32 {sr(st[1])}, {sr(s_mi)}, 1
              s_and_b32 {sr(st[1])}, {sr(st[1])}, 3
              s_lshl_b32 {sr(st[1])}, {sr(st[1])}, {OPT.get('grpsp', 0)}
              s_lshl1_add_u32 {sr(st[0])}, {sr(st[0])}, {sr(st[1])}
              v_and_b32 {vr(vt[3])}, {2 if OPT.get('grpsp') else 3}, {vr(vl)}
              v_lshl_add_u32 {vr(vt[3])}, {vr(vt[3])}, 2, {sr(st[0])}
              v_and_b32 {vr(vt[4])}, {1 if OPT.get('grpsp') else 0}, {vr(vl)}
              v_add_u32 {vr(vt[3])}, {vr(vt[3])}, {vr(vt[4])}
              v_and_b32 {vr(vt[3])}, 31, {vr(vt[3])}
              v_lshl_add_u32 {vr(vt[4])}, {vr(vt[3])}, 7, {vr(vt[2])}
              buffer_load_dword {vr(vt[1])}, {vr(vt[4])}, {sr(sT,4)}, 0 offen
              v_xor_b32 {vr(vt[4])}, 2048, {vr(vt[4])}""")
    if OPT.get("hmid"):
        poll(F_B4, s_mi, s_nj, 15, lambda: a("s_sleep 16"))
    if OPT.get("hl2", 3) & 4: a(f"buffer_load_dword {vr(vt[1])}, {vr(vt[4])}, {sr(sT,4)}, 0 offen")
    if OPT.get("hl2", 3) & 2:
        srd("w_out", 0, 1792*2048, d=sT)
        a(f"""s_lshr_b32 {sr(st[0])}, s2, 6
              s_lshl3_add_u32 {sr(st[0])}, {sr(st[0])}, {sr(s_w)}
              s_lshl_b32 {sr(st[0])}, {sr(st[0])}, 14
              s_and_b32 {sr(st[1])}, s2, 1
              s_lshl_b32 {sr(st[1])}, {sr(st[1])}, 10
              s_add_u32 {sr(st[0])}, {sr(st[0])}, {sr(st[1])}
              v_lshrrev_b32 {vr(vt[2])}, 3, {vr(vl)}
              v_lshlrev_b32 {vr(vt[2])}, 11, {vr(vt[2])}
              v_and_b32 {vr(vt[3])}, 7, {vr(vl)}
              v_lshl_add_u32 {vr(vt[2])}, {vr(vt[3])}, 7, {vr(vt[2])}""")
        a(f"v_add_u32 {vr(vt[2])}, {sr(st[0])}, {vr(vt[2])}")
        a(f"s_and_b32 {sr(st[0])}, s2, 6")
        a(f"s_lshl_b32 {sr(st[0])}, {sr(st[0])}, 19")
        ctr_off(st[2], s_mi, s_nj); Lq = lab("hq")
        if OPT.get("hfull"):
            a(f"v_readfirstlane_b32 {sr(st[1])}, {vr(vt[2])}")
            a(f"v_lshl_add_u32 {vr(vt[2])}, {vr(vl)}, 4, {sr(st[1])}")
            for j in range(1, 4): a(f"v_add_u32 {vr(va+j-1)}, {4096*j}, {vr(vt[2])}")
        for i in range(7):
            if OPT.get("hfull"):
                for j in range(8):
                    a(f"buffer_load_dwordx4 {vr(buf+4*j,4)}, {vr(vt[2] if j < 2 else va+j//2-1)}, {sr(sT,4)}, {sr(st[0])} offen offset:{2048*(j&1)}")
                    if j == 3: a(f"s_waitcnt vmcnt({OPT['hfull']-1})")
            else: a(f"buffer_load_dword {vr(vt[1])}, {vr(vt[2])}, {sr(sT,4)}, {sr(st[0])} offen")
            a(f"s_add_u32 {sr(st[0])}, {sr(st[0])}, {256*2048}")
            a(f"s_cmp_eq_u32 {sr(st[0])}, {7*256*2048}"); a(f"s_cselect_b32 {sr(st[0])}, 0, {sr(st[0])}")
            a("s_waitcnt vmcnt(0)")
            if 2 <= i < 6:
                a(f"s_load_dword {sr(s_pv)}, {sr(sF,2)}, {sr(st[2])} offset:{F_B6*32768} glc"); a("s_waitcnt lgkmcnt(0)")
                a(f"s_cmp_lg_u32 {sr(s_pv)}, 0"); a(f"s_cbranch_scc1 {Lq}")
        a(f"{Lq}:")
        a("s_waitcnt vmcnt(0)")
        stamp(34)
    a("s_waitcnt vmcnt(0)")
    a(f"s_cmp_lt_u32 {sr(s_w)}, 4"); a(f"s_cbranch_scc1 {HRET['C']}")
    a(f"s_cmp_lt_u32 {sr(s_w)}, 6"); a(f"s_cbranch_scc1 {HRET['A']}")
    a(f"s_cmp_eq_u32 {sr(s_w)}, 6"); a(f"s_cbranch_scc1 {HRET['W']}")
    a(f"s_branch {HRET['X']}")
def helper_branch():
    a.L.append("@EPOCH1")
    a(f"s_cmp_eq_u32 {sr(s_c8)}, 7"); a(f"s_cbranch_scc1 {L_HELP}")
def helper_ret(role, extra=None):
    HRET[role] = lab("hret")
    if extra:
        Lj = lab("hj"); a(f"s_branch {Lj}"); a(f"{HRET[role]}:"); extra(); a(f"{Lj}:")
    else: a(f"{HRET[role]}:")

def loaderA():
    tb_init(1); L = Loader('A')
    bg = lambda ph: (lambda: L.begin(ph))
    pA = OPT.get("pA", 2)
    L.setup(P1K, 0); L.begin(P1K); L.prefill(P1K, OPT["pK"]); stamp(1)
    P1Q.ld['A'] = 0; P4.ld['A'] = 2
    L.run(P1K, OPT["pK"], maxper=OPT["mK"], nxt=lambda: (split(), L.begin(P1Q))); stamp(2)
    common_srds(); L.setup(P2, 1)
    L.run(P1Q, 4, nxt=bg(P2)); stamp(3)
    BAR(); BAR()
    L.setup(P3, 2); L.setup(P5, 3)
    poll(F_B2, s_mi, s_nj, 16); stamp(4)
    L.prefill(P2, pA); L.run(P2, pA, nxt=bg(P3)); stamp(5)
    BAR()
    helper_branch()
    L.setup(P6, 0)
    poll(F_B3, s_mi, s_nj, 16); stamp(6)
    L.prefill(P3, pA); L.run(P3, pA, nxt=bg(P4)); stamp(7)
    L.run(P4, 4, nxt=bg(P5))
    L.prefill(P5, OPT.get("pA5", 3)); L.run(P5, OPT.get("pA5", 3), nxt=bg(P6)); stamp(8)
    BAR()
    helper_ret('A', lambda: (L.setup(P6, 0), L.begin(P6)))
    poll(F_B6, s_mi, s_nj, 14, lazy=8); stamp(9)
    L.prefill(P6, pA); L.run(P6, pA)
    stamp_out(); tb_out()

def loaderW():
    tb_init(2); tb_reset(); L = Loader('W')
    bg = lambda ph: (lambda: L.begin(ph))
    L.setup(P1K, 0); L.begin(P1K); L.prefill(P1K, OPT["pK"]); stamp(1)
    if OPT.get("qearly", 0): L.setup(P1Q, 1)
    L.run(P1K, OPT["pK"], maxper=OPT["mK"], cap=4, nxt=lambda: (split(), None if OPT.get("qearly", 0) else L.setup(P1Q, 1), L.begin(P1Q))); stamp(2)
    L.prefill(P1Q, OPT["preQ"]); stamp(3)
    common_srds(); L.setup(P2, 0)
    L.run(P1Q, OPT["preQ"], maxper=1, nxt=bg(P2))
    BAR()
    L.setup(P3, 1); L.setup(P4, 2)
    BAR()
    L.prefill(P2, OPT["pW2"]); stamp(4); L.run(P2, OPT["pW2"], maxper=1, nxt=bg(P3))
    L.setup(P5, 3)
    BAR()
    helper_branch()
    tb_bank(1); tb_reset()
    L.prefill(P3, OPT["pW3"]); stamp(5); L.run(P3, OPT["pW3"], maxper=1, nxt=bg(P4))
    L.prefill(P4, OPT["pW4"]); stamp(6); L.run(P4, OPT["pW4"], maxper=1, nxt=lambda: (L.begin(P5), ctr_off(st[0], s_n7, s_mi),
          a(f"s_load_dword {sr(s_pv)}, {sr(sF,2)}, {sr(st[0])} offset:{F_B5*32768} glc")))
    Lk = lab("b5")
    a("s_waitcnt lgkmcnt(0)"); a(f"s_cmp_ge_u32 {sr(s_pv)}, 16"); a(f"s_cbranch_scc1 {Lk}")
    poll(F_B5, s_n7, s_mi, 16)
    a(f"{Lk}:"); stamp(7); tb_bank(2); tb_reset()
    L.prefill(P5, OPT.get("pW5", 3)); L.run(P5, OPT.get("pW5", 3), maxper=1, cap=4)
    Lj = lab("w6")
    L.setup(P6, 0); L.begin(P6)
    BAR()
    helper_ret('W', lambda: (L.setup(P6, 0), L.begin(P6)))
    L.prefill(P6, OPT["pW6"]); stamp(8); L.run(P6, OPT["pW6"], maxper=1)
    stamp_out(); tb_out()

def aux():
    s_left = S.alloc(); sG = S.alloc(4, 4); sH = S.alloc(4, 4)
    buf = V.alloc(128, 4); ac = V.alloc(16, 4); vp = V.alloc(); vk = V.alloc(2)
    def bar(n=1):
        for _ in range(n):
            L = lab("nb")
            a(f"s_cmp_eq_u32 {sr(s_left)}, 0")
            a(f"s_cbranch_scc1 {L}")
            BAR()
            a(f"s_sub_u32 {sr(s_left)}, {sr(s_left)}, 1")
            a(f"{L}:")
    bar2 = lambda: bar(2)
    def until(n):
        Lw = lab("w4"); Lx = lab("w4d")
        a(f"{Lw}:"); a(f"s_cmp_le_u32 {sr(s_left)}, {n}"); a(f"s_cbranch_scc1 {Lx}"); bar(1); a(f"s_branch {Lw}"); a(f"{Lx}:")
    s_cb = S.alloc(2, 2); s_cd = S.alloc(2, 2)
    def touch(label):
        if not OPT.get("touch", 1): return
        a(f"s_mov_b32 {sr(st[3])}, {label}-{KNAME}")
        a(f"s_and_b32 {sr(st[3])}, {sr(st[3])}, 0xfff80")
        for j in range(4): a(f"s_load_dwordx2 {sr(s_cd,2)}, {sr(s_cb,2)}, {sr(st[3])} offset:{128*j+60}")
    def budget(n): a(f"s_mov_b32 {sr(s_left)}, {n}")
    def drain():
        L = lab("dr"); D = lab("dd")
        a(f"{L}:")
        a(f"s_cmp_eq_u32 {sr(s_left)}, 0")
        a(f"s_cbranch_scc1 {D}")
        BAR()
        a(f"s_sub_u32 {sr(s_left)}, {sr(s_left)}, 1")
        a(f"s_branch {L}")
        a(f"{D}:")
    W0 = "s_waitcnt vmcnt(0)"; L0 = "s_waitcnt lgkmcnt(0)"
    def cs_add(base, grp):
        a(f"v_lshlrev_b32 {vr(vt[2])}, 2, {vr(vl)}")
        a(f"v_add_u32 {vr(vt[3])}, {M_CP}, {vr(vt[2])}")
        a(f"ds_read2_b32 {vr(ac,2)}, {vr(vt[3])} offset0:0 offset1:64")
        a(f"s_lshl_b32 {sr(st[0])}, {sr(grp)}, 9")
        a(f"s_add_u32 {sr(st[0])}, {sr(st[0])}, {base}")
        a(L0)
        for h in range(2): a(f"buffer_atomic_add_f32 {vr(ac+h)}, {vr(vt[2])}, {sr(sAcc,4)}, {sr(st[0])} offen offset:{256*h} sc1")
    def cs_get(base, grp, dst):
        a(f"v_lshlrev_b32 {vr(vt[2])}, 2, {vr(vl)}")
        a(f"s_lshl_b32 {sr(st[0])}, {sr(grp)}, 9")
        a(f"s_add_u32 {sr(st[0])}, {sr(st[0])}, {base}")
        a(f"s_mov_b32 m0, {dst}")
        for h in range(2): a(f"buffer_load_dword {vr(vt[2])}, {sr(sAcc,4)}, {sr(st[0])} offen offset:{256*h} sc1 lds")
    def stats_issue(base):
        a(f"v_lshlrev_b32 {vr(vt[2])}, 3, {vr(vl)}")
        a(f"s_lshl_b32 {sr(st[0])}, {sr(s_mi)}, 10")
        if base: a(f"s_add_u32 {sr(st[0])}, {sr(st[0])}, {base}")
        for h in range(2): a(f"buffer_load_dwordx2 {vr(buf+2*h,2)}, {vr(vt[2])}, {sr(sAcc,4)}, {sr(st[0])} offen offset:{512*h} sc1")
    def stats_fin_x():
        for r in range(2):
            var_eps(buf+r, buf+2+r, 1024); a(f"v_rsq_f32 {vr(ac+r)}, {vr(buf+2+r)}")
        a(f"v_lshlrev_b32 {vr(vt[2])}, 3, {vr(vl)}")
        a(f"v_add_u32 {vr(vt[2])}, {M_RS}, {vr(vt[2])}")
        a(f"ds_write_b64 {vr(vt[2])}, {vr(ac,2)}")
        a(f"ds_write_b64 {vr(vt[2])}, {vr(buf,2)} offset:512")
    def stats_calc_h():
        for r in range(2):
            g = ac+4*r
            var_eps(buf+r, buf+2+r, 1024)
            a(f"v_rsq_f32 {vr(g+3)}, {vr(buf+2+r)}")
            a(f"v_mov_b32 {vr(g+1)}, {vr(buf+r)}")
            a(f"v_mul_f32 {vr(g)}, {vr(buf+2+r)}, {vr(g+3)}")
            a(f"v_mul_f32 {vr(g+2)}, {vr(g+3)}, {vr(g+3)}")
            a(f"v_mul_f32 {vr(g+3)}, {f32(GC0)}, {vr(g+3)}")
            a(f"v_mul_f32 {vr(g+2)}, {f32(0.044715)}, {vr(g+2)}")
            a(f"v_mul_f32 {vr(g+2)}, {vr(g+2)}, {vr(g+3)}")
    def stats_write_h():
        a(f"v_lshlrev_b32 {vr(vt[2])}, 5, {vr(vl)}")
        a(f"v_add_u32 {vr(vt[2])}, {M_G}, {vr(vt[2])}")
        for r in range(2): a(f"ds_write_b128 {vr(vt[2])}, {vr(ac+4*r,4)} offset:{16*r}")
    def prefetch(ptr, total, ld, col0, xs, lpr, part):
        if not OPT["prefetch"]: return
        lp2 = 8 if lpr <= 8 else 16
        sh = lp2.bit_length()-1; rpi = 64//lp2
        srd(ptr, 0, total, d=sG)
        a(f"s_lshr_b32 {sr(st[0])}, s2, 1")
        a(f"s_mul_i32 {sr(st[0])}, {sr(st[0])}, {8*ld}")
        a(f"s_and_b32 {sr(st[1])}, s2, 1")
        a(f"s_mul_i32 {sr(st[1])}, {sr(st[1])}, {xs}")
        a(f"s_add_u32 {sr(st[0])}, {sr(st[0])}, {sr(st[1])}")
        if col0 + part*rpi*ld: a(f"s_add_u32 {sr(st[0])}, {sr(st[0])}, {col0 + part*rpi*ld}")
        a(f"v_lshrrev_b32 {vr(vt[2])}, {sh}, {vr(vl)}")
        a(f"v_mul_u32_u24 {vr(vt[2])}, {ld}, {vr(vt[2])}")
        a(f"v_and_b32 {vr(vt[3])}, {lp2-1}, {vr(vl)}")
        if lpr != lp2: a(f"v_min_u32 {vr(vt[3])}, {lpr-1}, {vr(vt[3])}")
        a(f"v_lshl_add_u32 {vr(vt[2])}, {vr(vt[3])}, 7, {vr(vt[2])}")
        a(f"buffer_load_dword {vr(vp)}, {vr(vt[2])}, {sr(sG,4)}, {sr(st[0])} offen")
    if OPT.get("codepf", 1):
        a(f"s_getpc_b64 {sr(sG,2)}")
        Lc = lab("pc"); a(f"{Lc}:")
        a(f"s_sub_u32 {sr(sG)}, {sr(sG)}, {Lc}-{KNAME}")
        a(f"s_subb_u32 {sr(sG+1)}, {sr(sG+1)}, 0")
        a(f"s_lshr_b32 {sr(st[0])}, s2, 3")
        a(f"s_lshl_b32 {sr(st[0])}, {sr(st[0])}, 8")
        a(f"s_add_u32 {sr(s_cb)}, {sr(sG)}, {sr(st[0])}")
        a(f"s_addc_u32 {sr(s_cb+1)}, {sr(sG+1)}, 0")
        a(f"s_mov_b32 {sr(sG+2)}, {Lend}-{KNAME}")
        a(f"s_mov_b32 {sr(sG+3)}, 0x20000")
        a(f"s_lshr_b32 {sr(st[0])}, s2, 3")
        a(f"s_lshl_b32 {sr(st[0])}, {sr(st[0])}, 11")
        a(f"v_lshl_add_u32 {vr(vt[2])}, {vr(vl)}, 5, {sr(st[0])}")
        a(f"buffer_load_dword {vr(vp)}, {vr(vt[2])}, {sr(sG,4)}, 0 offen")
    a(f"v_lshlrev_b32 {vr(vk)}, 2, {vr(vl)}")
    for i in range(4): a(f"v_mov_b32 {vr(ac+i)}, 0")
    a(f"v_add_u32 {vr(vt[2])}, {M_CNT}, {vr(vk)}")
    a(f"ds_write_b32 {vr(vt[2])}, {vr(ac)}")
    a(f"""s_mul_i32 {sr(st[0])}, s2, 22
          v_add_u32 {vr(vt[0])}, {sr(st[0])}, {vr(vl)}
          v_and_b32 {vr(vt[1])}, 3, {vr(vt[0])}
          v_lshrrev_b32 {vr(vt[0])}, 2, {vr(vt[0])}
          v_lshlrev_b32 {vr(vt[0])}, 11, {vr(vt[0])}
          v_lshl_add_u32 {vr(vt[0])}, {vr(vt[1])}, 7, {vr(vt[0])}
          v_lshlrev_b32 {vr(vt[3])}, 4, {vr(vl)}
          s_mul_i32 {sr(st[1])}, s2, 2688""")
    a(L0); common_srds()
    Lz = lab("nz")
    a("s_cmp_ge_u32 s2, 32"); a(f"s_cbranch_scc1 {Lz}")
    a("s_mov_b64 exec, 0x3fffff")
    a(f"buffer_store_dword {vr(ac)}, {vr(vt[0])}, {sr(sF,4)}, 0 offen sc1")
    a("s_mov_b64 exec, -1")
    for o in (0, 1024, 1664): a(f"buffer_store_dwordx4 {vr(ac,4)}, {vr(vt[3])}, {sr(sAcc,4)}, {sr(st[1])} offen offset:{o} sc1")
    a(f"{Lz}:")
    a(f"s_lshl_b32 {sr(st[0])}, {sr(s_nj)}, 12")
    srd("wphi", 0, 4096, soff=st[0], d=sG)
    a(f"v_lshlrev_b32 {vr(vt[2])}, 4, {vr(vl)}")
    a(f"s_mov_b32 m0, {M_WPH}")
    for j in range(4): a(f"buffer_load_dwordx4 {vr(vt[2])}, {sr(sG,4)}, 0 offen offset:{1024*j} lds")
    NP = max(special_list(P1K))
    if OPT.get("g0late", 1): BAR()
    Lz = lab("nz")
    a("s_cmp_ge_u32 s2, 32"); a(f"s_cbranch_scc1 {Lz}")
    a(f"s_lshl_b32 {sr(st[0])}, s2, 2"); a(f"s_and_b32 {sr(st[0])}, {sr(st[0])}, 28")
    a("s_waitcnt vmcnt(4)")
    a(f"s_atomic_add {sr(s_one)}, {sr(P['dbg'],2)}, {sr(st[0])} offset:64")
    a(f"{Lz}:")
    if not OPT.get("g0late", 1): BAR()
    split(); budget(NP); bar(3)
    Lp, Ld = lab("g0"), lab("g0d")
    g8 = S.alloc(8, 4)
    a(f"s_load_dwordx8 {sr(g8,8)}, {sr(P['dbg'],2)}, 64")
    bar(2); a(L0)
    for i in range(1, 8): a(f"s_add_u32 {sr(g8)}, {sr(g8)}, {sr(g8+i)}")
    a(f"s_cmp_ge_u32 {sr(g8)}, 32"); a(f"s_cbranch_scc1 {Ld}")
    srd("dbg", 64, 32, d=sH)
    a(f"{Lp}:")
    a(f"buffer_load_dword {vr(vt[1])}, {vr(vk)}, {sr(sH,4)}, 0 offen sc1")
    a(f"s_sub_u32 {sr(s_to)}, {sr(s_to)}, 1")
    a(W0)
    a(f"s_cbranch_scc1 {Ld}")
    a(f"v_cmp_le_u32 vcc, 4, {vr(vt[1])}")
    a("s_cmp_eq_u32 vcc_lo, 0xff")
    a(f"s_cbranch_scc0 {Lp}")
    a(f"{Ld}:")
    a(f"s_max_i32 {sr(s_to)}, {sr(s_to)}, 0")
    stamp(1)
    a(f"s_add_u32 {sr(s_left)}, {sr(s_left)}, {2+OPT.get('kd', 1)}"); drain()
    budget(13-OPT.get('kd', 1)-NP)
    signal(F_X, s_mi); signal(F_CKV, s_nj); stamp(2)
    bar(1); touch(".code_ck")
    bar(2)
    poll(F_X, s_mi, s_nj, 16, bar, second=(F_CKV, s_nj, s_mi))
    until(OPT.get("kt", 2))
    stats_issue(A_XST); cs_get(A_CKV, s_nj, M_CS)
    a(f"s_mul_i32 {sr(st[0])}, {sr(s_mi)}, {64*6144}")
    a(f"s_lshl_b32 {sr(st[1])}, {sr(s_nj)}, 7")
    a(f"s_add_u32 {sr(st[0])}, {sr(st[0])}, {sr(st[1])}")
    srd("wqkv", 0, 63*6144+128, soff=st[0], d=sG)
    q0 = buf+8
    a(f"v_lshrrev_b32 {vr(vt[0])}, 3, {vr(vl)}")
    a(f"v_mul_u32_u24 {vr(vt[0])}, 6144, {vr(vt[0])}")
    a(f"v_and_b32 {vr(vt[1])}, 7, {vr(vl)}")
    a(f"v_lshl_add_u32 {vr(q0)}, {vr(vt[1])}, 4, {vr(vt[0])}")
    for j in range(1, 4): a(f"v_add_u32 {vr(q0+j)}, {j*(8*6144-1024)}, {vr(q0)}")
    drain(); a(W0)
    stats_fin_x(); a(L0); stamp(3)
    QS = W_RING+9*8192
    a(f"s_mov_b32 m0, {QS}")
    a(f"s_mov_b32 {sr(st[0])}, {32*6144}")
    BAR()
    for g in range(2):
        if g: a(f"s_mov_b32 m0, {QS+4096}")
        for j in range(4): a(f"buffer_load_dwordx4 {vr(q0+j)}, {sr(sG,4)}, {sr(st[0]) if g else 0} offen offset:{1024*j} lds")
    ones, fr, cq = buf+12, buf+16, buf+48
    for i in range(4): a(f"v_mov_b32 {vr(ones+i)}, 0x3f803f80")
    a(f"v_lshrrev_b32 {vr(vt[0])}, 2, {vr(vl)}")
    a(f"v_and_b32 {vr(vt[1])}, 3, {vr(vl)}")
    a(f"v_lshlrev_b32 {vr(vt[1])}, 3, {vr(vt[1])}")
    a(f"v_lshl_add_u32 {vr(vt[0])}, {vr(vt[0])}, 7, {vr(vt[1])}")
    a(f"v_add_u32 {vr(vt[0])}, {QS}, {vr(vt[0])}")
    a(W0)
    for t in range(4):
        for h in range(4): a(f"ds_read_b64_tr_b16 {vr(fr+8*t+2*h,2)}, {vr(vt[0])} offset:{h*2048+t*32}")
    a(L0)
    for t in range(4):
        for ks in range(2): a(f"{MF16} {vr(cq+4*t,4)}, {vr(ones,4)}, {vr(fr+8*t+4*ks,4)}, {'0' if ks == 0 else vr(cq+4*t,4)}")
    for t in range(1, 4):
        a(f"v_cmp_le_u32 vcc, {16*t}, {vr(vl)}")
        a(f"v_cndmask_b32 {vr(cq)}, {vr(cq)}, {vr(cq+4*t)}, vcc")
    a(f"s_lshl_b32 {sr(st[0])}, {sr(s_nj)}, 8")
    a(f"s_add_u32 {sr(st[0])}, {sr(st[0])}, {A_CQ}")
    a(f"buffer_atomic_add_f32 {vr(cq)}, {vr(vk)}, {sr(sAcc,4)}, {sr(st[0])} offen sc1")
    if OPT.get("pfo", 0): prefetch("wo", 1024*2048, 2048, 0, 1024, 8, 0)
    budget(OPT["TQ"]+2)
    if OPT.get("pfz"):
        bar(OPT["pfz"]); a(W0)
        prefetch("w_in", 1024*7168, 7168, 3584, 1792, 14, 0); prefetch("w_in", 1024*7168, 7168, 3584, 1792, 14, 1)
        drain()
    else:
        drain(); a(W0)
    signal(F_B1A, s_nj); touch(".code_cq")
    budget(14-OPT["TQ"]); bar(OPT.get("TQw", 2))
    poll(F_B1A, s_nj, s_mi, 16, lambda: bar(OPT.get("TQp", 2))); stamp(4)
    a(f"s_lshl_b32 {sr(st[0])}, {sr(s_nj)}, 8")
    a(f"s_add_u32 {sr(st[0])}, {sr(st[0])}, {A_CQ}")
    a(f"s_mov_b32 m0, {M_CS+512}")
    a(f"buffer_load_dword {vr(vk)}, {sr(sAcc,4)}, {sr(st[0])} offen sc1 lds")
    def zwrite():
        a(f"v_cvt_pk_bf16_f32 {vr(ac)}, {vr(ac)}, {vr(ac+1)}")
        a(f"v_add_u32 {vr(vt[0])}, {M_ZF}, {vr(vk)}")
        a(f"ds_write_b32 {vr(vt[0])}, {vr(ac)}")
    a(f"s_lshl4_add_u32 {sr(st[2])}, {sr(s_nj)}, {sr(s_mi)}")
    a(f"s_lshl_b32 {sr(st[0])}, {sr(st[2])}, 14")
    srd("ws", WS["KVP"], 16384, soff=st[0], d=sG)
    a(f"v_lshlrev_b32 {vr(vt[4])}, 4, {vr(vl)}")
    a(f"v_lshlrev_b32 {vr(vt[0])}, 3, {vr(vl)}")
    a(f"s_lshl_b32 {sr(st[1])}, {sr(s_nj)}, 9")
    a(f"s_add_u32 {sr(st[1])}, {sr(st[1])}, {A_Z}")
    a(f"buffer_load_dwordx2 {vr(ac,2)}, {vr(vt[0])}, {sr(sAcc,4)}, {sr(st[1])} offen sc1")
    a(f"s_mov_b32 {sr(st[0])}, 0")
    for p in range(16):
        a(f"buffer_load_dwordx4 {vr(buf+4*p,4)}, {vr(vt[4])}, {sr(sG,4)}, {sr(st[0])} offen offset:{(p&3)*1024} sc1")
        if p % 4 == 3 and p < 15: a(f"s_add_u32 {sr(st[0])}, {sr(st[0])}, 4096")
        if p % 8 == 7 and OPT.get('rb', 1): bar()
    a(f"s_lshl_b32 {sr(st[0])}, {sr(st[2])}, 9")
    srd("ws", WS["KVF"], 512, soff=st[0], d=sG)
    sm, u2 = buf+64, buf+72
    def sums(lo, hi):
        for p in range(lo, hi):
            for e in range(4):
                d = sm+2*e if p == 0 else u2
                a(f"v_lshlrev_b32 {vr(d)}, 16, {vr(buf+4*p+e)}")
                a(f"v_and_b32 {vr(d+1)}, 0xffff0000, {vr(buf+4*p+e)}")
                if p:
                    a(f"v_add_f32 {vr(sm+2*e)}, {vr(sm+2*e)}, {vr(u2)}")
                    a(f"v_add_f32 {vr(sm+2*e+1)}, {vr(sm+2*e+1)}, {vr(u2+1)}")
    s_z = S.alloc()
    def passR():
        L = lab("pr")
        a(f"s_or_b32 {sr(st[3])}, {sr(s_left)}, {sr(s_z)}"); a(f"s_cbranch_scc1 {L}")
        zwrite(); a(L0); BAR(); a(f"s_mov_b32 {sr(s_z)}, 1")
        a(f"{L}:")
    a(f"s_mov_b32 {sr(s_z)}, 0")
    bar(OPT.get("rw", 2))
    a("s_waitcnt vmcnt(16)")
    a(f"s_setprio {OPT.get('rprio', 0)}")
    nch = OPT.get("rn", 4)
    for g in range(nch):
        passR()
        a(f"s_waitcnt vmcnt({16-(16//nch)*(g+1)})")
        sums(16//nch*g, 16//nch*(g+1))
        if g < nch-1 or OPT.get('rl', 1): bar(1)
    for e in range(4): a(f"v_permlane32_swap_b32 {vr(sm+e)}, {vr(sm+4+e)}")
    for e in range(4): a(f"v_add_f32 {vr(sm+e)}, {vr(sm+e)}, {vr(sm+4+e)}")
    a(f"v_cvt_pk_bf16_f32 {vr(buf)}, {vr(sm)}, {vr(sm+1)}")
    a(f"v_cvt_pk_bf16_f32 {vr(buf+1)}, {vr(sm+2)}, {vr(sm+3)}")
    a(f"v_and_b32 {vr(vt[2])}, 31, {vr(vl)}")
    a(f"v_lshrrev_b32 {vr(vt[3])}, 5, {vr(vl)}")
    a(f"v_lshlrev_b32 {vr(vt[2])}, 4, {vr(vt[2])}")
    a(f"v_lshl_add_u32 {vr(vt[2])}, {vr(vt[3])}, 3, {vr(vt[2])}")
    a(f"buffer_store_dwordx2 {vr(buf,2)}, {vr(vt[2])}, {sr(sG,4)}, 0 offen sc1")
    stamp(5)
    a(f"s_setprio {OPT.get('lprio', 2)}")
    for _ in range(OPT.get('re', 2)): passR(); bar(1)
    passR(); a(W0)
    signal(F_B1B, s_nj)
    drain(); passR()
    poll(F_B1B, s_nj, s_mi, 16); stamp(6)
    a(f"s_lshl_b32 {sr(st[0])}, {sr(s_nj)}, 13")
    srd("ws", WS["KVF"], 8192, soff=st[0], d=sG)
    a(f"v_lshlrev_b32 {vr(vt[2])}, 4, {vr(vl)}")
    for g in range(2):
        a(f"s_mov_b32 m0, {M_KVF+4096*g}")
        a(f"s_mov_b32 {sr(st[0])}, {4096*g}")
        for j in range(4): a(f"buffer_load_dwordx4 {vr(vt[2])}, {sr(sG,4)}, {sr(st[0])} offen offset:{1024*j} sc1 lds")
    a(W0); a(L0); stamp(7)
    BAR()
    budget(19); drain()
    helper_branch()
    sp = S.alloc()
    special_pos(P3, s_mi, sp)
    a(f"""s_cmp_ge_u32 {sr(sp)}, 5
          s_cselect_b32 {sr(st[0])}, 5, 0
          s_sub_u32 {sr(st[0])}, {sr(sp)}, {sr(st[0])}
          s_lshl_b32 {sr(st[0])}, {sr(st[0])}, 14
          s_add_u32 {sr(st[0])}, {sr(st[0])}, {W_RING}
          v_lshrrev_b32 {vr(vt[0])}, 2, {vr(vl)}
          v_bfe_u32 {vr(vt[1])}, {vr(vt[0])}, 1, 2
          v_lshlrev_b32 {vr(vt[0])}, 7, {vr(vt[0])}
          v_lshl_add_u32 {vr(vt[0])}, {vr(vt[1])}, 5, {vr(vt[0])}
          v_and_b32 {vr(vt[1])}, 3, {vr(vl)}
          v_lshl_add_u32 {vr(vt[0])}, {vr(vt[1])}, 3, {vr(vt[0])}
          v_add_u32 {vr(q0)}, {sr(st[0])}, {vr(vt[0])}""")
    for t in range(1, 4): a(f"v_xor_b32 {vr(q0+t)}, {32*t}, {vr(q0)}")
    cz = buf+80
    for i in range(4): a(f"v_mov_b32 {vr(ones+i)}, 0x3f803f80")
    a(f"s_add_u32 {sr(s_left)}, {sr(sp)}, 1"); drain()
    a(f"s_sub_u32 {sr(s_left)}, 15, {sr(sp)}")
    for t in range(8):
        for h in range(4): a(f"ds_read_b64_tr_b16 {vr(fr+8*t+2*h,2)}, {vr(q0+(t&3))} offset:{(t>>2)*8192+h*2048}")
    if not OPT.get("hst", 1): stats_issue(A_HST)
    a(L0); bar(1)
    for t in range(8):
        for ks in range(2): a(f"{MF16} {vr(cz+4*t,4)}, {vr(ones,4)}, {vr(fr+8*t+4*ks,4)}, {'0' if ks == 0 else vr(cz+4*t,4)}")
    bar(1)
    for t in range(1, 4):
        a(f"v_cmp_le_u32 vcc, {16*t}, {vr(vl)}")
        for h in range(2): a(f"v_cndmask_b32 {vr(cz+16*h)}, {vr(cz+16*h)}, {vr(cz+16*h+4*t)}, vcc")
    a(f"s_lshl_b32 {sr(st[0])}, {sr(s_n7)}, 9")
    a(f"s_add_u32 {sr(st[0])}, {sr(st[0])}, {A_CIN+1792*4}")
    for h in range(2): a(f"buffer_atomic_add_f32 {vr(cz+16*h)}, {vr(vk)}, {sr(sAcc,4)}, {sr(st[0])} offen offset:{256*h} sc1")
    bar(2); a(W0)
    signal(F_C3, s_n7)
    poll(F_X, s_mi, s_nj, 32, bar)
    poll(F_C3, s_n7, s_mi, 16, bar)
    touch(".code_c3")
    until(2)
    stats_issue(A_HST); cs_get(A_CIN+1792*4, s_n7, M_CS)
    bar(1); a("s_waitcnt vmcnt(2)")
    stats_calc_h()
    drain(); stats_write_h(); a(W0); a(L0); stamp(8)
    BAR()
    T0, T1, T2 = OPT["T0"], OPT["T1"], OPT["T2"]
    budget(T0+2); drain()
    signal(F_B4, s_mi)
    budget(T1-T0-1); bar(1)
    poll(F_B4, s_mi, s_nj, 14, bar); stamp(9)
    a(f"v_lshlrev_b32 {vr(vt[2])}, 4, {vr(vl)}")
    a(f"s_lshl_b32 {sr(st[0])}, {sr(s_mi)}, 10")
    a(f"s_add_u32 {sr(st[0])}, {sr(st[0])}, {A_ZST}")
    a(f"s_mov_b32 m0, {M_ZS}")
    a(f"buffer_load_dwordx4 {vr(vt[2])}, {sr(sAcc,4)}, {sr(st[0])} offen sc1 lds")
    drain(); a(W0); stamp(10)
    BAR()
    budget(T2-T1); drain()
    signal(F_B5, s_n7); touch(".code_c4")
    budget(14-T2)
    poll(F_C4, s_n7, s_mi, 32, bar)
    until(2)
    cs_get(A_CIN, s_n7, M_CS+512)
    drain(); a(W0)
    BAR()
    if OPT.get("hmid"):
        budget(OPT["hmid"]); drain(); signal(F_B4, s_mi)
    budget(34-OPT.get("hmid", 0)); until(7); touch(".code_c5"); drain()
    helper_ret('X')
    budget(29); drain()
    stamp_out(); tb_out()

def compute():
    global v_ones
    compute_common()
    s_n1, s_n2 = S.alloc(), S.alloc()
    sO = S.alloc(4, 4); sZ = S.alloc(4, 4); sY = S.alloc(4, 4); s_so = S.alloc()
    v_ones = V.alloc(4, 4)
    T = V.alloc(64, 4); acc = V.alloc(64, 4); acc2 = V.alloc(64, 4); hres = V.alloc(16, 4)
    wphi = V.alloc(8, 4); rs = V.alloc(8, 2); scp = V.alloc(2, 2)
    adr = V.alloc(6); vo = V.alloc(2); va = V.alloc(4)
    assert V.n <= 254
    W0 = "s_waitcnt vmcnt(0)"; L0 = "s_waitcnt lgkmcnt(0)"
    def zero(b, n):
        for i in range(0, n, 2): a(f"v_mov_b64 {vr(b+i,2)}, 0")
    def lds_addr(dst, lane, sh, wave, wsh, base):
        a(f"s_lshl_b32 {sr(st[0])}, {sr(wave)}, {wsh}")
        a(f"s_add_u32 {sr(st[0])}, {sr(st[0])}, {base}")
        a(f"v_lshl_add_u32 {vr(dst)}, {vr(lane)}, {sh}, {sr(st[0])}")
    def img_srd(base, NTt, kt):
        a(f"s_mul_i32 {sr(st[0])}, {sr(s_mi)}, {NTt}")
        a(f"s_add_u32 {sr(st[0])}, {sr(st[0])}, {sr(kt)}")
        a(f"s_lshl_b32 {sr(st[0])}, {sr(st[0])}, 14")
        srd("ws", base, 16384, soff=st[0], d=sO)
    def read_rs16(base, dst):
        lds_addr(vt[0], v_r16, 2, s_wm, 8, base)
        for i in range(4): a(f"ds_read2_b32 {vr(dst+2*i,2)}, {vr(vt[0])} offset0:{16*i} offset1:{128+16*i}")
    def read_cs16(base, dst):
        lds_addr(vt[1], v_g, 4, s_wn, 8, base)
        for t in range(4): a(f"ds_read_b128 {vr(dst+4*t,4)}, {vr(vt[1])} offset:{t*64}")
    def read_g(dst):
        lds_addr(vt[0], v_r16, 4, s_wm, 10, M_G)
        for i in range(4): a(f"ds_read_b128 {vr(dst+4*i,4)}, {vr(vt[0])} offset:{256*i}")
    def row_stats(pk, npk, base):
        s12 = T+48
        for e in range(npk):
            for i in range(4):
                o = pk+npk*i+e
                a(f"v_dot2_f32_bf16 {vr(s12+2*i)}, {vr(o)}, {vr(v_ones)}, {'0' if e == 0 else vr(s12+2*i)}")
                a(f"v_dot2_f32_bf16 {vr(s12+2*i+1)}, {vr(o)}, {vr(o)}, {'0' if e == 0 else vr(s12+2*i+1)}")
        a(f"s_lshl_b32 {sr(st[0])}, {sr(s_mi)}, 10")
        a(f"s_lshl_b32 {sr(st[1])}, {sr(s_wm)}, 8")
        a(f"s_add_u32 {sr(st[0])}, {sr(st[0])}, {sr(st[1])}")
        if base: a(f"s_add_u32 {sr(st[0])}, {sr(st[0])}, {base}")
        a(f"v_lshlrev_b32 {vr(vt[0])}, 2, {vr(v_r)}")
        a(f"v_lshl_add_u32 {vr(vt[0])}, {vr(v_hf)}, 9, {vr(vt[0])}")
        quad_reduce("v_add_f32", s12)
        for p in range(2): a(f"buffer_atomic_add_f32 {vr(s12+4*p)}, {vr(vt[0])}, {sr(sAcc,4)}, {sr(st[0])} offen offset:{128*p} sc1")
    def swap16(p):
        a(f"v_permlane16_swap_b32 {vr(p)}, {vr(p+2)}")
        a(f"v_permlane16_swap_b32 {vr(p+1)}, {vr(p+3)}")
    def packn(src, dst, n):
        for i in range(n): a(f"v_cvt_pk_bf16_f32 {vr(dst+i)}, {vr(src+2*i)}, {vr(src+2*i+1)}")
    def unpackn(p, dst, n):
        for i in range(n):
            a(f"v_lshlrev_b32 {vr(dst+2*i)}, 16, {vr(p+i)}")
            a(f"v_and_b32 {vr(dst+2*i+1)}, 0xffff0000, {vr(p+i)}")

    for i in range(4): a(f"v_mov_b32 {vr(v_ones+i)}, 0x3f803f80")
    ad = Addr(P1K, adr, adr+2, [T]); ad.init()
    zero(acc, 64)
    a(f"s_xor_b32 {sr(st[1])}, {sr(s_mi)}, {sr(s_nj)}")
    NPK = special_pos(P1K, st[1], s_n1)
    a(f"s_sub_u32 {sr(s_n2)}, {NPK}, {sr(s_n1)}")
    dots = acc2
    a(f"""s_lshl3_add_u32 {sr(st[0])}, {sr(s_mi)}, {sr(s_w)}
          s_lshl_b32 {sr(st[0])}, {sr(st[0])}, 7
          s_add_u32 {sr(st[0])}, {sr(st[0])}, {A_XST}
          v_lshl_add_u32 {vr(dots+6)}, {vr(v_r)}, 2, {sr(st[0])}
          v_lshl_add_u32 {vr(dots+6)}, {vr(v_hf)}, 9, {vr(dots+6)}
          s_lshl2_add_u32 {sr(st[0])}, {sr(s_nj)}, {sr(s_w)}
          s_lshl_b32 {sr(st[0])}, {sr(st[0])}, 7
          s_add_u32 {sr(st[0])}, {sr(st[0])}, {A_CKV}
          v_lshl_add_u32 {vr(dots+7)}, {vr(v_r)}, 2, {sr(st[0])}
          v_lshl_add_u32 {vr(dots+7)}, {vr(v_hf)}, 20, {vr(dots+7)}""")
    ident = hres; aR16, aR32, aG, aW, aK, aZ = [hres+8+i for i in range(6)]
    zero(ident, 6)
    a(f"v_lshlrev_b32 {vr(vt[2])}, 2, {vr(v_g)}")
    a(f"v_sub_u32 {vr(vt[2])}, {vr(v_r16)}, {vr(vt[2])}")
    a(f"v_mov_b32 {vr(vt[3])}, 0x3f80")
    a(f"v_mov_b32 {vr(vt[4])}, 0x3f800000")
    for d in range(4):
        a(f"v_cmp_eq_u32 vcc, {d}, {vr(vt[2])}")
        a(f"v_cndmask_b32 {vr(ident+2+(d>>1))}, {vr(ident+2+(d>>1))}, {vr(vt[3+(d&1)])}, vcc")
    lds_addr(aR16, v_r16, 2, s_wm, 8, M_RS)
    lds_addr(aR32, v_r, 2, s_wm, 8, M_RS)
    lds_addr(aG, v_g, 4, s_wm, 8, M_RS)
    a(f"""v_lshrrev_b32 {vr(vt[2])}, 2, {vr(vl)}
          v_and_b32 {vr(vt[3])}, 3, {vr(vl)}
          v_lshlrev_b32 {vr(vt[3])}, 3, {vr(vt[3])}
          v_lshl_add_u32 {vr(vt[2])}, {vr(vt[2])}, 6, {vr(vt[3])}""")
    lds_addr(aW, vt[2], 0, s_wn, 11, M_WPH)
    lds_addr(vo, v_g, 4, s_wn, 7, M_CS)
    lds_addr(vo+1, v_r16, 2, s_wn, 7, M_CS+256)
    a(f"""s_lshl1_add_u32 {sr(st[0])}, {sr(s_mi)}, {sr(s_wm)}
          s_lshl_b32 {sr(st[0])}, {sr(st[0])}, 9
          v_lshl_add_u32 {vr(aK)}, {vr(v_r)}, 4, {sr(st[0])}
          v_lshl_add_u32 {vr(aK)}, {vr(v_hf)}, 14, {vr(aK)}
          s_lshl1_add_u32 {sr(st[3])}, {sr(s_nj)}, {sr(s_wn)}
          s_lshl_b32 {sr(st[0])}, {sr(st[3])}, 8
          s_add_u32 {sr(st[0])}, {sr(st[0])}, {A_Z}
          v_and_b32 {vr(vt[2])}, 0x23, {vr(vl)}
          v_and_b32 {vr(vt[3])}, 12, {vr(vl)}
          v_lshl_or_b32 {vr(vt[2])}, {vr(vt[3])}, 1, {vr(vt[2])}
          v_bfe_u32 {vr(vt[3])}, {vr(vl)}, 4, 1
          v_lshl_or_b32 {vr(vt[2])}, {vr(vt[3])}, 2, {vr(vt[2])}
          v_lshl_add_u32 {vr(aZ)}, {vr(vt[2])}, 2, {sr(st[0])}""")
    a(L0); common_srds()
    a(f"s_lshl_b32 {sr(st[0])}, {sr(st[3])}, 17")
    srd("ws", WS["KVP"], 131072, soff=st[0], d=sO)
    a(f"s_lshl_b32 {sr(st[0])}, {sr(s_mi)}, 18")
    srd("x", 0, 128*2048, soff=st[0], d=sZ)
    def warm(e):
        Lw = lab("wu")
        for w in range(4):
            Ln = lab("wn")
            if w < 3: a(f"s_cmp_lg_u32 {sr(s_w)}, {w}"); a(f"s_cbranch_scc1 {Ln}")
            for k in range(w, 12, 4): a(f"s_call_b64 {sr(s_ret,2)}, .PAD{e}_{k}")
            if w < 3: a(f"s_branch {Lw}"); a(f"{Ln}:")
        a(f"{Lw}:")
    warm(0)
    stamp(1)
    sw = [0, 0, 1, 1]
    ad.first(); stamp(2)
    ad.loop(0, acc, cnt=s_n1, swap=sw)
    ad.tile(acc, swap=sw, dots=(None if OPT.get('abl', 0) & 1 else dots))
    ad.loop(0, acc, cnt=s_n2, swap=sw)
    for q in range(2): a(f"v_permlane32_swap_b32 {vr(dots+2*q)}, {vr(dots+2*q+1)}")
    a(f"v_permlane16_swap_b32 {vr(dots+4)}, {vr(dots+5)}")
    for q in range(3): a(f"v_add_f32 {vr(dots+2*q)}, {vr(dots+2*q)}, {vr(dots+2*q+1)}")
    a(f"v_mov_b32 {vr(dots+5)}, {vr(dots+4)}")
    a(f"v_permlane16_swap_b32 {vr(dots)}, {vr(dots+2)}")
    a(f"v_permlane32_swap_b32 {vr(dots+4)}, {vr(dots+5)}")
    a(f"v_add_f32 {vr(dots)}, {vr(dots)}, {vr(dots+2)}")
    a(f"v_add_f32 {vr(dots+4)}, {vr(dots+4)}, {vr(dots+5)}")
    if not OPT.get('abl', 0) & 2:
        a(f"buffer_atomic_add_f32 {vr(dots)}, {vr(dots+6)}, {sr(sAcc,4)}, 0 offen sc1")
        a(f"buffer_atomic_add_f32 {vr(dots+4)}, {vr(dots+7)}, {sr(sAcc,4)}, 0 offen sc1")
    KD = OPT.get("kd", 1)
    ad.loop(KD, acc, swap=sw); ad.loop(14-KD-NPK, acc, swap=sw, vm0=True)
    csk, csv, x8, rsv, vpk = acc2, acc2+8, acc2+10, acc2+20, acc2+20
    rd = [f"ds_read2_b32 {vr(rs+2*i,2)}, {vr(aR16)} offset0:{16*i} offset1:{128+16*i}" for i in range(4)]
    rd += [f"ds_read_b128 {vr(csk+4*t,4)}, {vr(vo)} offset:{64*t}" for t in range(2)]
    rd += [f"ds_read_b64_tr_b16 {vr(wphi+4*u+2*h,2)}, {vr(aW)} offset:{1024*h+32*u}" for u in range(2) for h in range(2)]
    rd += [f"ds_read2_b32 {vr(scp,2)}, {vr(aR32)} offset0:0 offset1:32", f"ds_read2_b32 {vr(csv,2)}, {vr(vo+1)} offset0:0 offset1:16"]
    rd += [f"ds_read_b128 {vr(rsv+8*i+4*h,4)}, {vr(aG)} offset:{64*i+512*h}" for i in range(4) for h in range(2)]
    pairs = lambda l: [l[i:i+2] for i in range(0, len(l), 2)]
    a(".code_ck:")
    ad.tile(acc, swap=sw, last=True, tail=pairs(rd)); stamp(3)
    a(L0)
    Lg, em = T, T+32
    def logits(stride):
        for i in range(4):
            packn(acc+stride*i, acc+stride*i, 4)
        for i in range(4):
            for u in range(2): a(f"{MF16} {vr(Lg+8*i+4*u,4)}, {vr(wphi+4*u,4)}, {vr(acc+stride*i,4)}, 0")
    for i in range(4): center(acc+16*i, csk, rs+2*i, 8)
    logits(16)
    for i in range(4): a(f"v_mul_f32 {vr(rs+2*i)}, {f32(LOG2E)}, {vr(rs+2*i)}")
    for q in range(2): a(f"v_mul_f32 {vr(scp+q)}, {f32(LOG2E)}, {vr(scp+q)}")
    for i in range(4):
        for t in range(2):
            for e in range(0, 4, 2):
                x = acc+16*i+8+4*t+e
                a(f"v_pk_fma_f32 {vr(x,2)}, {vr(rsv+8*i+4+e,2)}, {vr(csv,2)}, {vr(x,2)} op_sel:[0,{t},0] op_sel_hi:[1,{t},1]")
        for t in range(2):
            for e in range(0, 4, 2):
                x = acc+16*i+8+4*t+e
                a(f"v_pk_mul_f32 {vr(x,2)}, {vr(x,2)}, {vr(rsv+8*i+e,2)}")
    for i in range(4):
        for t in range(2): packn(acc+16*i+8+4*t, vpk+((i>>1)*2+t)*4+2*(i&1), 2)
    exps(Lg, em, x8, rs, scp)
    w8 = acc2+40
    for i in range(4):
        for sg, src in enumerate((Lg, em)):
            d = w8+4*i+2*sg
            a(f"v_pk_add_f32 {vr(d,2)}, {vr(src+8*i,2)}, {vr(src+8*i+2,2)}")
    for e in (4, 6):
        for i in range(4):
            for sg, src in enumerate((Lg, em)):
                d = w8+4*i+2*sg
                a(f"v_pk_add_f32 {vr(d,2)}, {vr(d,2)}, {vr(src+8*i+e,2)}")
    for i in range(4):
        for sg in range(2): a(f"v_add_f32 {vr(x8+2*i+sg)}, {vr(w8+4*i+2*sg)}, {vr(w8+4*i+2*sg+1)}")
    quad_reduce("v_add_f32", x8)
    for q in range(2): a(f"v_rcp_f32 {vr(x8+4*q)}, {vr(x8+4*q)}")
    quad_bcast(x8)
    for i in range(4):
        for sg, src in enumerate((Lg, em)):
            for e in range(0, 8, 2): a(f"v_pk_mul_f32 {vr(src+8*i+e,2)}, {vr(src+8*i+e,2)}, {vr(x8+2*i,2)} op_sel:[0,{sg}] op_sel_hi:[1,{sg}]")
    kvp, zs = acc+32, acc2+40
    cv = lambda src, dst, n: [f"v_cvt_pk_bf16_f32 {vr(dst+i)}, {vr(src+2*i)}, {vr(src+2*i+1)}" for i in range(n)]
    def weave(mm, vv):
        for k, m in enumerate(mm):
            a(m)
            for x in vv[len(vv)*k//len(mm):len(vv)*(k+1)//len(mm)]: a(x)
    phi = lambda sg: [x for i in range(4) for x in cv((Lg, em)[sg]+8*i, acc+8*i+4*sg, 4)]
    trn = lambda sg: [f"{MF16} {vr(T+((sg*2+u)*4+i)*4,4)}, {vr(acc+8*i+4*sg,4)}, {vr(ident+2-2*u,4)}, 0" for u in range(2) for i in range(4)]
    tpk = lambda sg: [x for u in range(2) for p in range(2) for x in cv(T+16*(2*sg+u)+8*p, T+16*(2*sg+u)+4*p, 4)]
    def kvm(sg):
        out = []
        for u in range(2):
            q = 2*sg+u
            for p in range(2):
                for t in range(2):
                    d = kvp+((sg*2+t)*2+u)*4
                    out.append(f"{MF16} {vr(d,4)}, {vr(T+16*q+4*p,4)}, {vr(vpk+(p*2+t)*4,4)}, {'0' if p == 0 else vr(d,4)}")
        return out
    zm = [f"{MF16} {vr(zs+4*q,4)}, {vr(v_ones,4)}, {vr(T+16*q+4*p,4)}, {'0' if p == 0 else vr(zs+4*q,4)}" for q in range(4) for p in range(2)]
    sto = lambda j: cv(kvp+8*j, kvp+8*j, 4) + [f"buffer_store_dwordx4 {vr(kvp+8*j,4)}, {vr(aK)}, {sr(sO,4)}, {sr(st[0])} offen sc1", f"s_add_u32 {sr(st[0])}, {sr(st[0])}, 32768"]
    for x in phi(0): a(x)
    weave(trn(0), phi(1)); weave(trn(1), tpk(0)); weave(kvm(0), tpk(1))
    a(f"s_mov_b32 {sr(st[0])}, 0")
    ad = Addr(P1Q, adr, adr+2, [T, acc2])
    weave(kvm(1), [f"s_mov_b32 {sr(s_ra)}, 0", f"s_mov_b32 {sr(s_rw)}, 0"] + ad.upd()[1] + ad.upd()[2] + sto(0) + sto(1))
    weave(zm, ["s_nop 0"]*4 + sto(2) + sto(3))
    a(f"v_mov_b32 {vr(vt[0])}, {vr(zs)}")
    for q in range(1, 4):
        a(f"v_cmp_le_u32 vcc, {16*q}, {vr(vl)}")
        a(f"v_cndmask_b32 {vr(vt[0])}, {vr(vt[0])}, {vr(zs+4*q)}, vcc")
    a(f"buffer_atomic_add_f32 {vr(vt[0])}, {vr(aZ)}, {sr(sAcc,4)}, 0 offen sc1")
    for _ in range(OPT.get("idleQ", 0)): a("s_sleep 32")
    stamp(4)
    TQ = OPT["TQ"]; assert TQ % 2 == 0 and TQ >= 2
    ad.first(); stamp(5)
    ad.tile(acc, zero=True, b=0); ad.tile(acc, b=1)
    ad.loop(TQ-2, acc); ad.loop(14-TQ, acc, vm0=True)
    csq, zf, x8 = acc+32, acc+40, acc+48
    rd = [f"ds_read_b128 {vr(csq+4*t,4)}, {vr(vo)} offset:{512+64*t}" for t in range(2)]
    rd += [f"ds_read_b128 {vr(zf+4*sg,4)}, {vr(vo)} offset:{M_ZF-M_CS+64*sg}" for sg in range(2)]
    a(".code_cq:")
    ad.tile(acc, b=0); ad.tile(acc, b=1, last=True, tail=rd); stamp(6)
    def row_addr():
        a(f"""s_lshl_b32 {sr(st[0])}, {sr(s_wm)}, 17
              s_lshl1_add_u32 {sr(st[1])}, {sr(s_nj)}, {sr(s_wn)}
              s_lshl_b32 {sr(st[1])}, {sr(st[1])}, 6
              s_add_u32 {sr(st[0])}, {sr(st[0])}, {sr(st[1])}
              v_lshl_add_u32 {vr(vo)}, {vr(v_r16)}, 11, {sr(st[0])}
              v_lshl_add_u32 {vr(vo)}, {vr(v_hf)}, 4, {vr(vo)}
              v_and_b32 {vr(vt[0])}, 1, {vr(v_g)}
              v_lshl_add_u32 {vr(vo)}, {vr(vt[0])}, 5, {vr(vo)}""")
    a(L0)
    for i in range(4): center(acc+8*i, csq, rs+2*i, 8)
    logits(8)
    row_addr()
    for i in range(4):
        a(f"s_mov_b32 {sr(st[0])}, {i*32768}")
        a(f"buffer_load_dwordx4 {vr(hres+4*i,4)}, {vr(vo)}, {sr(sZ,4)}, {sr(st[0])} offen")
    img_srd(WS["O"], 16, s_nj)
    a(f"""s_lshl3_add_u32 {sr(st[0])}, {sr(s_wm)}, {sr(s_wn)}
          s_lshl_b32 {sr(st[0])}, {sr(st[0])}, 10
          v_lshl_add_u32 {vr(vo+1)}, {vr(vl)}, 4, {sr(st[0])}
          s_mov_b32 {sr(st[2])}, 4096""")
    lds_addr(vt[4], vl, 4, s_wn, 12, M_KVF)
    exps(Lg, em, x8, rs, scp)
    eq = acc
    Sm, Dn = acc2, acc2+32
    for i in range(4):
        for sg, src in enumerate((Lg, em)): packn(src+8*i, eq+8*i+4*sg, 4)
        for sg in range(2):
            a(f"{MF16} {vr(Sm+8*i+4*sg,4)}, {vr(v_ones,4)}, {vr(eq+8*i+4*sg,4)}, 0")
            a(f"{MF16} {vr(Dn+8*i+4*sg,4)}, {vr(zf+4*sg,4)}, {vr(eq+8*i+4*sg,4)}, 0")
    for i in range(4):
        for sg in range(2): a(f"v_rcp_f32 {vr(x8+2*i+sg)}, {vr(Sm+8*i+4*sg)}")
    for i in range(4): a(f"v_fmaak_f32 {vr(Dn+8*i)}, {vr(Dn+8*i)}, {vr(x8+2*i)}, {f32(1e-6)}")
    for i in range(4): a(f"v_fmac_f32 {vr(Dn+8*i)}, {vr(Dn+8*i+4)}, {vr(x8+2*i+1)}")
    for i in range(4): a(f"v_rcp_f32 {vr(Dn+8*i)}, {vr(Dn+8*i)}")
    for i in range(4): a(f"v_pk_mul_f32 {vr(x8+2*i,2)}, {vr(x8+2*i,2)}, {vr(Dn+8*i,2)} op_sel_hi:[1,0]")
    stamp(7)
    kvf = acc+32
    a("s_barrier")
    for j in range(4): a(f"ds_read_b128 {vr(kvf+4*j,4)}, {vr(vt[4])} offset:{j*1024}")
    a(L0); stamp(8)
    for i in range(4):
        for sg in range(2):
            for t in range(2): a(f"{MF16} {vr(T+16*i+8*sg+4*t,4)}, {vr(kvf+(sg*2+t)*4,4)}, {vr(eq+8*i+4*sg,4)}, 0")
    for i in range(4):
        n = T+16*i
        for e in range(0, 8, 2): a(f"v_pk_mul_f32 {vr(n+e,2)}, {vr(n+e,2)}, {vr(x8+2*i,2)} op_sel_hi:[1,0]")
        for e in range(0, 8, 2): a(f"v_pk_fma_f32 {vr(n+e,2)}, {vr(n+8+e,2)}, {vr(x8+2*i,2)}, {vr(n+e,2)} op_sel:[0,1,0] op_sel_hi:[1,1,1]")
        packn(n, n, 4)
        a(f"buffer_store_dwordx4 {vr(n,4)}, {vr(vo+1)}, {sr(sO,4)}, {sr(st[2]) if i >= 2 else 0} offen offset:{(i&1)*2048} sc1")
    handoff(F_B2); stamp(9)
    a.L.append("@PAGE")
    ad = Addr(P2, adr, adr+4, [T, acc2]); ad.init()
    for i in range(4): swap16(hres+4*i)
    unpackn(hres, acc, 16)
    img_srd(WS["H"], 16, s_nj)
    a(f"s_mov_b32 {sr(st[2])}, 4096")
    warm(1); a.L.append("@EPOCH1")
    ad.first(); stamp(10)
    fin2 = lambda i, w: cv(acc+8*i, hres+4*i, 4) + [f"buffer_store_dwordx4 {vr(hres+4*i,4)}, {vr(vo+1)}, {sr(sO,4)}, {sr(st[2]) if i >= 2 else 0} offen offset:{(i&1)*2048} sc1"]
    ad.loop(14, acc); ad.tile(acc, b=0)
    if OPT.get("fin", 7) & 1: ad.tile(acc, b=1, last=True, fin=fin2); stamp(11)
    else:
        ad.tile(acc, b=1, last=True); stamp(11)
        for i in range(4):
            for x in fin2(i, False): a(x)
    if not OPT.get("hst", 1): row_stats(hres, 4, A_HST)
    handoff(F_B3); stamp(12)
    if OPT.get("hst", 1):
        row_stats(hres, 4, A_HST); arrive(F_X, s_mi)
    helper_branch()
    a.L.append("@PAGE")
    ad = Addr(P3, adr, adr+2, [T]); ad.init()
    a(f"s_lshl1_add_u32 {sr(st[0])}, {sr(s_mi)}, {sr(s_wm)}")
    a(f"s_lshl_b32 {sr(st[0])}, {sr(st[0])}, 7")
    srd("b_sp", 0, 128, soff=st[0], d=sZ)
    a(f"v_lshlrev_b32 {vr(vt[0])}, 1, {vr(v_r16)}")
    assert rs == wphi+8
    braw = [wphi, wphi+4, scp, scp+1]
    for i in range(4): a(f"buffer_load_ushort {vr(braw[i])}, {vr(vt[0])}, {sr(sZ,4)}, 0 offen offset:{i*32}")
    zero(acc2, 64)
    aG, aC, aZ, aS = va, va+1, va+2, va+3
    lds_addr(aG, v_r16, 4, s_wm, 10, M_G); lds_addr(aC, v_g, 4, s_wn, 8, M_CS); lds_addr(aZ, v_r16, 2, s_wm, 8, M_ZS)
    a(f"""s_lshl2_add_u32 {sr(st[0])}, {sr(s_mi)}, {sr(s_wm)}
          s_lshl_b32 {sr(st[0])}, {sr(st[0])}, 8
          s_add_u32 {sr(st[0])}, {sr(st[0])}, {A_ZST}
          v_lshl_add_u32 {vr(aS)}, {vr(v_r)}, 2, {sr(st[0])}
          v_lshl_add_u32 {vr(aS)}, {vr(v_hf)}, 9, {vr(aS)}
          s_lshl1_add_u32 {sr(st[1])}, {sr(s_mi)}, {sr(s_wm)}
          s_lshl_b32 {sr(st[0])}, {sr(s_n7)}, 5
          s_add_u32 {sr(st[0])}, {sr(st[0])}, {sr(st[1])}
          s_lshl1_add_u32 {sr(st[0])}, {sr(st[0])}, {sr(s_wn)}
          s_lshl_b32 {sr(st[0])}, {sr(st[0])}, 13""")
    srd("ws", WS["Z2N"], 8192, soff=st[0], d=sY)
    a(f"""v_lshlrev_b32 {vr(vo)}, 2, {vr(v_hf)}
          v_xor_b32 {vr(vo)}, {vr(vo)}, {vr(v_r16)}
          v_lshlrev_b32 {vr(vo)}, 4, {vr(vo)}
          v_lshl_add_u32 {vr(vo)}, {vr(v_hf)}, 10, {vr(vo)}
          v_and_b32 {vr(vt[2])}, 1, {vr(v_g)}
          v_lshl_add_u32 {vr(vo)}, {vr(vt[2])}, 11, {vr(vo)}
          s_mov_b32 {sr(s_so)}, 4096
          s_lshl1_add_u32 {sr(st[1])}, {sr(s_n7)}, {sr(s_wn)}""")
    img_srd(WS["P"], 28, st[1])
    a(f"s_lshl_b32 {sr(st[0])}, {sr(s_wm)}, 13")
    a(f"v_lshl_add_u32 {vr(vo+1)}, {vr(vl)}, 4, {sr(st[0])}")
    ad.first(); stamp(13)
    cs = T; gq = T+16; u = T+32; s12 = T+48; z2 = acc2
    gc = lambda off: [f"ds_read_b128 {vr(cs+4*t,4)}, {vr(aC)} offset:{off+t*64}" for t in range(4)] + [f"ds_read_b128 {vr(gq+4*i,4)}, {vr(aG)} offset:{256*i}" for i in range(4)]
    ad4 = Addr(P4, adr, adr+2, [T])
    ad.loop(15, acc2); a(".code_c3:"); ad.tile(acc2, last=True, tail=["s_nop 0"] + gc(0) + [[f"s_mov_b32 {sr(s_ra)}, 0", f"s_mov_b32 {sr(s_rw)}, 0"]] + ad4.upd()[1] + ad4.upd()[2]); stamp(14)
    ad = ad4
    a(L0)
    for i in range(4):
        x = z2+16*i
        gelu16(x, cs, gq+4*i, u)
        a(f"v_pk_add_f32 {vr(u,2)}, {vr(x,2)}, {vr(x+2,2)}")
        a(f"v_pk_mul_f32 {vr(u+2,2)}, {vr(x,2)}, {vr(x,2)}")
        for e in range(2, 16, 2):
            if e > 2: a(f"v_pk_add_f32 {vr(u,2)}, {vr(u,2)}, {vr(x+e,2)}")
            a(f"v_pk_fma_f32 {vr(u+2,2)}, {vr(x+e,2)}, {vr(x+e,2)}, {vr(u+2,2)}")
        a(f"v_add_f32 {vr(s12+2*i)}, {vr(u)}, {vr(u+1)}")
        a(f"v_add_f32 {vr(s12+2*i+1)}, {vr(u+2)}, {vr(u+3)}")
    quad_reduce("v_add_f32", s12)
    for p in range(2): a(f"buffer_atomic_add_f32 {vr(s12+4*p)}, {vr(aS)}, {sr(sAcc,4)}, 0 offen offset:{128*p} sc1")
    stamp(15)
    T0, T1, T2 = OPT["T0"], OPT["T1"], OPT["T2"]
    zrs = rs
    ad.first(); stamp(16)
    ad.tile(acc, zero=True)
    ad.loop(T0-1, acc); ad.loop(T1-T0, acc, vm0=True)
    ad.tile(acc, tail=[('Z', f"ds_read2_b32 {vr(zrs+2*i,2)}, {vr(aZ)} offset0:{16*i} offset1:{128+16*i}") for i in range(4)])
    a(L0)
    for i in range(4): var_eps(zrs+2*i, zrs+2*i+1, 1792)
    for i in range(4): a(f"v_rsq_f32 {vr(zrs+2*i+1)}, {vr(zrs+2*i+1)}")
    for i in range(4): a(f"v_mul_f32 {vr(zrs+2*i)}, {vr(zrs+2*i)}, {vr(zrs+2*i+1)}")
    for i in range(4):
        o = z2+16*i
        for e in range(0, 16, 2):
            a(f"v_pk_fma_f32 {vr(o+e,2)}, {vr(o+e,2)}, {vr(zrs+2*i,2)}, {vr(zrs+2*i,2)} op_sel:[0,1,0] op_sel_hi:[1,1,0]")
        pack16(o, o)
        for m in range(2):
            swap16(o+4*m)
            a(f"buffer_store_dwordx4 {vr(o+4*m,4)}, {vr(vo)}, {sr(sY,4)}, {sr(s_so) if m else 0} offen offset:{i*256} sc1")
    stamp(17)
    ad.loop(T2-T1-1, acc); ad.loop(15-T2, acc, vm0=True)
    a(".code_c4:")
    ad.tile(acc, last=True, tail=["s_nop 0"] + gc(512) + [f"v_lshlrev_b32 {vr(wphi+4*i+e)}, 16, {vr(braw[i])}" for i in range(4) for e in (3, 2, 1, 0)]); stamp(18)
    ad = Addr(P5, adr, adr+2, [T]); ad.init()
    a(L0)
    z1 = acc
    for i in range(4): gelu16(z1+16*i, cs, gq+4*i, u)
    for _ in range(OPT.get("idle5", 0)): a("s_sleep 32")
    stamp(19)
    ad.first(); stamp(20)
    ad.tile(acc2, cin=wphi); ad.loop(30, acc2); a(".code_c5:"); pass
    def fin5(i, woven):
        x = acc2+16*i; out = []
        for m in range(2):
            if woven: out += [f"v_mul_f32 {vr(x+e)}, {vr(x+e)}, {vr(z1+16*i+e)}" for e in range(8*m, 8*m+8)]
            else: out += [f"v_pk_mul_f32 {vr(x+e,2)}, {vr(x+e,2)}, {vr(z1+16*i+e,2)}" for e in range(8*m, 8*m+8, 2)]
            out += cv(x+8*m, x+8*m, 4)
            out += [f"buffer_store_dwordx4 {vr(x+8*m,4)}, {vr(vo+1)}, {sr(sO,4)}, {sr(s_so) if i >= 2 else 0} offen offset:{(i&1)*2048+m*1024} sc1"]
        return out
    if OPT.get("fin", 7) & 2: ad.tile(acc2, last=True, fin=lambda i, w: fin5(i, w and i == 0), rate=OPT.get("rate5", 3)); stamp(21)
    else:
        ad.tile(acc2, last=True); stamp(21)
        for i in range(4):
            for x in fin5(i, False): a(x)
    handoff(F_B6); stamp(22)
    helper_ret('C')
    a.L.append("@PAGE")
    ad = Addr(P6, adr, adr+4, [T, acc2]); ad.init()
    unpackn(hres, acc, 16)
    a(f"s_lshl_b32 {sr(st[0])}, {sr(s_mi)}, 18")
    srd("out", 0, 128*2048, soff=st[0], d=sO)
    row_addr()
    ad.first(); stamp(23)
    opol = ['', 'sc1', 'nt', 'sc0 sc1'][OPT.get('opol', 0)]
    fin6 = lambda i, w: cv(acc+8*i, hres+4*i, 4) + [f"s_mov_b32 {sr(st[0])}, {i*32768}", f"v_permlane16_swap_b32 {vr(hres+4*i)}, {vr(hres+4*i+2)}",
        f"v_permlane16_swap_b32 {vr(hres+4*i+1)}, {vr(hres+4*i+3)}", f"buffer_store_dwordx4 {vr(hres+4*i,4)}, {vr(vo)}, {sr(sO,4)}, {sr(st[0])} offen {opol}"]
    ad.loop(26, acc); ad.tile(acc, b=0)
    if OPT.get("fin", 7) & 4: ad.tile(acc, b=1, last=True, fin=fin6); stamp(24)
    else:
        ad.tile(acc, b=1, last=True); stamp(24)
        for i in range(4):
            for x in fin6(i, False): a(x)
    if OPT["stamp"]: a(W0)
    stamp(25)
    stamp_out()
    if OPT.get("amp"):
        k0, k1 = divmod(OPT["amp"], 100)
        L = lab("am"); L2 = lab("am2")
        a(f"s_cmp_lg_u32 s2, 9"); a(f"s_cbranch_scc1 {L}")
        a(f"v_readlane_b32 {sr(st[0])}, {vr(v_stamp)}, {k0}")
        a(f"v_readlane_b32 {sr(st[1])}, {vr(v_stamp)}, {k1}")
        a(f"v_readlane_b32 {sr(st[2])}, {vr(v_stamp)}, 25")
        a(f"s_sub_u32 {sr(st[1])}, {sr(st[1])}, {sr(st[0])}")
        a(f"s_lshl_b32 {sr(st[1])}, {sr(st[1])}, 2")
        a(f"{L2}:")
        a(f"s_memrealtime {sr(s_tm,2)}"); a("s_waitcnt lgkmcnt(0)")
        a(f"s_sub_u32 {sr(st[0])}, {sr(s_tm)}, {sr(st[2])}")
        a(f"s_cmp_lt_u32 {sr(st[0])}, {sr(st[1])}"); a(f"s_cbranch_scc1 {L2}")
        a(f"{L}:")
    if OPT.get("dbgst"):
        L = lab("ds")
        a(f"s_cmp_lg_u32 s2, {OPT['dbgst']-1}"); a(f"s_cbranch_scc1 {L}"); a(f"s_cmp_lg_u32 {sr(s_w)}, 0"); a(f"s_cbranch_scc1 {L}")
        a(f"v_readlane_b32 {sr(st[0])}, {vr(v_stamp)}, 0")
        for i, k in enumerate((1, 2, 3, 4, 6, 8, 10, 11, 13, 14, 16, 18, 20, 21, 23, 24)):
            a(f"v_readlane_b32 {sr(st[1])}, {vr(v_stamp)}, {k}")
            a(f"s_sub_u32 {sr(st[1])}, {sr(st[1])}, {sr(st[0])}")
            a(f"v_writelane_b32 {vr(vt[1])}, {sr(st[1])}, {i}")
        a(f"v_lshlrev_b32 {vr(vt[0])}, 2, {vr(vl)}")
        a("s_mov_b64 exec, 0xffff")
        a(f"global_store_dword {vr(vt[0])}, {vr(vt[1])}, {sr(P['dbg'],2)}")
        a(f"{L}:")

if __name__ == "__main__":
    out = sys.argv[1]
    for arg in sys.argv[2:]:
        k, _, v = arg.partition("=")
        OPT[k] = int(v) if v else True
    for k in WS:
        if k != "STAMP": WS[k] += OPT.get("wsb", 0)*MB
    txt = build()
    open(out, "w").write(txt)
    print("vgpr hi", V.hi, "sgpr hi", S.hi, "lines", txt.count("\n"))
```

```python
import sys, struct
from asmlib import *
import hazard

NAME = "sequential_preLN__linear_kernel_hedgehog__mixer_gmlp__prompt"
KNAME = NAME + "_kernel"
MB = 1 << 20; KB = 1024
WS = dict(O=0, H=4*MB, Z2N=8*MB, P=16*MB, KVP=24*MB, KVF=32*MB, XST=32*MB+128*KB, ACC=33*MB, FLG=34*MB, STAMP=64*MB)
A_HST, A_ZST, A_CKV, A_CIN, A_Z, A_XST, A_CQ = 0, 16*KB, 32*KB, 40*KB, 56*KB, 64*KB, 80*KB
F_X, F_B2, F_B3, F_B4, F_B6, F_CKV, F_B1A, F_B1B, F_C3, F_C4, F_B5 = range(11)
A_RING, W_RING, MISC = 0, 65536, 147456
M_RS, M_CS, M_ZS, M_ZF, M_CNT, M_KVF, M_CP = MISC, MISC+1024, MISC+2048, MISC+3072, MISC+3584, MISC+4096, MISC+12288
M_WPH = M_KVF+4096
M_G = M_KVF
M_XP = M_KVF

LDS_BYTES = 163840
LOG2E = 1.4426950408889634
GC0 = -2*0.7978845608028654*LOG2E; GC1 = GC0*0.044715
MF = "v_mfma_f32_32x32x16_bf16"; MF16 = "v_mfma_f32_16x16x32_bf16"
def f32(x): return "0x%08x" % struct.unpack("<I", struct.pack("<f", x))[0]
OPT = dict(stamp=False, T0=1, T1=7, T2=11, TQ=2, TQw=2, TQp=1, rb=0, rw=2, rn=4, rl=0, rprio=2, prefetch=1, preQ=9, hl2=6, c3=0, hc3=0, hsleep=1, hn=6, c3s=5, c3n=0, late=1, opol=1, zerokv=1, pK=2, mK=1, pA4=3, pW4=4, pW2=10, pW3=5, pW6=10, spf=0, grpsp=1, leadsp=1, forcesp=0, grpout=1, leadout=1, rotz1=12, forcez1=1, ncwo=8, grpwo=1, leadwo=1, forcewo=0, shift=3, rotwo=15, ncout=4, forceout=0, rotout=0)

a = Asm()
HOOK = None
V = Regs(1, 256); S = Regs(4, 102)
P = {}
def lab(b="L"): return a.label(b)

def srd(ptr, off, size, soff=None, d=None):
    if d is None: d = S.alloc(4, 4)
    p = P[ptr]
    if off and soff is not None:
        a(f"s_add_u32 {sr(d+2)}, {sr(soff)}, {off}")
        a(f"s_add_u32 {sr(d)}, {sr(p)}, {sr(d+2)}")
        a(f"s_addc_u32 {sr(d+1)}, {sr(p+1)}, 0")
    elif off or soff is not None:
        a(f"s_add_u32 {sr(d)}, {sr(p)}, {off if off else sr(soff)}")
        a(f"s_addc_u32 {sr(d+1)}, {sr(p+1)}, 0")
    else:
        a(f"s_mov_b64 {sr(d,2)}, {sr(p,2)}")
    a(f"s_mov_b32 {sr(d+2)}, {size}")
    a(f"s_mov_b32 {sr(d+3)}, 0x20000")
    return d
def stamp(i):
    if not OPT["stamp"]: return
    if i == 0: a(f"s_memrealtime {sr(s_m,2)}"); return
    a(f"s_memrealtime {sr(s_tm,2)}")
    a("s_waitcnt lgkmcnt(0)")
    if i == 1: a(f"v_writelane_b32 {vr(v_stamp)}, {sr(s_m)}, 0")
    if OPT.get("clk") and i < 26:
        a(f"s_memtime {sr(s_m,2)}"); a("s_waitcnt lgkmcnt(0)"); a(f"v_writelane_b32 {vr(v_stamp)}, {sr(s_m)}, {36+i}")
    a(f"v_writelane_b32 {vr(v_stamp)}, {sr(s_tm)}, {i}")
def stamp_out():
    if not OPT["stamp"]: return
    a(f"s_lshl_b32 {sr(st[0])}, s2, 3")
    a(f"s_add_u32 {sr(st[0])}, {sr(st[0])}, {sr(s_w)}")
    a(f"s_lshl_b32 {sr(st[0])}, {sr(st[0])}, 8")
    a(f"s_add_u32 {sr(st[0])}, {sr(st[0])}, {WS['STAMP']}")
    a(f"v_lshl_add_u32 {vr(vt[0])}, {vr(vl)}, 2, {sr(st[0])}")
    a(f"global_store_dword {vr(vt[0])}, {vr(v_stamp)}, {sr(P['ws'],2)}")
TR = {}
def tb_init(role):
    if OPT.get("trace") != role: return
    TR['v'] = V.alloc(8); TR['i'] = S.alloc(); TR['t'] = S.alloc(2, 2); TR['b'] = 0
    a(f"s_mov_b32 {sr(TR['i'])}, -1")
    for i in range(8): a(f"v_mov_b32 {vr(TR['v']+i)}, 0")
def tb_bank(b):
    if TR: TR['b'] = b
def BAR():
    if not TR: a("s_barrier"); return
    a("s_waitcnt lgkmcnt(0)")
    a(f"v_mov_b32 {vr(TR['v']+7)}, {sr(TR['t'])}")
    a(f"v_cmp_eq_u32 vcc, {sr(TR['i'])}, {vr(TR['v']+6)}")
    a(f"v_cndmask_b32 {vr(TR['v']+TR['b'])}, {vr(TR['v']+TR['b'])}, {vr(TR['v']+7)}, vcc")
    a(f"v_subrev_u32 {vr(TR['v']+6)}, 1, {vr(TR['v']+6)}")
    a("s_barrier")
    a(f"s_memrealtime {sr(TR['t'],2)}")
def tb_reset():
    if TR: a(f"v_subrev_u32 {vr(TR['v']+6)}, 1, {vr(vl)}")
def tb_out():
    if not TR: return
    a(f"s_lshl_b32 {sr(st[0])}, s2, 3")
    a(f"s_add_u32 {sr(st[0])}, {sr(st[0])}, {sr(s_w)}")
    a(f"s_lshl_b32 {sr(st[0])}, {sr(st[0])}, 11")
    a(f"s_add_u32 {sr(st[0])}, {sr(st[0])}, {WS['STAMP']+MB}")
    a(f"v_lshl_add_u32 {vr(vt[0])}, {vr(vl)}, 2, {sr(st[0])}")
    for i in range(8): a(f"global_store_dword {vr(vt[0])}, {vr(TR['v']+i)}, {sr(P['ws'],2)} offset:{256*i}")
    TR.clear()
def pack16(src, dst):
    for i in range(8): a(f"v_cvt_pk_bf16_f32 {vr(dst+i)}, {vr(src+2*i)}, {vr(src+2*i+1)}")
def swap8(p):
    for h in range(2):
        a(f"v_permlane32_swap_b32 {vr(p+4*h)}, {vr(p+4*h+2)}")
        a(f"v_permlane32_swap_b32 {vr(p+4*h+1)}, {vr(p+4*h+3)}")
def unpack8(p, dst):
    for i in range(8):
        a(f"v_lshlrev_b32 {vr(dst+2*i)}, 16, {vr(p+i)}")
        a(f"v_and_b32 {vr(dst+2*i+1)}, 0xffff0000, {vr(p+i)}")
def wave_sum(vs, t, full=True):
    for m in ("quad_perm:[1,0,3,2]", "quad_perm:[2,3,0,1]", "row_half_mirror", "row_mirror"):
        for v in vs: a(f"v_add_f32_dpp {vr(v)}, {vr(v)}, {vr(v)} {m} row_mask:0xf bank_mask:0xf")
    for op in ("v_permlane16_swap_b32", "v_permlane32_swap_b32")[:2 if full else 1]:
        for i, v in enumerate(vs): a(f"v_mov_b32 {vr(t+i)}, {vr(v)}")
        for i, v in enumerate(vs): a(f"{op} {vr(v)}, {vr(t+i)}")
        for i, v in enumerate(vs): a(f"v_add_f32 {vr(v)}, {vr(v)}, {vr(t+i)}")
NREP = 4
def signal(kind, grp, pre=None):
    a(f"s_lshl_b32 {sr(st[0])}, {sr(grp)}, 11")
    if pre: a(pre)
    for r in range(NREP): a(f"s_atomic_add {sr(s_one)}, {sr(sF,2)}, {sr(st[0])} offset:{kind*32768+128*r}")
def arrive(kind, grp):
    L = lab("arr")
    a(f"v_mov_b32 {vr(vt[0])}, {M_CNT+4*kind}")
    a(f"v_mov_b32 {vr(vt[1])}, 1")
    a("s_mov_b64 exec, 1")
    a("s_waitcnt vmcnt(0)")
    a(f"ds_add_rtn_u32 {vr(vt[2])}, {vr(vt[0])}, {vr(vt[1])}")
    a("s_waitcnt lgkmcnt(0)")
    a(f"v_readfirstlane_b32 {sr(st[0])}, {vr(vt[2])}")
    a("s_mov_b64 exec, -1")
    a(f"s_cmp_lg_u32 {sr(st[0])}, 3")
    a(f"s_cbranch_scc1 {L}")
    signal(kind, grp)
    a(f"{L}:")
def HM(): return 4 if OPT.get('late') == 2 else 1
def handoff(kind):
    if not OPT.get("late"):
        a("s_barrier"); arrive(kind, s_mi); return
    if OPT["late"] == 2:
        a("s_barrier"); signal(kind, s_mi, pre="s_waitcnt vmcnt(0)"); return
    L = lab("ho")
    a("s_waitcnt vmcnt(0)")
    a("s_barrier")
    a(f"s_cmp_lg_u32 {sr(s_w)}, 0"); a(f"s_cbranch_scc1 {L}")
    signal(kind, s_mi)
    a(f"{L}:")
def ctr_off(d, grp, rep):
    a(f"s_and_b32 {sr(d)}, {sr(rep)}, {NREP-1}")
    a(f"s_lshl4_add_u32 {sr(d)}, {sr(grp)}, {sr(d)}")
    a(f"s_lshl_b32 {sr(d)}, {sr(d)}, 7")
def poll(kind, grp, rep, n, bar=None, lazy=None, second=None):
    L = lab("poll"); D = lab("pdone")
    ctr_off(st[0], grp, rep)
    if second: ctr_off(st[2], second[1], second[2])
    a(f"{L}:")
    a(f"s_load_dword {sr(s_pv)}, {sr(sF,2)}, {sr(st[0])} offset:{kind*32768} glc")
    if second: a(f"s_load_dword {sr(s_pv+1)}, {sr(sF,2)}, {sr(st[2])} offset:{second[0]*32768} glc")
    if bar: bar()
    a(f"s_sub_u32 {sr(s_to)}, {sr(s_to)}, 1")
    a("s_waitcnt lgkmcnt(0)")
    a(f"s_cbranch_scc1 {D}")
    if second: a(f"s_min_u32 {sr(s_pv)}, {sr(s_pv)}, {sr(s_pv+1)}")
    if lazy:
        Z = lab("pz")
        a(f"s_cmp_lg_u32 {sr(s_pv)}, 0"); a(f"s_cbranch_scc1 {Z}"); a(f"s_sleep {lazy}"); a(f"{Z}:")
    a(f"s_cmp_lt_u32 {sr(s_pv)}, {n}")
    a(f"s_cbranch_scc1 {L}")
    a(f"{D}:")
    a(f"s_max_i32 {sr(s_to)}, {sr(s_to)}, 0")

class Ph:
    def __init__(s, name, NT, mf, am, lda, wm_, ldw, nseg, lead, nc, force=True):
        s.name, s.NT, s.mf, s.am, s.lda, s.wm, s.ldw, s.nseg, s.lead, s.nc, s.force = name, NT, mf, am, lda, wm_, ldw, nseg, lead, nc, force
        s.ld = {}
P1K = Ph("kv", 16, 16, 'row', 2048, 'sub', 6144, 2, 2, 4, force=False);  P1K.segoff = 2048
P1Q = Ph("q",  16, 16, 'row', 2048, 'sub', 6144, 1, 2, 4, force=False)
P2  = Ph("wo", 16, 16, 'frag', 0, 'sub', 2048, 1, 2, 4, force=False)
P3  = Ph("z2", 16, 16, 'frag', 0, 'seg', 7168, 2, 2, 4, force=False);    P3.segoff = 128
P4  = Ph("z1", 16, 16, 'frag', 0, 'seg', 7168, 2, 2, 4, force=False);    P4.segoff = 128
P5  = Ph("sp", 32, 16, 'row', 4096, 'blk', 0, 2, 2, 4, force=False)
P6  = Ph("out", 28, 16, 'frag', 0, 'sub', 2048, 1, 2, 4, force=False)
for _p, _b in zip((P1K, P1Q, P2, P3, P4, P5, P6), (0, 16, 32, 48, 64, 80, 112)): _p.base = _b

def order_list(ph, c):
    G = OPT.get('grp'+ph.name, 0); NT = ph.NT >> G
    lead = OPT.get('lead'+ph.name, ph.lead); force = OPT.get('force'+ph.name, ph.force)
    kl = c; kf = 1 if c == 0 else 0; ks = ph.nc if c == 0 else c; out = []
    for i in range(NT):
        t = min(kf + (NT if (i == 0 and force) else lead), NT-1)
        if kl <= t: out.append(kl); kl += ph.nc
        else:
            out.append(kf); kf += 1
        if kf == ks: kf += 1; ks += ph.nc
    assert sorted(out) == list(range(NT))
    if OPT.get('zero'+ph.name) and out[0] != 0:
        assert out[1] == 0; out[0], out[1] = out[1], out[0]
    return [(k << G) + b for k in out for b in range(1 << G)]
def special_list(ph):
    rel = (lambda c, b: 2*c+b) if OPT.get('grp'+ph.name, 0) else (lambda c, b: c+4*b)
    return [order_list(ph, c).index(rel(c, b)) for b in range(2) for c in range(4)]
def special_pos(ph, bit_src, dst):
    pos = special_list(ph)
    tab = sum(p << (4*i) for i, p in enumerate(pos))
    a(f"s_sub_u32 {sr(st[0])}, {sr(s_mi)}, {sr(s_c8)}")
    a(f"s_and_b32 {sr(st[0])}, {sr(st[0])}, 3")
    a(f"s_and_b32 {sr(dst)}, {sr(bit_src)}, 4")
    a(f"s_add_u32 {sr(st[0])}, {sr(st[0])}, {sr(dst)}")
    a(f"s_lshl_b32 {sr(st[0])}, {sr(st[0])}, 2")
    a(f"s_lshr_b32 {sr(dst)}, {tab:#x}, {sr(st[0])}")
    a(f"s_and_b32 {sr(dst)}, {sr(dst)}, 15")
    return max(pos)
def order_table(ph, dst, mul, lane_off):
    shift = 0
    if OPT.get("reuse", 3) & {P1Q: 1, P4: 2}.get(ph, 0):
        ph = {P1Q: P1K, P4: P3}[ph]; shift = 4
    ph.nc = OPT.get('nc'+ph.name, ph.nc); ph.lead = OPT.get('lead'+ph.name, ph.lead); ph.force = OPT.get('force'+ph.name, ph.force)
    NT, nc, lead = ph.NT, ph.nc, ph.lead
    c, rot = st[1], st[2]
    if nc in (2, 4):
        a(f"s_sub_u32 {sr(c)}, {sr(s_mi)}, {sr(s_c8)}"); a(f"s_and_b32 {sr(c)}, {sr(c)}, {nc-1}")
    else: a(f"s_mov_b32 {sr(c)}, {sr(s_c8)}")
    if ph is P1K:
        a(f"s_xor_b32 {sr(rot)}, {sr(s_mi)}, {sr(s_nj)}"); a(f"s_and_b32 {sr(rot)}, {sr(rot)}, 8")
    elif ph is P5:
        a(f"s_and_b32 {sr(rot)}, {sr(s_mi)}, 12"); a(f"s_lshl_b32 {sr(rot)}, {sr(rot)}, 1")
    elif OPT.get('rmul'+ph.name):
        a(f"s_and_b32 {sr(rot)}, {sr(s_mi)}, 3"); a(f"s_mul_i32 {sr(rot)}, {sr(rot)}, {OPT['rmul'+ph.name]}")
    else: a(f"s_and_b32 {sr(rot)}, {sr(s_mi)}, {8 if ph is P3 else OPT.get('rot'+ph.name, 0)}")
    mg = (1024 + nc - 1)//nc
    a(f"s_sub_u32 {sr(c)}, {nc}, {sr(c)}")
    l1, l0, lf, y, t = vt[0], vt[1], vt[2], vt[3], vt[4]
    G = OPT.get('grp'+ph.name, 0); NTs = NT >> G; kk = vl
    if G: kk = dst; a(f"v_lshrrev_b32 {vr(kk)}, {G}, {vr(vl)}")
    def Lq(d, x, add, clamp):
        if clamp:
            a(f"v_add_u32 {vr(d)}, {add}, {vr(x)}"); a(f"v_min_u32 {vr(d)}, {NTs-1}, {vr(d)}"); a(f"v_add_u32 {vr(d)}, {sr(c)}, {vr(d)}")
        elif add: a(f"v_add3_u32 {vr(d)}, {vr(x)}, {sr(c)}, {add}")
        else: a(f"v_add_u32 {vr(d)}, {sr(c)}, {vr(x)}")
        if nc & (nc-1): a(f"v_mul_u32_u24 {vr(d)}, {mg}, {vr(d)}"); a(f"v_lshrrev_b32 {vr(d)}, 10, {vr(d)}")
        else: a(f"v_lshrrev_b32 {vr(d)}, {nc.bit_length()-1}, {vr(d)}")
    Lq(l1, kk, -1, False); Lq(l0, kk, 0, False); Lq(lf, kk, lead, True)
    if ph.force: a(f"v_max_u32 {vr(lf)}, 1, {vr(lf)}")
    a(f"v_sub_u32 {vr(lf)}, {vr(lf)}, {vr(l1)}")
    a(f"v_add_u32 {vr(lf)}, {vr(lf)}, {vr(kk)}")
    a(f"v_subrev_u32 {vr(y)}, {lead}, {vr(kk)}"); a(f"v_max_i32 {vr(y)}, 0, {vr(y)}")
    Lq(t, y, -1, False)
    a(f"v_sub_u32 {vr(y)}, {vr(y)}, {vr(t)}")
    a(f"v_add_u32 {vr(y)}, {vr(y)}, {vr(l1)}")
    if ph.force:
        a(f"v_cmp_eq_u32 vcc, 0, {vr(l1)}"); a(f"v_cndmask_b32 {vr(y)}, {vr(y)}, {vr(l1)}, vcc")
    a(f"v_cmp_ne_u32 vcc, {vr(l0)}, {vr(l1)}")
    a(f"v_cndmask_b32 {vr(y)}, {vr(lf)}, {vr(y)}, vcc")
    if OPT.get('zero'+ph.name):
        a(f"v_max_u32 {vr(y)}, 1, {vr(y)}")
        for b in range(1 << G): a(f"v_writelane_b32 {vr(y)}, 0, {b}")
    if G:
        a(f"v_and_b32 {vr(l0)}, {(1 << G)-1}, {vr(vl)}"); a(f"v_lshl_add_u32 {vr(y)}, {vr(y)}, {G}, {vr(l0)}")
    if shift:
        a(f"v_add_u32 {vr(y)}, {shift}, {vr(y)}"); a(f"v_and_b32 {vr(y)}, 15, {vr(y)}")
    a(f"v_cmp_gt_u32 vcc, {NT}, {vr(vl)}")
    a(f"v_cndmask_b32 {vr(y)}, {vr(vl)}, {vr(y)}, vcc")
    a(f"v_add_lshl_u32 {vr(y)}, {vr(y)}, {lane_off & 63}, 2")
    a(f"v_add_u32 {vr(t)}, {sr(rot)}, {vr(vl)}")
    if NT & (NT-1) == 0: a(f"v_and_b32 {vr(t)}, {NT-1}, {vr(t)}")
    else:
        a(f"v_subrev_u32 {vr(l0)}, {NT}, {vr(t)}"); a(f"v_min_u32 {vr(t)}, {vr(t)}, {vr(l0)}")
    a(f"v_mul_u32_u24 {vr(t)}, {mul}, {vr(t)}")
    a(f"ds_permute_b32 {vr(dst)}, {vr(y)}, {vr(t)}")

class Loader:
    def __init__(s, kind):
        s.kind = kind
        s.slot, s.off, s.j = [S.alloc() for _ in range(3)]
        s.d = [S.alloc(4, 4) for _ in range(4)]
        s.v = [V.alloc(16) for _ in range(4)]; s.tab = [V.alloc() for _ in range(4)]
        s.off2 = S.alloc(); s.cnt = S.alloc()
    def cap(s, ph): return 4 if s.kind == 'A' else 10//ph.nseg
    def ninst(s, ph): return 8 if s.kind == 'A' else 8*ph.nseg
    def lin(s, ph): return (ph.am == 'frag') if s.kind == 'A' else (ph.wm == 'blk')
    def setup(s, ph, i, only_table=False):
        ph.ld[s.kind] = i
        v = s.v[i]; d = s.d[i]
        mul = 16384 if s.lin(ph) else 128 if s.kind == 'A' else 64*ph.ldw
        order_table(ph, s.tab[i], mul, 0)
        if only_table: return
        if s.kind == 'A':
            if ph.am == 'row':
                def mk():
                    a(f"s_mul_i32 {sr(st[0])}, {sr(s_mi)}, {128*ph.lda}")
                    srd("x" if ph is not P5 else "w_sp", 0, 128*ph.lda, soff=st[0], d=d)
                a(f"""v_lshrrev_b32 {vr(vt[0])}, 3, {vr(vl)}
                      v_lshl_add_u32 {vr(vt[0])}, {sr(s_lw)}, 6, {vr(vt[0])}
                      v_mul_u32_u24 {vr(vt[0])}, {ph.lda}, {vr(vt[0])}
                      v_lshrrev_b32 {vr(vt[2])}, 4, {vr(vl)}
                      v_and_b32 {vr(vt[1])}, 7, {vr(vl)}
                      v_xor_b32 {vr(vt[1])}, {vr(vt[1])}, {vr(vt[2])}
                      v_lshl_add_u32 {vr(v)}, {vr(vt[1])}, 4, {vr(vt[0])}
                      v_xor_b32 {vr(v+1)}, 64, {vr(v)}
                      v_add_u32 {vr(v+1)}, {8*ph.lda-1024}, {vr(v+1)}
                      v_add_u32 {vr(v+2)}, {16*ph.lda-2048}, {vr(v)}
                      v_add_u32 {vr(v+3)}, {16*ph.lda-2048}, {vr(v+1)}""")
                steps = [32*ph.lda]
            else:
                base = {P2: "O", P3: "H", P4: "H", P6: "P"}[ph]
                def mk():
                    a(f"s_mul_i32 {sr(st[0])}, {sr(s_mi)}, {ph.NT*16384}")
                    srd("ws", WS[base], ph.NT*16384, soff=st[0], d=d)
                a(f"s_lshl_b32 {sr(st[0])}, {sr(s_lw)}, 13")
                a(f"v_lshl_add_u32 {vr(v)}, {vr(vl)}, 4, {sr(st[0])}")
        else:
            if ph.wm == 'blk':
                def mk():
                    a(f"s_lshl_b32 {sr(st[0])}, {sr(s_n7)}, 19")
                    srd("ws", WS["Z2N"], 32*16384, soff=st[0], d=d)
                a(f"v_lshlrev_b32 {vr(v)}, 4, {vr(vl)}")
            else:
                ptr, col0, n, sh = {P1K: ("wqkv", 2048, s_nj, 7), P1Q: ("wqkv", 0, s_nj, 7), P2: ("wo", 0, s_nj, 7),
                                    P3: ("w_in", 3584, s_n7, 8), P4: ("w_in", 0, s_n7, 8), P6: ("w_out", 0, s_nj, 7)}[ph]
                def mk():
                    a(f"s_lshl_b32 {sr(st[0])}, {sr(n)}, {sh}")
                    srd(ptr, col0, 0, soff=st[0], d=d)
                    a(f"s_sub_u32 {sr(d+2)}, {ph.NT*64*ph.ldw-col0}, {sr(st[0])}")
                a(f"v_lshrrev_b32 {vr(vt[0])}, 3, {vr(vl)}")
                if ph.am == 'row':
                    a(f"v_lshrrev_b32 {vr(vt[2])}, 2, {vr(vl)}"); a(f"v_and_b32 {vr(vt[2])}, 4, {vr(vt[2])}")
                else:
                    a(f"v_and_b32 {vr(vt[2])}, 6, {vr(vt[0])}")
                a(f"""v_mul_u32_u24 {vr(vt[0])}, {ph.ldw}, {vr(vt[0])}
                      v_and_b32 {vr(vt[1])}, 7, {vr(vl)}
                      v_xor_b32 {vr(vt[1])}, {vr(vt[1])}, {vr(vt[2])}
                      v_lshl_add_u32 {vr(v)}, {vr(vt[1])}, 4, {vr(vt[0])}""")
                if ph.am == 'row':
                    a(f"v_xor_b32 {vr(v+1)}, 32, {vr(v)}"); a(f"v_add_u32 {vr(v+1)}, {8*ph.ldw-1024}, {vr(v+1)}")
                else: a(f"v_add_u32 {vr(v+1)}, {8*ph.ldw-1024}, {vr(v)}")
                a(f"v_add_u32 {vr(v+2)}, {16*ph.ldw-2048}, {vr(v)}")
                a(f"v_add_u32 {vr(v+3)}, {16*ph.ldw-2048}, {vr(v+1)}")
                steps = [32*ph.ldw] + ([ph.segoff, ph.segoff+32*ph.ldw] if ph.nseg == 2 else [])
        for g in range(1, s.ninst(ph)//4):
            if s.lin(ph): a(f"v_add_u32 {vr(v+g)}, {4096*g}, {vr(v)}")
            else:
                for j in range(4): a(f"v_add_u32 {vr(v+4*g+j)}, {steps[g-1]}, {vr(v+j)}")
        a("s_waitcnt lgkmcnt(0)")
        mk()
    def begin(s, ph):
        if s.kind == 'A': a(f"s_lshl_b32 {sr(s.slot)}, {sr(s_lw)}, 13")
        else: a(f"s_mov_b32 {sr(s.slot)}, {W_RING}")
        a(f"s_mov_b32 {sr(s.j)}, 0")
        a(f"s_mov_b32 m0, {sr(s.slot)}")
        a("s_waitcnt lgkmcnt(0)")
        a(f"v_readlane_b32 {sr(s.off)}, {vr(s.tab[ph.ld[s.kind]])}, 0")
        a("s_nop 4")
    def issue(s, ph, barat=None, count=False):
        i = ph.ld[s.kind]; v = s.v[i]; d = s.d[i]; ng = s.ninst(ph)//4; lin = s.lin(ph)
        pol = " sc1" if lin else ""
        if s.kind == 'A': b = [f"s_add_u32 {sr(s.slot)}, {sr(s.slot)}, 16384", f"s_and_b32 {sr(s.slot)}, {sr(s.slot)}, 0xffff"]
        else: b = [f"s_add_u32 {sr(s.slot)}, {sr(s.slot)}, {8192*ph.nseg}", f"s_cmp_eq_u32 {sr(s.slot)}, {MISC}", f"s_cselect_b32 {sr(s.slot)}, {W_RING}, {sr(s.slot)}"]
        c = [f"s_add_u32 {sr(s.j)}, {sr(s.j)}, 1", f"v_readlane_b32 {sr(s.off2)}, {vr(s.tab[i])}, {sr(s.j)}"]
        e = [f"s_sub_u32 {sr(s.cnt)}, {sr(s.cnt)}, 1", f"s_cmp_lg_u32 {sr(s.cnt)}, 0"] if count else []
        bursts = [c + b + e] if ng == 2 else [b, c, e]
        for g in range(ng):
            for j in range(4):
                if barat == 4*g+j: BAR()
                a(f"buffer_load_dwordx4 {vr(v+g if lin else v+4*g+j)}, {sr(d,4)}, {sr(s.off)} offen offset:{1024*j}{pol} lds")
            if g < ng-1:
                a("s_add_u32 m0, m0, 4096")
                for x in bursts[g]: a(x)
        a(f"s_mov_b32 m0, {sr(s.slot)}")
        a(f"s_mov_b32 {sr(s.off)}, {sr(s.off2)}")
    def rep(s, n, body):
        if n == 1: body(False); return
        L = lab("ll")
        a(f"s_mov_b32 {sr(s.cnt)}, {n}")
        a(f"{L}:")
        body(True)
        a(f"s_cbranch_scc1 {L}")
    def count(s):
        a(f"s_sub_u32 {sr(s.cnt)}, {sr(s.cnt)}, 1")
        a(f"s_cmp_lg_u32 {sr(s.cnt)}, 0")
    def prefill(s, ph, pre):
        s.rep(pre, lambda lp: s.issue(ph, count=lp))
    def run(s, ph, pre, maxper=2, nxt=None, npf=0, cap=None, last=None):
        n = ph.NT; issued = pre; ni = s.ninst(ph); cap = cap or s.cap(ph)
        after = lambda t: min(63, ni*(issued-t-1))
        H = OPT.get("shift", 2)
        iv = []; w = after(0)
        for t in range(-1, n-1):
            new = 0
            while issued < n and (new < maxper or issued <= t+2) and issued - max(t, 0) < cap: new += 1; issued += 1
            iv.append((w, new, t+1 < npf, H if t >= 0 else 0))
            if t < n-2:
                assert issued > t+2
                w = after(t+2)
        assert issued == n
        i = 0
        while i < len(iv):
            j = i
            while j < len(iv) and iv[j] == iv[i]: j += 1
            def body(lp, x=iv[i]):
                a(f"s_waitcnt vmcnt({x[0]})")
                if x[1] == 0: BAR()
                inl = lp and x[1] and not x[2]
                for k in range(x[1]): s.issue(ph, barat=(x[3] if k == 0 else None), count=(inl and k == x[1]-1))
                if lp and not inl: s.count()
            s.rep(j-i, body)
            i = j
        if nxt: nxt()
        if last: last()
        BAR()

class Addr:
    def __init__(s, ph, vA, vW, bufs):
        s.ph = ph; s.vA = vA; s.vW = vW; s.bufs = bufs
        if ph.mf == 32:
            s.TM, s.TN, s.NS = 2, ph.nseg, 4; s.nA = 4; s.nW = 1
        else:
            s.TM, s.TN, s.NS = 4, 2*ph.nseg, 2
            s.nA = 2 if ph.am == 'row' else 1
            s.nW = 4 if ph.wm == 'seg' else 2
        s.full = ph.mf == 16 and ph.nseg == 1
    def init(s):
        ph = s.ph
        r_, g_ = (v_r, v_hf) if ph.mf == 32 else (v_r16, v_g)
        a(f"s_lshl_b32 {sr(st[0])}, {sr(s_wm)}, 13")
        if ph.am == 'row':
            a(f"""v_bfe_u32 {vr(vt[2])}, {vr(r_)}, 1, 3
                  v_xor_b32 {vr(vt[2])}, {vr(vt[2])}, {vr(g_)}
                  v_lshlrev_b32 {vr(vt[2])}, 4, {vr(vt[2])}
                  v_lshl_add_u32 {vr(vt[2])}, {vr(r_)}, 7, {vr(vt[2])}
                  v_add_u32 {vr(s.vA)}, {sr(st[0])}, {vr(vt[2])}""")
            for ks in range(1, s.nA): a(f"v_xor_b32 {vr(s.vA+ks)}, {ks*128//s.nA}, {vr(s.vA)}")
        else:
            a(f"v_lshl_add_u32 {vr(s.vA)}, {vr(vl)}, 4, {sr(st[0])}")
        a(f"v_lshrrev_b32 {vr(vt[2])}, 2, {vr(v_r16)}")
        if ph.am == 'row' and ph.wm == 'sub':
            a(f"""v_lshl_add_u32 {vr(vt[2])}, {vr(v_g)}, 3, {vr(vt[2])}
                  v_lshlrev_b32 {vr(vt[2])}, 7, {vr(vt[2])}
                  v_bfe_u32 {vr(vt[3])}, {vr(vl)}, 4, 1
                  v_lshl_add_u32 {vr(vt[2])}, {vr(vt[3])}, 5, {vr(vt[2])}
                  v_bfe_u32 {vr(vt[3])}, {vr(vl)}, 3, 1
                  v_lshl_add_u32 {vr(vt[2])}, {vr(vt[3])}, 6, {vr(vt[2])}
                  v_and_b32 {vr(vt[3])}, 3, {vr(vl)}
                  v_lshl_add_u32 {vr(vt[2])}, {vr(vt[3])}, 3, {vr(vt[2])}""")
        elif ph.wm == 'blk':
            a(f"""v_lshl_add_u32 {vr(vt[2])}, {vr(v_g)}, 3, {vr(vt[2])}
                  v_bfe_u32 {vr(vt[3])}, {vr(vl)}, 1, 1
                  v_lshl_add_u32 {vr(vt[2])}, {vr(vt[3])}, 2, {vr(vt[2])}
                  v_lshlrev_b32 {vr(vt[2])}, 4, {vr(vt[2])}
                  v_lshl_add_u32 {vr(vt[2])}, {vr(vt[3])}, 10, {vr(vt[2])}
                  v_and_b32 {vr(vt[3])}, 1, {vr(vl)}
                  v_lshl_add_u32 {vr(vt[2])}, {vr(vt[3])}, 3, {vr(vt[2])}""")
        else:
            a(f"""v_lshl_add_u32 {vr(vt[2])}, {vr(v_g)}, 2, {vr(vt[2])}
                  v_bfe_u32 {vr(vt[3])}, {vr(vt[2])}, 1, 2
                  v_lshlrev_b32 {vr(vt[2])}, 7, {vr(vt[2])}
                  v_lshl_add_u32 {vr(vt[2])}, {vr(vt[3])}, 5, {vr(vt[2])}
                  v_and_b32 {vr(vt[3])}, 3, {vr(vl)}
                  v_lshl_add_u32 {vr(vt[2])}, {vr(vt[3])}, 3, {vr(vt[2])}""")
        if ph.wm == 'sub':
            a(f"s_lshl_b32 {sr(st[0])}, {sr(s_wn)}, 6")
            a(f"v_xor_b32 {vr(vt[2])}, {sr(st[0])}, {vr(vt[2])}")
            a(f"v_add_u32 {vr(s.vW)}, {W_RING}, {vr(vt[2])}")
        else:
            a(f"s_lshl_b32 {sr(st[0])}, {sr(s_wn)}, 13")
            a(f"s_add_u32 {sr(st[0])}, {sr(st[0])}, {W_RING}")
            a(f"v_add_u32 {vr(s.vW)}, {sr(st[0])}, {vr(vt[2])}")
        for j in range(1, s.nW): a(f"v_xor_b32 {vr(s.vW+j)}, {64 if ph.wm == 'blk' else 32*j}, {vr(s.vW)}")
        a(f"v_mov_b32 {vr(v_bA)}, {vr(s.vA)}")
        a(f"v_mov_b32 {vr(v_bW)}, {vr(s.vW)}")
        a(f"s_mov_b32 {sr(s_ra)}, 0")
        a(f"s_mov_b32 {sr(s_rw)}, 0")
    def rewind(s):
        a(f"s_mov_b32 {sr(s_ra)}, 0"); a(f"s_mov_b32 {sr(s_rw)}, 0")
        sal, uA, uW = s.upd()
        for x in uA + uW: a(x)
    def fa(s, b, ks, i):
        if s.ph.mf == 32: return s.bufs[0]+8*ks+4*i
        if s.full: return s.bufs[b]+24*ks+4*i
        return s.bufs[0]+32*ks+4*i
    def fw(s, b, ks, j):
        if s.ph.mf == 32: return s.bufs[0]+32+8*ks+4*j
        if s.full: return s.bufs[b]+24*ks+16+4*j
        return s.bufs[0]+32*ks+16+4*j
    def rdA(s, b, ks, i):
        ph = s.ph
        if ph.mf == 32: ad, off = s.vA+ks, i*4096
        elif ph.am == 'row': ad, off = s.vA+ks, i*2048
        else: ad, off = s.vA, i*2048+ks*1024
        return [(s.fa(b,ks,i), f"ds_read_b128 {vr(s.fa(b,ks,i),4)}, {vr(ad)} offset:{off}")]
    def rdW(s, b, ks, j):
        ph = s.ph; out = []
        for h in range(2):
            if ph.am == 'row' and ph.wm == 'sub': ad, off = s.vW+(j&1), (j>>1)*8192+ks*4096+h*512
            elif ph.wm == 'blk': ad, off = s.vW+h, j*2048+ks*512
            else: ad, off = s.vW+j, ks*4096+h*2048
            out.append((s.fw(b,ks,j), f"ds_read_b64_tr_b16 {vr(s.fw(b,ks,j)+2*h,2)}, {vr(ad)} offset:{off}"))
        return out
    def reads(s, b, ks):
        out = s.rdW(b, ks, 0)
        for i in range(s.TM): out += s.rdA(b, ks, i)
        for j in range(1, s.TN): out += s.rdW(b, ks, j)
        return out
    def reads_full(s, b):
        out = s.rdW(b, 0, 0) + s.rdA(b, 0, 0) + s.rdW(b, 1, 0) + s.rdA(b, 1, 0)
        for i in range(1, 4): out += s.rdA(b, 0, i) + s.rdA(b, 1, i)
        return out + s.rdW(b, 0, 1) + s.rdW(b, 1, 1)
    def pending(s, b):
        if s.ph.mf == 32: return s.reads(b, 0) + s.reads(b, 1)
        return s.reads_full(b) if s.full else s.reads(b, 0)
    def upd(s):
        n = s.ph.nseg
        sal = [f"s_add_u32 {sr(s_ra)}, {sr(s_ra)}, 16384", f"s_and_b32 {sr(s_ra)}, {sr(s_ra)}, 0xffff",
               f"s_add_u32 {sr(s_rw)}, {sr(s_rw)}, {8192*n}", [f"s_cmp_eq_u32 {sr(s_rw)}, 81920", f"s_cselect_b32 {sr(s_rw)}, 0, {sr(s_rw)}"]]
        uA = [f"v_add_u32 {vr(s.vA)}, {sr(s_ra)}, {vr(v_bA)}"] + [f"v_xor_b32 {vr(s.vA+k)}, {k*128//s.nA}, {vr(s.vA)}" for k in range(1, s.nA)]
        uW = [f"v_add_u32 {vr(s.vW)}, {sr(s_rw)}, {vr(v_bW)}"] + [f"v_xor_b32 {vr(s.vW+j)}, {64 if s.ph.wm == 'blk' else 32*j}, {vr(s.vW)}" for j in range(1, s.nW)]
        return sal, uA, uW
    def first(s):
        a("s_waitcnt lgkmcnt(0)")
        if OPT.get("fst"): stamp(26 + [P1Q, P4, P5].index(s.ph)) if s.ph in (P1Q, P4, P5) else None
        a("s_barrier")
        if OPT.get("fst"): stamp(40 + [P1Q, P4, P5].index(s.ph)) if s.ph in (P1Q, P4, P5) else None
        for k, (_, x) in enumerate(s.pending(0)):
            a(x)
            if OPT.get("fsp") == 1: a("s_nop 0"); a("s_nop 0")
            if OPT.get("fsp") == 2 and k % 4 == 3: a("s_nop 3"); a("s_nop 3")
        sal, uA, uW = s.upd()
        flat = sal[:3] + sal[3]
        for x in flat: a(x)
        if s.full:
            for x in uA + uW + flat: a(x)
    def tile(s, acc, swap=None, last=False, cs=None, csmode='lane', vm0=False, zero=False, b=0, tail=(), dots=None, cin=None, fin=None, rate=2):
        ph = s.ph; TM, TN = s.TM, s.TN
        op, AR = (MF, 16) if ph.mf == 32 else (MF16, 4)
        swap = swap or [0]*TN
        def mm(ks, j, i):
            d = acc+(i*TN+j)*AR; x, y = s.fw(b,ks,j), s.fa(b,ks,i)
            c = '0' if (zero and ks == 0) else vr(cin+4*i, AR) if (cin is not None and ks == 0) else vr(d, AR)
            t = f"{op} {vr(d,AR)}, {vr(y,4)}, {vr(x,4)}, {c}" if swap[j] else f"{op} {vr(d,AR)}, {vr(x,4)}, {vr(y,4)}, {c}"
            return (t, (x, y))
        def cm(ks, j):
            d = cs+AR*j; w = s.fw(b,ks,j)
            if csmode == 'lane': return (f"{op} {vr(d,AR)}, {vr(v_ones,4)}, {vr(w,4)}, {'0' if ks == 0 else vr(d,AR)}", (w,))
            return (f"{op} {vr(d,AR)}, {vr(w,4)}, {vr(v_ones,4)}, {vr(d,AR)}", (w,))
        sal, uA, uW = s.upd()
        bar = [(["s_waitcnt vmcnt(0)"] if vm0 else []) + ["s_barrier"]]
        def step(ks):
            m = []
            for j in range(TN):
                for i in (range(TM) if j % 2 == 0 else reversed(range(TM))): m.append(mm(ks, j, i))
                if cs is not None: m.append(cm(ks, j))
            return m
        N = lambda x: [] if last else x
        if ph.mf == 32:
            stages = [(step(0), s.reads(b,2) + N(uA[:2])),
                      (step(1), s.reads(b,3) + N(uW + uA[2:])),
                      (step(2), N(bar + s.reads(b,0) + sal[:2])),
                      (step(3), N(s.reads(b,1) + sal[2:]) + list(tail))]
        elif not s.full:
            if OPT.get("sched", 1) and not last and len(tail) <= 1:
                r0 = s.reads(b, 0); fl = sal[:3] + sal[3]
                st1 = bar + r0[:4] + [[r0[4+k], fl[k]] for k in range(5)] + r0[9:] + [x for t in tail for x in t]
                st1 += [[]]*(16-len(st1))
                stages = [(step(0), s.reads(b,1) + uA + uW), (step(1), st1)]
            else:
                stages = [(step(0), s.reads(b,1) + N(uA + uW)),
                          (step(1), N(bar + s.reads(b,0) + sal) + list(tail))]
        else:
            m = [mm(ks, j, i) for j in range(TN) for i in (range(TM) if j % 2 == 0 else reversed(range(TM))) for ks in range(2)]
            if OPT.get("sched", 1) and not last:
                rf = s.reads_full(b^1); fl = sal[:3] + sal[3]; up = uA + uW
                st1 = bar + [[rf[0], rf[1]], [rf[2], rf[3]], [rf[4], rf[5]], [rf[6], rf[7]], rf[8], rf[9], rf[10], rf[11], [rf[12], rf[13]], [rf[14], rf[15]],
                             up[:2], up[2:] + fl[:3-len(up[2:])+1], fl[3-len(up[2:])+1:], [x for t in tail for x in t], []]
                stages = [(m, st1)]
            else:
                stages = [(m, N(bar + s.reads_full(b^1) + uA + uW + sal) + list(tail))]
        if fin:
            m = [mm(ks, j, i) for i in range(4) for j in range(TN) for ks in (range(2) if s.full else (1,))]
            fl = [[] for _ in range(16)]; q = []
            for k in range(16):
                if k >= 6 and (k-6) % 4 == 0: q += fin((k-6)//4, True)
                fl[k], q = q[:rate], q[rate:]
            fl[15] += q + fin(3, False)
            stages[-1] = (m, fl)
        rdone = False
        fifo = [r for r, _ in s.pending(b)]
        def wait_for(need):
            nonlocal fifo
            pos = max([i for i, r in enumerate(fifo) if r in need], default=-1)
            if pos >= 0:
                a(f"s_waitcnt lgkmcnt({min(15, len(fifo)-pos-1)})"); fifo = fifo[pos+1:]
        def put(f):
            if isinstance(f, tuple):
                if f[0] == 'wait': wait_for((f[1],))
                else: fifo.append(f[0]); a(f[1])
            elif isinstance(f, list):
                for x in f: put(x)
            else: a(f)
        for si, stg in enumerate(stages):
            m, fill = stg[0], list(stg[1]); extra = list(stg[2]) if len(stg) > 2 else []
            n = len(m); base, rem = divmod(len(fill), n)
            if ph.mf == 32: cnts = [-(-len(fill)//n)]*n
            elif base == 0: cnts = [1]*n
            else:
                cnts = [(len(fill)*(k+1))//n - (len(fill)*k)//n for k in range(n)]
            for k, (t, need) in enumerate(m):
                if ph.mf == 16 and OPT.get("coarse", 1):
                    grp = (4, n) if not s.full else (2, 8, n)
                    hi = min(g for g in grp if g > k)
                    if OPT.get("shift", 2) and k == 0 and si == len(stages)-1: hi = n
                    need = set().union(*[set(x[1]) for x in m[k:hi]])
                wait_for(need)
                a(t)
                if last and not fifo and not rdone and si == len(stages)-1:
                    a("s_barrier"); rdone = True
                for _ in range(cnts[k]):
                    if fill: put(fill.pop(0))
                if extra and k >= 1: put(extra.pop(0))
            assert not fill and not extra
            if dots is not None:
                z = lambda d, e: '0' if (si == 0 and e == 0) else vr(d)
                for sel, body in ((s_wn, lambda w: [x for e in range(4) for q in range(2) for x in (
                                        f"v_dot2_f32_bf16 {vr(dots+2*q)}, {vr(s.fa(b,si,2*w+q)+e)}, {vr(v_ones)}, {z(dots+2*q, e)}",
                                        f"v_dot2_f32_bf16 {vr(dots+2*q+1)}, {vr(s.fa(b,si,2*w+q)+e)}, {vr(s.fa(b,si,2*w+q)+e)}, {z(dots+2*q+1, e)}")]),
                                  (s_wm, lambda w: [f"v_dot2_f32_bf16 {vr(dots+4+q)}, {vr(s.fw(b,si,2*w+q)+e)}, {vr(v_ones)}, {z(dots+4+q, e)}" for e in range(4) for q in range(2)])):
                    L1, L2 = lab("d1"), lab("d2")
                    a(f"s_cmp_lg_u32 {sr(sel)}, 0"); a(f"s_cbranch_scc1 {L1}")
                    for x in body(0): a(x)
                    a(f"s_branch {L2}"); a(f"{L1}:")
                    for x in body(1): a(x)
                    a(f"{L2}:")
    def loop(s, n, acc, cnt=None, **kw):
        per = 2 if s.full else 1
        if cnt is None:
            if n == 0: return
            assert n % per == 0
            if n == per:
                for b in range(per): s.tile(acc, b=b, **kw)
                return
        L = lab("cl"); D = lab("cd")
        if cnt is None: a(f"s_mov_b32 {sr(s_cnt)}, {n//per}")
        else:
            a(f"s_mov_b32 {sr(s_cnt)}, {sr(cnt)}")
            a(f"s_cmp_eq_u32 {sr(s_cnt)}, 0"); a(f"s_cbranch_scc1 {D}")
        a(".p2align 6")
        a(f"{L}:")
        for b in range(per):
            s.tile(acc, b=b, tail=([[f"s_sub_u32 {sr(s_cnt)}, {sr(s_cnt)}, 1", f"s_cmp_lg_u32 {sr(s_cnt)}, 0"]] if b == per-1 else ()), **kw)
        a(f"s_cbranch_scc1 {L}")
        if cnt is not None: a(f"{D}:")
def compute_common():
    global s_wm, s_wn, s_ra, s_rw, s_cnt, v_r, v_hf, v_r16, v_g, v_bA, v_bW
    s_wm, s_wn, s_ra, s_rw, s_cnt = [S.alloc() for _ in range(5)]
    v_r, v_hf, v_r16, v_g = [V.alloc() for _ in range(4)]
    v_bA, v_bW = 254, 255
    a(f"""s_lshr_b32 {sr(s_wm)}, {sr(s_w)}, 1
          s_and_b32 {sr(s_wn)}, {sr(s_w)}, 1
          v_and_b32 {vr(v_r)}, 31, {vr(vl)}
          v_lshrrev_b32 {vr(v_hf)}, 5, {vr(vl)}
          v_and_b32 {vr(v_r16)}, 15, {vr(vl)}
          v_lshrrev_b32 {vr(v_g)}, 4, {vr(vl)}""")
def quad_reduce(op, x):
    for i in range(4): a(f"v_permlane32_swap_b32 {vr(x+2*i)}, {vr(x+2*i+1)}")
    for i in range(4): a(f"{op} {vr(x+2*i)}, {vr(x+2*i)}, {vr(x+2*i+1)}")
    for p in range(2): a(f"v_permlane16_swap_b32 {vr(x+4*p)}, {vr(x+4*p+2)}")
    for p in range(2): a(f"{op} {vr(x+4*p)}, {vr(x+4*p)}, {vr(x+4*p+2)}")
def quad_bcast(x):
    for p in range(2): a(f"v_mov_b32 {vr(x+4*p+2)}, {vr(x+4*p)}")
    for p in range(2): a(f"v_permlane16_swap_b32 {vr(x+4*p)}, {vr(x+4*p+2)}")
    for i in range(4): a(f"v_mov_b32 {vr(x+2*i+1)}, {vr(x+2*i)}")
    for i in range(4): a(f"v_permlane32_swap_b32 {vr(x+2*i)}, {vr(x+2*i+1)}")
def exps(p, em, x, rs, scp):
    for i in range(4):
        a(f"v_max3_f32 {vr(x+2*i)}, {vr(p+8*i)}, {vr(p+8*i+1)}, {vr(p+8*i+2)}")
        a(f"v_max3_f32 {vr(x+2*i+1)}, -{vr(p+8*i)}, -{vr(p+8*i+1)}, -{vr(p+8*i+2)}")
    for e in (3, 5):
        for i in range(4):
            a(f"v_max3_f32 {vr(x+2*i)}, {vr(x+2*i)}, {vr(p+8*i+e)}, {vr(p+8*i+e+1)}")
            a(f"v_max3_f32 {vr(x+2*i+1)}, {vr(x+2*i+1)}, -{vr(p+8*i+e)}, -{vr(p+8*i+e+1)}")
    for i in range(4):
        a(f"v_max_f32 {vr(x+2*i)}, {vr(x+2*i)}, {vr(p+8*i+7)}")
        a(f"v_max_f32_e64 {vr(x+2*i+1)}, {vr(x+2*i+1)}, -{vr(p+8*i+7)}")
    quad_reduce("v_max_f32", x)
    for q in range(2): a(f"v_mul_f32_e64 {vr(x+4*q)}, -{vr(scp+q)}, {vr(x+4*q)}")
    quad_bcast(x)
    for i in range(4):
        for e in range(8*i, 8*i+8, 2):
            a(f"v_pk_fma_f32 {vr(em+e,2)}, {vr(p+e,2)}, {vr(rs+2*i,2)}, {vr(x+2*i,2)} op_sel:[0,0,1] op_sel_hi:[1,0,1] neg_lo:[1,0,0] neg_hi:[1,0,0]")
            a(f"v_pk_fma_f32 {vr(p+e,2)}, {vr(p+e,2)}, {vr(rs+2*i,2)}, {vr(x+2*i,2)} op_sel:[0,0,0] op_sel_hi:[1,0,0]")
    for e in range(32):
        a(f"v_exp_f32 {vr(em+e)}, {vr(em+e)}")
        a(f"v_exp_f32 {vr(p+e)}, {vr(p+e)}")
def var_eps(m, q, n):
    a(f"v_mul_f32 {vr(m)}, {f32(-1/n)}, {vr(m)}")
    a(f"v_mul_f32 {vr(q)}, {f32(1/n)}, {vr(q)}")
    a(f"v_fma_f32 {vr(q)}, -{vr(m)}, {vr(m)}, {vr(q)}")
    a(f"v_max_f32 {vr(q)}, 0, {vr(q)}")
    a(f"v_add_f32 {vr(q)}, {f32(1e-5)}, {vr(q)}")
def center(x, cs, nm, n=16):
    for e in range(0, n, 2):
        a(f"v_pk_fma_f32 {vr(x+e,2)}, {vr(cs+e,2)}, {vr(nm,2)}, {vr(x+e,2)} op_sel:[0,1,0] op_sel_hi:[1,1,1]")
def gelu16(x, cs, g, u, out=None):
    if out is None: out = x
    center(x, cs, g)
    for e in range(0, 16, 2): a(f"v_pk_mul_f32 {vr(u+e,2)}, {vr(x+e,2)}, {vr(x+e,2)}")
    for e in range(0, 16, 2): a(f"v_pk_fma_f32 {vr(u+e,2)}, {vr(u+e,2)}, {vr(g+2,2)}, {vr(g+2,2)} op_sel:[0,0,1] op_sel_hi:[1,0,1]")
    for e in range(0, 16, 2): a(f"v_pk_mul_f32 {vr(u+e,2)}, {vr(u+e,2)}, {vr(x+e,2)}")
    for e in range(16): a(f"v_exp_f32 {vr(u+e)}, {vr(u+e)}")
    for e in range(0, 16, 2): a(f"v_pk_fma_f32 {vr(u+e,2)}, {vr(u+e,2)}, {vr(g,2)}, {vr(g,2)} op_sel_hi:[1,0,0]")
    for e in range(16): a(f"v_rcp_f32 {vr(u+e)}, {vr(u+e)}")
    for e in range(0, 16, 2): a(f"v_pk_mul_f32 {vr(out+e,2)}, {vr(x+e,2)}, {vr(u+e,2)}")
def build():
    global st, vt, vl, s_w, s_mi, s_nj, s_n7, s_c8, s_lw, s_to, s_m, sF, s_tm, v_stamp
    global sT, sAcc, s_pv, s_one, s_ret
    global Lend
    kernel_begin(a, KNAME)
    Lend, LA, LW, LX = lab("end"), lab("ldA"), lab("ldW"), lab("aux")
    a(f"s_cmp_ge_u32 s2, 256")
    a(f"s_cbranch_scc1 {Lend}")
    pb = S.alloc(24, 4)
    a(f"s_load_dwordx16 {sr(pb,16)}, s[0:1], 0")
    a(f"s_load_dwordx8 {sr(pb+16,8)}, s[0:1], 64")
    for i, n in enumerate(["x","wqkv","wphi","wo","bx","w_in","w_sp","b_sp","w_out","out","dbg","ws"]): P[n] = pb+2*i
    st = [S.alloc() for _ in range(4)]
    s_w, s_mi, s_nj, s_n7, s_c8, s_lw, s_to = [S.alloc() for _ in range(7)]
    s_one = S.alloc(); s_pv = S.alloc(2, 2); s_ret = S.alloc(2, 2); s_m = S.alloc(2, 2); s_tm = S.alloc(2, 2); sF = S.alloc(4, 4); sT = S.alloc(4, 4); sAcc = S.alloc(4, 4)
    vl = V.alloc(); vt = [V.alloc() for _ in range(5)]; v_stamp = V.alloc()
    a(f"""v_lshrrev_b32 {vr(vt[0])}, 6, v0
          v_and_b32 {vr(vl)}, 63, v0
          v_readfirstlane_b32 {sr(s_w)}, {vr(vt[0])}
          s_bfe_u32 {sr(s_c8)}, s2, 0x30003
          s_lshr_b32 {sr(st[0])}, s2, 6
          s_bfe_u32 {sr(st[1])}, s2, 0x20001
          s_lshl2_add_u32 {sr(s_mi)}, {sr(st[1])}, {sr(st[0])}
          s_and_b32 {sr(st[0])}, s2, 1
          s_lshl3_add_u32 {sr(s_nj)}, {sr(st[0])}, {sr(s_c8)}
          s_sub_u32 {sr(s_n7)}, {sr(s_nj)}, {sr(st[0])}
          s_xor_b32 {sr(s_nj)}, {sr(s_nj)}, {4 if OPT.get('remap', 1) else 0}
          s_mov_b32 {sr(s_to)}, 100000
          s_mov_b32 {sr(s_one)}, 1
          s_and_b32 {sr(s_lw)}, {sr(s_w)}, 1""")
    if HOOK: HOOK()
    if OPT["stamp"]: a(f"v_mov_b32 {vr(v_stamp)}, 0")
    stamp(0)
    LC = lab("cmp")
    a(f"""s_cmp_lt_u32 {sr(s_w)}, 4
          s_cbranch_scc1 {LC}
          s_setprio {OPT.get('lprio', 2)}
          s_cmp_eq_u32 {sr(s_w)}, 7
          s_cbranch_scc1 {LX}
          s_cmp_lt_u32 {sr(s_w)}, 6
          s_cbranch_scc1 {LA}""")
    vbase, sbase = V.n, S.n
    main = a.L; late = []
    global split
    def split():
        L = lab("cont"); a(f"s_branch {L}"); a.L = late; a.L += ["@EPOCH0", "@PAD"]; a(f"{L}:")
    for lb, role in ((LW, loaderW), (LA, loaderA), (LX, aux), (LC, compute)):
        V.n, S.n = vbase, sbase
        a.L = main
        a(f"{lb}:"); role(); a("s_endpgm")
    a.L = late
    helper_code()
    a.L = main + late
    a(f"{Lend}:")
    a("s_endpgm")
    a.L = hazard.fix(a.L)
    import layout
    a.L, pads = layout.run(a.L, s_ret, align=OPT.get("al8", 1), pages=OPT.get("pages", 1))
    for e in range(2):
        assert len(pads[e]) <= 12, len(pads[e])
        for k in range(12):
            i = a.L.index(f"    s_call_b64 {sr(s_ret,2)}, .PAD{e}_{k}")
            a.L[i] = f"    s_call_b64 {sr(s_ret,2)}, {pads[e][k]}" if k < len(pads[e]) and OPT.get("warm", 1) else "    s_nop 0"
    print("pads", pads, file=sys.stderr)
    kernel_desc(a, KNAME, 256, 256, nsgpr=102)
    ref = open(f"cdna_kernels/{NAME}.s.ref").read().split("\n")
    head = [l for l in ref if l.startswith(";") and "@launch" not in l and "Override launch" not in l and "grid=ceil" not in l]
    kw = f"kernel={KNAME} " if OPT.get("list") else ""
    return "\n".join(head) + f"\n; @launch {kw}grid=(256,1,1) block=(512,1,1) lds={LDS_BYTES}\n" + '.amdgcn_target "amdgcn-amd-amdhsa--gfx950"\n' + a.text()

def common_srds():
    srd("ws", WS["FLG"], 11*32768, d=sF); srd("ws", WS["ACC"], 86016, d=sAcc)
def helper_stream(ptr, total, ld, col0, lpr, rows, first=None, skip=0):
    if not OPT["prefetch"]: return
    lp2 = 16 if lpr <= 16 else 32
    sh = lp2.bit_length()-1; rpi = 64//lp2
    srd(ptr, 0, total, d=sT)
    a(f"s_and_b32 {sr(st[1])}, s2, 7")
    a(f"s_lshr_b32 {sr(st[0])}, s2, 6")
    a(f"s_lshl3_add_u32 {sr(st[0])}, {sr(st[0])}, {sr(st[1])}")
    a(f"s_lshl3_add_u32 {sr(st[0])}, {sr(st[0])}, {sr(s_w)}")
    a(f"s_mul_i32 {sr(st[0])}, {sr(st[0])}, {rows*ld}")
    if col0: a(f"s_add_u32 {sr(st[0])}, {sr(st[0])}, {col0}")
    a(f"v_lshrrev_b32 {vr(vt[2])}, {sh}, {vr(vl)}")
    a(f"v_mul_u32_u24 {vr(vt[2])}, {ld}, {vr(vt[2])}")
    a(f"v_and_b32 {vr(vt[3])}, {lp2-1}, {vr(vl)}")
    if lpr != lp2: a(f"v_min_u32 {vr(vt[3])}, {lpr-1}, {vr(vt[3])}")
    a(f"v_lshl_add_u32 {vr(vt[2])}, {vr(vt[3])}, 7, {vr(vt[2])}")
    n = first or -(-rows//rpi)
    for i in range(n):
        if i >= skip:
            if OPT.get("hgap"):
                a("s_waitcnt vmcnt(0)"); a(f"s_sleep {OPT['hgap']}")
            a(f"buffer_load_dword {vr(vt[1])}, {vr(vt[2])}, {sr(sT,4)}, {sr(st[0])} offen{' nt' if OPT.get('hnt') else ''}")
        if i < n-1: a(f"s_add_u32 {sr(st[0])}, {sr(st[0])}, {rpi*ld}")
HRET = {}
L_HELP = ".helper_job"
def helper_code():
    if not HRET: return
    buf, ac, u, va, vb, vc = 48, 112, 120, 122, 123, 124
    hid, cnt = 96, 97
    a.L.append("@PAD")
    a(f"{L_HELP}:")
    a(f"""s_and_b32 {sr(st[1])}, s2, 7
          s_lshr_b32 {sr(st[0])}, s2, 6
          s_lshl3_add_u32 {sr(hid)}, {sr(st[0])}, {sr(st[1])}
""")
    srd("w_in", 0, 1024*7168, d=sT)
    a(f"""s_lshr_b32 {sr(st[0])}, {sr(hid)}, 2
          s_lshl3_add_u32 {sr(st[0])}, {sr(st[0])}, {sr(s_w)}
          s_mul_i32 {sr(st[0])}, {sr(st[0])}, {16*7168}
          s_and_b32 {sr(st[1])}, {sr(hid)}, 3
          s_mul_i32 {sr(st[2])}, {sr(st[1])}, 896
          s_add_u32 {sr(st[0])}, {sr(st[0])}, {sr(st[2])}
          v_lshl_add_u32 {vr(va)}, {vr(vl)}, 4, {sr(st[0])}
          v_mov_b32 {vr(vb)}, 0x7ffffff0
          v_cmp_gt_u32 vcc, 56, {vr(vl)}
          v_cndmask_b32 {vr(va)}, {vr(vb)}, {vr(va)}, vcc
          v_lshl_add_u32 {vr(vc)}, {sr(s_w)}, 6, {vr(vl)}
          v_lshlrev_b32 {vr(vb)}, 5, {vr(vc)}
          s_waitcnt lgkmcnt(0)
          s_barrier""")
    def slow_cols(col0):
        a(f"""s_and_b32 {sr(st[0])}, s2, 1
              s_mul_i32 {sr(st[0])}, {sr(st[0])}, 1792
              s_add_u32 {sr(st[0])}, {sr(st[0])}, {col0}
              s_add_u32 {sr(st[1])}, {sr(st[0])}, {sr(sT)}
              s_lshr_b32 {sr(st[1])}, {sr(st[1])}, 7
              s_sub_u32 {sr(st[1])}, 3, {sr(st[1])}
              s_and_b32 {sr(st[1])}, {sr(st[1])}, 7
              s_cmp_lt_u32 {sr(st[1])}, 6
              s_cselect_b32 {sr(st[2])}, 1024, 0
              s_lshl_b32 {sr(st[1])}, {sr(st[1])}, 7
              s_add_u32 {sr(st[0])}, {sr(st[0])}, {sr(st[1])}
              s_lshr_b32 {sr(st[1])}, s2, 6
              s_lshl3_add_u32 {sr(st[1])}, {sr(st[1])}, {sr(s_w)}
              v_and_b32 {vr(vt[2])}, 31, {vr(vl)}
              v_lshl_add_u32 {vr(vt[2])}, {vr(vt[2])}, 5, {sr(st[1])}
              v_mul_u32_u24 {vr(vt[2])}, 7168, {vr(vt[2])}
              v_lshrrev_b32 {vr(vt[3])}, 5, {vr(vl)}
              v_mad_u32_u24 {vr(vt[2])}, {vr(vt[3])}, {sr(st[2])}, {vr(vt[2])}
              buffer_load_dword {vr(vt[1])}, {vr(vt[2])}, {sr(sT,4)}, {sr(st[0])} offen""")
    if OPT.get("hc3", 1) & 1: slow_cols(3584)
    for half, kind in ((0, F_C4),):
        a(f"s_mov_b32 {sr(st[0])}, {3584*half}")
        for r in range(16):
            a(f"buffer_load_dwordx4 {vr(buf+4*r,4)}, {vr(va)}, {sr(sT,4)}, {sr(st[0])} offen")
            if r < 15: a(f"s_add_u32 {sr(st[0])}, {sr(st[0])}, 7168")
        for r in range(16):
            if r % 4 == 0: a(f"s_waitcnt vmcnt({12-r})")
            for e in range(4):
                d = ac+2*e if r == 0 else u
                a(f"v_lshlrev_b32 {vr(d)}, 16, {vr(buf+4*r+e)}")
                a(f"v_and_b32 {vr(d+1)}, 0xffff0000, {vr(buf+4*r+e)}")
                if r: a(f"v_pk_add_f32 {vr(ac+2*e,2)}, {vr(ac+2*e,2)}, {vr(u,2)}")
        for h in range(2): a(f"ds_write_b128 {vr(vb)}, {vr(ac+4*h,4)} offset:{16*h}")
        if OPT.get("hc3", 1) & 2: slow_cols(0)
        if OPT.get("hov", 1): helper_stream("w_sp", 2048*4096, 4096, 0, 32, 8, first=OPT.get("hfirst", 1))
        a(f"""v_lshlrev_b32 {vr(u+1)}, 2, {vr(vc)}
              s_and_b32 {sr(st[1])}, {sr(hid)}, 3
              s_mul_i32 {sr(st[1])}, {sr(st[1])}, 1792
              s_add_u32 {sr(st[1])}, {sr(st[1])}, {A_CIN+7168*half}
              s_waitcnt lgkmcnt(0)
              s_barrier""")
        for w in range(8): a(f"ds_read_b32 {vr(buf+w)}, {vr(u+1)} offset:{2048*w}")
        a("s_waitcnt lgkmcnt(0)")
        for w in range(1, 8): a(f"v_add_f32 {vr(buf)}, {vr(buf)}, {vr(buf+w)}")
        a(f"v_mov_b32 {vr(u)}, {vr(buf)}")
        stamp(35)
        L = lab("h7")
        a(f"s_cmp_eq_u32 {sr(s_w)}, 7"); a(f"s_cbranch_scc1 {L}")
        a("s_waitcnt lgkmcnt(0)")
        a(f"buffer_atomic_add_f32 {vr(u)}, {vr(u+1)}, {sr(sAcc,4)}, {sr(st[1])} offen sc1")
        a(f"{L}:")
        a("s_waitcnt vmcnt(0) lgkmcnt(0)")
        a("s_barrier")
        L = lab("h4")
        a(f"s_cmp_lg_u32 {sr(s_w)}, 0"); a(f"s_cbranch_scc1 {L}")
        a(f"v_lshrrev_b32 {vr(u)}, 2, {vr(vl)}"); a(f"v_and_b32 {vr(u+1)}, 3, {vr(vl)}")
        a(f"v_lshlrev_b32 {vr(u)}, 11, {vr(u)}"); a(f"v_lshl_add_u32 {vr(u)}, {vr(u+1)}, 7, {vr(u)}")
        a(f"v_mov_b32 {vr(u+1)}, 1")
        a(f"s_mov_b32 {sr(st[1])}, {kind*32768}")
        a(f"buffer_atomic_add {vr(u+1)}, {vr(u)}, {sr(sF,4)}, {sr(st[1])} offen sc1")
        a(f"{L}:")
    stamp(30)
    if OPT.get("hfull"):
        srd("w_sp", 0, 2048*4096, d=sT)
        L = lab("hf")
        a(f"""s_lshl3_add_u32 {sr(st[0])}, {sr(hid)}, {sr(s_w)}
              s_lshl_b32 {sr(st[0])}, {sr(st[0])}, 15
              v_lshlrev_b32 {vr(vt[2])}, 4, {vr(vl)}
              s_mov_b32 {sr(cnt)}, 8
              {L}:""")
        for j in range(4): a(f"buffer_load_dwordx4 {vr(buf+4*j,4)}, {vr(vt[2])}, {sr(sT,4)}, {sr(st[0])} offen offset:{1024*j}")
        a(f"""s_add_u32 {sr(st[0])}, {sr(st[0])}, 4096
              s_waitcnt vmcnt({OPT['hfull']-1})
              s_sub_u32 {sr(cnt)}, {sr(cnt)}, 1
              s_cmp_lg_u32 {sr(cnt)}, 0
              s_cbranch_scc1 {L}""")
    else: helper_stream("w_sp", 2048*4096, 4096, 0, 32, 8, skip=OPT.get("hfirst", 1) if OPT.get("hov", 1) else 0)
    if OPT["stamp"]: a("s_waitcnt vmcnt(0)")
    stamp(31)
    if OPT.get("hwo", 0): helper_stream("w_out", 1792*2048, 2048, 0, 16, 7)
    a("s_waitcnt vmcnt(0)")
    stamp(32)
    if OPT.get("hsleep", 1):
        L = lab("hs")
        a(f"s_cmp_lg_u32 {sr(s_w)}, 4"); a(f"s_cbranch_scc1 {L}")
        poll(F_B5, s_c8, s_mi, 16, lambda: a("s_sleep 32"))
        a(f"{L}:")
    a("s_barrier")
    if OPT.get("hl2", 3) & 1:
        a(f"s_lshl_b32 {sr(st[0])}, {sr(s_mi)}, 19")
        srd("w_sp", 0, 128*4096, soff=st[0], d=sT)
        a(f"""v_lshrrev_b32 {vr(vt[2])}, 2, {vr(vl)}
              v_lshl_add_u32 {vr(vt[2])}, {sr(s_w)}, 4, {vr(vt[2])}
              v_lshlrev_b32 {vr(vt[2])}, 12, {vr(vt[2])}
              v_and_b32 {vr(vt[3])}, 3, {vr(vl)}
              v_lshl_add_u32 {vr(vt[2])}, {vr(vt[3])}, 7, {vr(vt[2])}
              s_and_b32 {sr(st[0])}, {sr(s_mi)}, 12
              s_lshl_b32 {sr(st[0])}, {sr(st[0])}, 8""")
        for i in range(OPT.get('hn', 8)):
            a(f"buffer_load_dword {vr(vt[1])}, {vr(vt[2])}, {sr(sT,4)}, {sr(st[0])} offen")
            a(f"s_add_u32 {sr(st[0])}, {sr(st[0])}, 512"); a(f"s_and_b32 {sr(st[0])}, {sr(st[0])}, 4095")
            if OPT.get("hpace", 1): a("s_waitcnt vmcnt(0)")
        stamp(33)
    if OPT.get("hl2", 3) & 4:
        a(f"s_lshl_b32 {sr(st[0])}, {sr(s_mi)}, 19")
        srd("w_sp", 0, 128*4096, soff=st[0], d=sT)
        a(f"""v_lshrrev_b32 {vr(vt[2])}, 2, {vr(vl)}
              v_lshl_add_u32 {vr(vt[2])}, {sr(s_w)}, 4, {vr(vt[2])}
              v_lshlrev_b32 {vr(vt[2])}, 12, {vr(vt[2])}
              s_and_b32 {sr(st[0])}, {sr(s_mi)}, 12
              s_add_u32 {sr(st[1])}, {sr(s_mi)}, 1
              s_and_b32 {sr(st[1])}, {sr(st[1])}, 3
              s_lshl_b32 {sr(st[1])}, {sr(st[1])}, {OPT.get('grpsp', 0)}
              s_lshl1_add_u32 {sr(st[0])}, {sr(st[0])}, {sr(st[1])}
              v_and_b32 {vr(vt[3])}, {2 if OPT.get('grpsp') else 3}, {vr(vl)}
              v_lshl_add_u32 {vr(vt[3])}, {vr(vt[3])}, 2, {sr(st[0])}
              v_and_b32 {vr(vt[4])}, {1 if OPT.get('grpsp') else 0}, {vr(vl)}
              v_add_u32 {vr(vt[3])}, {vr(vt[3])}, {vr(vt[4])}
              v_and_b32 {vr(vt[3])}, 31, {vr(vt[3])}
              v_lshl_add_u32 {vr(vt[4])}, {vr(vt[3])}, 7, {vr(vt[2])}
              buffer_load_dword {vr(vt[1])}, {vr(vt[4])}, {sr(sT,4)}, 0 offen
              v_xor_b32 {vr(vt[4])}, 2048, {vr(vt[4])}""")
    if OPT.get("hmid"):
        poll(F_B4, s_mi, s_nj, 15, lambda: a("s_sleep 16"))
    if OPT.get("hl2", 3) & 4: a(f"buffer_load_dword {vr(vt[1])}, {vr(vt[4])}, {sr(sT,4)}, 0 offen")
    if OPT.get("hl2", 3) & 2:
        srd("w_out", 0, 1792*2048, d=sT)
        a(f"""s_lshr_b32 {sr(st[0])}, s2, 6
              s_lshl3_add_u32 {sr(st[0])}, {sr(st[0])}, {sr(s_w)}
              s_lshl_b32 {sr(st[0])}, {sr(st[0])}, 14
              s_and_b32 {sr(st[1])}, s2, 1
              s_lshl_b32 {sr(st[1])}, {sr(st[1])}, 10
              s_add_u32 {sr(st[0])}, {sr(st[0])}, {sr(st[1])}
              v_lshrrev_b32 {vr(vt[2])}, 3, {vr(vl)}
              v_lshlrev_b32 {vr(vt[2])}, 11, {vr(vt[2])}
              v_and_b32 {vr(vt[3])}, 7, {vr(vl)}
              v_lshl_add_u32 {vr(vt[2])}, {vr(vt[3])}, 7, {vr(vt[2])}""")
        a(f"v_add_u32 {vr(vt[2])}, {sr(st[0])}, {vr(vt[2])}")
        a(f"s_and_b32 {sr(st[0])}, s2, 6")
        a(f"s_lshl_b32 {sr(st[0])}, {sr(st[0])}, 19")
        ctr_off(st[2], s_mi, s_nj); Lq = lab("hq")
        if OPT.get("hfull"):
            a(f"v_readfirstlane_b32 {sr(st[1])}, {vr(vt[2])}")
            a(f"v_lshl_add_u32 {vr(vt[2])}, {vr(vl)}, 4, {sr(st[1])}")
            for j in range(1, 4): a(f"v_add_u32 {vr(va+j-1)}, {4096*j}, {vr(vt[2])}")
        for i in range(7):
            if OPT.get("hfull"):
                for j in range(8):
                    a(f"buffer_load_dwordx4 {vr(buf+4*j,4)}, {vr(vt[2] if j < 2 else va+j//2-1)}, {sr(sT,4)}, {sr(st[0])} offen offset:{2048*(j&1)}")
                    if j == 3: a(f"s_waitcnt vmcnt({OPT['hfull']-1})")
            else: a(f"buffer_load_dword {vr(vt[1])}, {vr(vt[2])}, {sr(sT,4)}, {sr(st[0])} offen")
            a(f"s_add_u32 {sr(st[0])}, {sr(st[0])}, {256*2048}")
            a(f"s_cmp_eq_u32 {sr(st[0])}, {7*256*2048}"); a(f"s_cselect_b32 {sr(st[0])}, 0, {sr(st[0])}")
            a("s_waitcnt vmcnt(0)")
            if 2 <= i < 6:
                a(f"s_load_dword {sr(s_pv)}, {sr(sF,2)}, {sr(st[2])} offset:{F_B6*32768} glc"); a("s_waitcnt lgkmcnt(0)")
                a(f"s_cmp_lg_u32 {sr(s_pv)}, 0"); a(f"s_cbranch_scc1 {Lq}")
        a(f"{Lq}:")
        a("s_waitcnt vmcnt(0)")
        stamp(34)
    a("s_waitcnt vmcnt(0)")
    a(f"s_cmp_lt_u32 {sr(s_w)}, 4"); a(f"s_cbranch_scc1 {HRET['C']}")
    a(f"s_cmp_lt_u32 {sr(s_w)}, 6"); a(f"s_cbranch_scc1 {HRET['A']}")
    a(f"s_cmp_eq_u32 {sr(s_w)}, 6"); a(f"s_cbranch_scc1 {HRET['W']}")
    a(f"s_branch {HRET['X']}")
def helper_branch():
    a.L.append("@EPOCH1")
    a(f"s_cmp_eq_u32 {sr(s_c8)}, 7"); a(f"s_cbranch_scc1 {L_HELP}")
def helper_ret(role, extra=None):
    HRET[role] = lab("hret")
    if extra:
        Lj = lab("hj"); a(f"s_branch {Lj}"); a(f"{HRET[role]}:"); extra(); a(f"{Lj}:")
    else: a(f"{HRET[role]}:")

def tlb_warm(s_cd, which):
    if OPT.get("tlb"):
        sh = OPT["tlb"]
        a(f"s_lshr_b32 {sr(st[0])}, s2, 3"); a(f"s_lshl_b32 {sr(st[2])}, s2, 8")
        for j, (ptr, nb) in enumerate([(("ws", 35*MB), ("wo", 2*MB), ("w_in", 7*MB), ("w_sp", 8*MB), ("w_out", 7*MB//2), ("out", 4*MB))[k] for k in which]):
            n = -(-nb >> sh)
            for r in range(-(-n//32)):
                a(f"s_add_u32 {sr(st[1])}, {sr(st[0])}, {32*r}")
                a(f"s_min_u32 {sr(st[1])}, {sr(st[1])}, {n-1}")
                a(f"s_lshl_b32 {sr(st[1])}, {sr(st[1])}, {sh}")
                a(f"s_add_u32 {sr(st[1])}, {sr(st[1])}, {sr(st[2])}")
                a(f"s_load_dword {sr(s_cd)}, {sr(P[ptr],2)}, {sr(st[1])} glc")
def loaderA():
    tb_init(1); L = Loader('A')
    bg = lambda ph: (lambda: L.begin(ph))
    pA = OPT.get("pA", 2)
    L.setup(P1K, 0); L.begin(P1K); L.prefill(P1K, OPT["pK"]); stamp(1)
    dm = S.alloc()
    if OPT.get("tlbw", 0) == 0: tlb_warm(dm, range(6))
    if OPT.get("tlbw", 0) == 1: tlb_warm(dm, (0, 1))
    P1Q.ld['A'] = 0; P4.ld['A'] = 2
    L.run(P1K, OPT["pK"], maxper=OPT["mK"], nxt=lambda: (split(), L.begin(P1Q))); stamp(2)
    common_srds(); L.setup(P2, 1)
    if OPT.get("tlbw", 0) == 1: tlb_warm(dm, (2, 3, 4, 5))
    if OPT.get("tlbw", 0) == 2: tlb_warm(dm, range(6))
    L.run(P1Q, 4, nxt=bg(P2)); stamp(3)
    BAR(); BAR()
    L.setup(P3, 2); L.setup(P5, 3)
    poll(F_B2, s_mi, s_nj, 16); stamp(4)
    L.prefill(P2, pA); L.run(P2, pA, nxt=bg(P3)); stamp(5)
    BAR()
    helper_branch()
    L.setup(P6, 0)
    poll(F_B3, s_mi, s_nj, 16); stamp(6)
    L.prefill(P3, pA); L.run(P3, pA, nxt=bg(P4)); stamp(7)
    L.run(P4, 4, nxt=bg(P5))
    L.prefill(P5, OPT.get("pA5", 3)); L.run(P5, OPT.get("pA5", 3), nxt=bg(P6)); stamp(8)
    BAR()
    helper_ret('A', lambda: (L.setup(P6, 0), L.begin(P6)))
    poll(F_B6, s_mi, s_nj, 14, lazy=8); stamp(9)
    L.prefill(P6, pA); L.run(P6, pA)
    stamp_out(); tb_out()

def loaderW():
    tb_init(2); tb_reset(); L = Loader('W')
    bg = lambda ph: (lambda: L.begin(ph))
    L.setup(P1K, 0); L.begin(P1K); L.prefill(P1K, OPT["pK"]); stamp(1)
    if OPT.get("qearly", 0): L.setup(P1Q, 1)
    L.run(P1K, OPT["pK"], maxper=OPT["mK"], cap=4, nxt=lambda: (split(), None if OPT.get("qearly", 0) else L.setup(P1Q, 1), L.begin(P1Q))); stamp(2)
    L.prefill(P1Q, OPT["preQ"]); stamp(3)
    common_srds(); L.setup(P2, 0)
    L.run(P1Q, OPT["preQ"], maxper=1, nxt=bg(P2))
    BAR()
    L.setup(P3, 1); L.setup(P4, 2)
    BAR()
    L.prefill(P2, OPT["pW2"]); stamp(4); L.run(P2, OPT["pW2"], maxper=1, nxt=bg(P3))
    L.setup(P5, 3)
    BAR()
    helper_branch()
    tb_bank(1); tb_reset()
    L.prefill(P3, OPT["pW3"]); stamp(5); L.run(P3, OPT["pW3"], maxper=1, nxt=bg(P4))
    L.prefill(P4, OPT["pW4"]); stamp(6); L.run(P4, OPT["pW4"], maxper=1, nxt=lambda: (L.begin(P5), ctr_off(st[0], s_n7, s_mi),
          a(f"s_load_dword {sr(s_pv)}, {sr(sF,2)}, {sr(st[0])} offset:{F_B5*32768} glc")))
    Lk = lab("b5")
    a("s_waitcnt lgkmcnt(0)"); a(f"s_cmp_ge_u32 {sr(s_pv)}, 16"); a(f"s_cbranch_scc1 {Lk}")
    poll(F_B5, s_n7, s_mi, 16)
    a(f"{Lk}:"); stamp(7); tb_bank(2); tb_reset()
    L.prefill(P5, OPT.get("pW5", 3)); L.run(P5, OPT.get("pW5", 3), maxper=1, cap=4)
    Lj = lab("w6")
    L.setup(P6, 0); L.begin(P6)
    BAR()
    helper_ret('W', lambda: (L.setup(P6, 0), L.begin(P6)))
    L.prefill(P6, OPT["pW6"]); stamp(8); L.run(P6, OPT["pW6"], maxper=1)
    stamp_out(); tb_out()

def aux():
    s_left = S.alloc(); sG = S.alloc(4, 4); sH = S.alloc(4, 4)
    buf = V.alloc(128, 4); ac = V.alloc(16, 4); vp = V.alloc(); vk = V.alloc(2)
    def bar(n=1):
        for _ in range(n):
            L = lab("nb")
            a(f"s_cmp_eq_u32 {sr(s_left)}, 0")
            a(f"s_cbranch_scc1 {L}")
            BAR()
            a(f"s_sub_u32 {sr(s_left)}, {sr(s_left)}, 1")
            a(f"{L}:")
    bar2 = lambda: bar(2)
    def until(n):
        Lw = lab("w4"); Lx = lab("w4d")
        a(f"{Lw}:"); a(f"s_cmp_le_u32 {sr(s_left)}, {n}"); a(f"s_cbranch_scc1 {Lx}"); bar(1); a(f"s_branch {Lw}"); a(f"{Lx}:")
    s_cb = S.alloc(2, 2); s_cd = S.alloc(2, 2)
    def touch(label):
        if not OPT.get("touch", 1): return
        a(f"s_mov_b32 {sr(st[3])}, {label}-{KNAME}")
        a(f"s_and_b32 {sr(st[3])}, {sr(st[3])}, 0xfff80")
        for j in range(4): a(f"s_load_dwordx2 {sr(s_cd,2)}, {sr(s_cb,2)}, {sr(st[3])} offset:{128*j+60}")
    def budget(n): a(f"s_mov_b32 {sr(s_left)}, {n}")
    def drain():
        L = lab("dr"); D = lab("dd")
        a(f"{L}:")
        a(f"s_cmp_eq_u32 {sr(s_left)}, 0")
        a(f"s_cbranch_scc1 {D}")
        BAR()
        a(f"s_sub_u32 {sr(s_left)}, {sr(s_left)}, 1")
        a(f"s_branch {L}")
        a(f"{D}:")
    W0 = "s_waitcnt vmcnt(0)"; L0 = "s_waitcnt lgkmcnt(0)"
    def cs_add(base, grp):
        a(f"v_lshlrev_b32 {vr(vt[2])}, 2, {vr(vl)}")
        a(f"v_add_u32 {vr(vt[3])}, {M_CP}, {vr(vt[2])}")
        a(f"ds_read2_b32 {vr(ac,2)}, {vr(vt[3])} offset0:0 offset1:64")
        a(f"s_lshl_b32 {sr(st[0])}, {sr(grp)}, 9")
        a(f"s_add_u32 {sr(st[0])}, {sr(st[0])}, {base}")
        a(L0)
        for h in range(2): a(f"buffer_atomic_add_f32 {vr(ac+h)}, {vr(vt[2])}, {sr(sAcc,4)}, {sr(st[0])} offen offset:{256*h} sc1")
    def cs_get(base, grp, dst):
        a(f"v_lshlrev_b32 {vr(vt[2])}, 2, {vr(vl)}")
        a(f"s_lshl_b32 {sr(st[0])}, {sr(grp)}, 9")
        a(f"s_add_u32 {sr(st[0])}, {sr(st[0])}, {base}")
        a(f"s_mov_b32 m0, {dst}")
        for h in range(2): a(f"buffer_load_dword {vr(vt[2])}, {sr(sAcc,4)}, {sr(st[0])} offen offset:{256*h} sc1 lds")
    def stats_issue(base):
        a(f"v_lshlrev_b32 {vr(vt[2])}, 3, {vr(vl)}")
        a(f"s_lshl_b32 {sr(st[0])}, {sr(s_mi)}, 10")
        if base: a(f"s_add_u32 {sr(st[0])}, {sr(st[0])}, {base}")
        for h in range(2): a(f"buffer_load_dwordx2 {vr(buf+2*h,2)}, {vr(vt[2])}, {sr(sAcc,4)}, {sr(st[0])} offen offset:{512*h} sc1")
    def stats_fin_x():
        for r in range(2):
            var_eps(buf+r, buf+2+r, 1024); a(f"v_rsq_f32 {vr(ac+r)}, {vr(buf+2+r)}")
        a(f"v_lshlrev_b32 {vr(vt[2])}, 3, {vr(vl)}")
        a(f"v_add_u32 {vr(vt[2])}, {M_RS}, {vr(vt[2])}")
        a(f"ds_write_b64 {vr(vt[2])}, {vr(ac,2)}")
        a(f"ds_write_b64 {vr(vt[2])}, {vr(buf,2)} offset:512")
    def stats_calc_h():
        for r in range(2):
            g = ac+4*r
            var_eps(buf+r, buf+2+r, 1024)
            a(f"v_rsq_f32 {vr(g+3)}, {vr(buf+2+r)}")
            a(f"v_mov_b32 {vr(g+1)}, {vr(buf+r)}")
            a(f"v_mul_f32 {vr(g)}, {vr(buf+2+r)}, {vr(g+3)}")
            a(f"v_mul_f32 {vr(g+2)}, {vr(g+3)}, {vr(g+3)}")
            a(f"v_mul_f32 {vr(g+3)}, {f32(GC0)}, {vr(g+3)}")
            a(f"v_mul_f32 {vr(g+2)}, {f32(0.044715)}, {vr(g+2)}")
            a(f"v_mul_f32 {vr(g+2)}, {vr(g+2)}, {vr(g+3)}")
    def stats_write_h():
        a(f"v_lshlrev_b32 {vr(vt[2])}, 5, {vr(vl)}")
        a(f"v_add_u32 {vr(vt[2])}, {M_G}, {vr(vt[2])}")
        for r in range(2): a(f"ds_write_b128 {vr(vt[2])}, {vr(ac+4*r,4)} offset:{16*r}")
    def prefetch(ptr, total, ld, col0, xs, lpr, part):
        if not OPT["prefetch"]: return
        lp2 = 8 if lpr <= 8 else 16
        sh = lp2.bit_length()-1; rpi = 64//lp2
        srd(ptr, 0, total, d=sG)
        a(f"s_lshr_b32 {sr(st[0])}, s2, 1")
        a(f"s_mul_i32 {sr(st[0])}, {sr(st[0])}, {8*ld}")
        a(f"s_and_b32 {sr(st[1])}, s2, 1")
        a(f"s_mul_i32 {sr(st[1])}, {sr(st[1])}, {xs}")
        a(f"s_add_u32 {sr(st[0])}, {sr(st[0])}, {sr(st[1])}")
        if col0 + part*rpi*ld: a(f"s_add_u32 {sr(st[0])}, {sr(st[0])}, {col0 + part*rpi*ld}")
        a(f"v_lshrrev_b32 {vr(vt[2])}, {sh}, {vr(vl)}")
        a(f"v_mul_u32_u24 {vr(vt[2])}, {ld}, {vr(vt[2])}")
        a(f"v_and_b32 {vr(vt[3])}, {lp2-1}, {vr(vl)}")
        if lpr != lp2: a(f"v_min_u32 {vr(vt[3])}, {lpr-1}, {vr(vt[3])}")
        a(f"v_lshl_add_u32 {vr(vt[2])}, {vr(vt[3])}, 7, {vr(vt[2])}")
        a(f"buffer_load_dword {vr(vp)}, {vr(vt[2])}, {sr(sG,4)}, {sr(st[0])} offen")
    if OPT.get("codepf", 1):
        a(f"s_getpc_b64 {sr(sG,2)}")
        Lc = lab("pc"); a(f"{Lc}:")
        a(f"s_sub_u32 {sr(sG)}, {sr(sG)}, {Lc}-{KNAME}")
        a(f"s_subb_u32 {sr(sG+1)}, {sr(sG+1)}, 0")
        a(f"s_lshr_b32 {sr(st[0])}, s2, 3")
        a(f"s_lshl_b32 {sr(st[0])}, {sr(st[0])}, 8")
        a(f"s_add_u32 {sr(s_cb)}, {sr(sG)}, {sr(st[0])}")
        a(f"s_addc_u32 {sr(s_cb+1)}, {sr(sG+1)}, 0")
        a(f"s_mov_b32 {sr(sG+2)}, {Lend}-{KNAME}")
        a(f"s_mov_b32 {sr(sG+3)}, 0x20000")
        a(f"s_lshr_b32 {sr(st[0])}, s2, 3")
        a(f"s_lshl_b32 {sr(st[0])}, {sr(st[0])}, 11")
        a(f"v_lshl_add_u32 {vr(vt[2])}, {vr(vl)}, 5, {sr(st[0])}")
        a(f"buffer_load_dword {vr(vp)}, {vr(vt[2])}, {sr(sG,4)}, 0 offen")
    a(f"v_lshlrev_b32 {vr(vk)}, 2, {vr(vl)}")
    for i in range(4): a(f"v_mov_b32 {vr(ac+i)}, 0")
    a(f"v_add_u32 {vr(vt[2])}, {M_CNT}, {vr(vk)}")
    a(f"ds_write_b32 {vr(vt[2])}, {vr(ac)}")
    a(f"""s_mul_i32 {sr(st[0])}, s2, 22
          v_add_u32 {vr(vt[0])}, {sr(st[0])}, {vr(vl)}
          v_and_b32 {vr(vt[1])}, 3, {vr(vt[0])}
          v_lshrrev_b32 {vr(vt[0])}, 2, {vr(vt[0])}
          v_lshlrev_b32 {vr(vt[0])}, 11, {vr(vt[0])}
          v_lshl_add_u32 {vr(vt[0])}, {vr(vt[1])}, 7, {vr(vt[0])}
          v_lshlrev_b32 {vr(vt[3])}, 4, {vr(vl)}
          s_mul_i32 {sr(st[1])}, s2, 2688""")
    a(L0); common_srds()
    Lz = lab("nz")
    a("s_cmp_ge_u32 s2, 32"); a(f"s_cbranch_scc1 {Lz}")
    a("s_mov_b64 exec, 0x3fffff")
    a(f"buffer_store_dword {vr(ac)}, {vr(vt[0])}, {sr(sF,4)}, 0 offen sc1")
    a("s_mov_b64 exec, -1")
    for o in (0, 1024, 1664): a(f"buffer_store_dwordx4 {vr(ac,4)}, {vr(vt[3])}, {sr(sAcc,4)}, {sr(st[1])} offen offset:{o} sc1")
    a(f"{Lz}:")
    a(f"s_lshl_b32 {sr(st[0])}, {sr(s_nj)}, 12")
    srd("wphi", 0, 4096, soff=st[0], d=sG)
    a(f"v_lshlrev_b32 {vr(vt[2])}, 4, {vr(vl)}")
    a(f"s_mov_b32 m0, {M_WPH}")
    for j in range(4): a(f"buffer_load_dwordx4 {vr(vt[2])}, {sr(sG,4)}, 0 offen offset:{1024*j} lds")
    NP = max(special_list(P1K))
    if OPT.get("g0late", 1): BAR()
    Lz = lab("nz")
    a("s_cmp_ge_u32 s2, 32"); a(f"s_cbranch_scc1 {Lz}")
    a(f"s_lshl_b32 {sr(st[0])}, s2, 2"); a(f"s_and_b32 {sr(st[0])}, {sr(st[0])}, 28")
    a("s_waitcnt vmcnt(4)")
    a(f"s_atomic_add {sr(s_one)}, {sr(P['dbg'],2)}, {sr(st[0])} offset:64")
    a(f"{Lz}:")
    if not OPT.get("g0late", 1): BAR()
    split(); budget(NP)
    bar(3)
    Lp, Ld = lab("g0"), lab("g0d")
    g8 = S.alloc(8, 4)
    a(f"s_load_dwordx8 {sr(g8,8)}, {sr(P['dbg'],2)}, 64")
    bar(2); a(L0)
    for i in range(1, 8): a(f"s_add_u32 {sr(g8)}, {sr(g8)}, {sr(g8+i)}")
    a(f"s_cmp_ge_u32 {sr(g8)}, 32"); a(f"s_cbranch_scc1 {Ld}")
    srd("dbg", 64, 32, d=sH)
    a(f"{Lp}:")
    a(f"buffer_load_dword {vr(vt[1])}, {vr(vk)}, {sr(sH,4)}, 0 offen sc1")
    a(f"s_sub_u32 {sr(s_to)}, {sr(s_to)}, 1")
    a(W0)
    a(f"s_cbranch_scc1 {Ld}")
    a(f"v_cmp_le_u32 vcc, 4, {vr(vt[1])}")
    a("s_cmp_eq_u32 vcc_lo, 0xff")
    a(f"s_cbranch_scc0 {Lp}")
    a(f"{Ld}:")
    a(f"s_max_i32 {sr(s_to)}, {sr(s_to)}, 0")
    stamp(1)
    a(f"s_add_u32 {sr(s_left)}, {sr(s_left)}, {2+OPT.get('kd', 1)}"); drain()
    budget(13-OPT.get('kd', 1)-NP)
    signal(F_X, s_mi); signal(F_CKV, s_nj); stamp(2)
    bar(1); touch(".code_ck")
    bar(2)
    poll(F_X, s_mi, s_nj, 16, bar, second=(F_CKV, s_nj, s_mi))
    until(OPT.get("kt", 2))
    stats_issue(A_XST); cs_get(A_CKV, s_nj, M_CS)
    a(f"s_mul_i32 {sr(st[0])}, {sr(s_mi)}, {64*6144}")
    a(f"s_lshl_b32 {sr(st[1])}, {sr(s_nj)}, 7")
    a(f"s_add_u32 {sr(st[0])}, {sr(st[0])}, {sr(st[1])}")
    srd("wqkv", 0, 63*6144+128, soff=st[0], d=sG)
    q0 = buf+8
    a(f"v_lshrrev_b32 {vr(vt[0])}, 3, {vr(vl)}")
    a(f"v_mul_u32_u24 {vr(vt[0])}, 6144, {vr(vt[0])}")
    a(f"v_and_b32 {vr(vt[1])}, 7, {vr(vl)}")
    a(f"v_lshl_add_u32 {vr(q0)}, {vr(vt[1])}, 4, {vr(vt[0])}")
    for j in range(1, 4): a(f"v_add_u32 {vr(q0+j)}, {j*(8*6144-1024)}, {vr(q0)}")
    drain(); a(W0)
    stats_fin_x(); a(L0); stamp(3)
    QS = W_RING+9*8192
    a(f"s_mov_b32 m0, {QS}")
    a(f"s_mov_b32 {sr(st[0])}, {32*6144}")
    BAR()
    for g in range(2):
        if g: a(f"s_mov_b32 m0, {QS+4096}")
        for j in range(4): a(f"buffer_load_dwordx4 {vr(q0+j)}, {sr(sG,4)}, {sr(st[0]) if g else 0} offen offset:{1024*j} lds")
    ones, fr, cq = buf+12, buf+16, buf+48
    for i in range(4): a(f"v_mov_b32 {vr(ones+i)}, 0x3f803f80")
    a(f"v_lshrrev_b32 {vr(vt[0])}, 2, {vr(vl)}")
    a(f"v_and_b32 {vr(vt[1])}, 3, {vr(vl)}")
    a(f"v_lshlrev_b32 {vr(vt[1])}, 3, {vr(vt[1])}")
    a(f"v_lshl_add_u32 {vr(vt[0])}, {vr(vt[0])}, 7, {vr(vt[1])}")
    a(f"v_add_u32 {vr(vt[0])}, {QS}, {vr(vt[0])}")
    a(W0)
    for t in range(4):
        for h in range(4): a(f"ds_read_b64_tr_b16 {vr(fr+8*t+2*h,2)}, {vr(vt[0])} offset:{h*2048+t*32}")
    a(L0)
    for t in range(4):
        for ks in range(2): a(f"{MF16} {vr(cq+4*t,4)}, {vr(ones,4)}, {vr(fr+8*t+4*ks,4)}, {'0' if ks == 0 else vr(cq+4*t,4)}")
    for t in range(1, 4):
        a(f"v_cmp_le_u32 vcc, {16*t}, {vr(vl)}")
        a(f"v_cndmask_b32 {vr(cq)}, {vr(cq)}, {vr(cq+4*t)}, vcc")
    a(f"s_lshl_b32 {sr(st[0])}, {sr(s_nj)}, 8")
    a(f"s_add_u32 {sr(st[0])}, {sr(st[0])}, {A_CQ}")
    a(f"buffer_atomic_add_f32 {vr(cq)}, {vr(vk)}, {sr(sAcc,4)}, {sr(st[0])} offen sc1")
    if OPT.get("pfo", 0): prefetch("wo", 1024*2048, 2048, 0, 1024, 8, 0)
    budget(OPT["TQ"]+2)
    if OPT.get("pfz"):
        bar(OPT["pfz"]); a(W0)
        prefetch("w_in", 1024*7168, 7168, 3584, 1792, 14, 0); prefetch("w_in", 1024*7168, 7168, 3584, 1792, 14, 1)
        drain()
    else:
        drain(); a(W0)
    signal(F_B1A, s_nj); touch(".code_cq")
    budget(14-OPT["TQ"]); bar(OPT.get("TQw", 2))
    poll(F_B1A, s_nj, s_mi, 16, lambda: bar(OPT.get("TQp", 2))); stamp(4)
    a(f"s_lshl_b32 {sr(st[0])}, {sr(s_nj)}, 8")
    a(f"s_add_u32 {sr(st[0])}, {sr(st[0])}, {A_CQ}")
    a(f"s_mov_b32 m0, {M_CS+512}")
    a(f"buffer_load_dword {vr(vk)}, {sr(sAcc,4)}, {sr(st[0])} offen sc1 lds")
    def zwrite():
        a(f"v_cvt_pk_bf16_f32 {vr(ac)}, {vr(ac)}, {vr(ac+1)}")
        a(f"v_add_u32 {vr(vt[0])}, {M_ZF}, {vr(vk)}")
        a(f"ds_write_b32 {vr(vt[0])}, {vr(ac)}")
    a(f"s_lshl4_add_u32 {sr(st[2])}, {sr(s_nj)}, {sr(s_mi)}")
    a(f"s_lshl_b32 {sr(st[0])}, {sr(st[2])}, 14")
    srd("ws", WS["KVP"], 16384, soff=st[0], d=sG)
    a(f"v_lshlrev_b32 {vr(vt[4])}, 4, {vr(vl)}")
    a(f"v_lshlrev_b32 {vr(vt[0])}, 3, {vr(vl)}")
    a(f"s_lshl_b32 {sr(st[1])}, {sr(s_nj)}, 9")
    a(f"s_add_u32 {sr(st[1])}, {sr(st[1])}, {A_Z}")
    a(f"buffer_load_dwordx2 {vr(ac,2)}, {vr(vt[0])}, {sr(sAcc,4)}, {sr(st[1])} offen sc1")
    a(f"s_mov_b32 {sr(st[0])}, 0")
    for p in range(16):
        a(f"buffer_load_dwordx4 {vr(buf+4*p,4)}, {vr(vt[4])}, {sr(sG,4)}, {sr(st[0])} offen offset:{(p&3)*1024} sc1")
        if p % 4 == 3 and p < 15: a(f"s_add_u32 {sr(st[0])}, {sr(st[0])}, 4096")
        if p % 8 == 7 and OPT.get('rb', 1): bar()
    a(f"s_lshl_b32 {sr(st[0])}, {sr(st[2])}, 9")
    srd("ws", WS["KVF"], 512, soff=st[0], d=sG)
    sm, u2 = buf+64, buf+72
    def sums(lo, hi):
        for p in range(lo, hi):
            for e in range(4):
                d = sm+2*e if p == 0 else u2
                a(f"v_lshlrev_b32 {vr(d)}, 16, {vr(buf+4*p+e)}")
                a(f"v_and_b32 {vr(d+1)}, 0xffff0000, {vr(buf+4*p+e)}")
                if p:
                    a(f"v_add_f32 {vr(sm+2*e)}, {vr(sm+2*e)}, {vr(u2)}")
                    a(f"v_add_f32 {vr(sm+2*e+1)}, {vr(sm+2*e+1)}, {vr(u2+1)}")
    s_z = S.alloc()
    def passR():
        L = lab("pr")
        a(f"s_or_b32 {sr(st[3])}, {sr(s_left)}, {sr(s_z)}"); a(f"s_cbranch_scc1 {L}")
        zwrite(); a(L0); BAR(); a(f"s_mov_b32 {sr(s_z)}, 1")
        a(f"{L}:")
    a(f"s_mov_b32 {sr(s_z)}, 0")
    bar(OPT.get("rw", 2))
    a("s_waitcnt vmcnt(16)")
    a(f"s_setprio {OPT.get('rprio', 0)}")
    nch = OPT.get("rn", 4)
    for g in range(nch):
        passR()
        a(f"s_waitcnt vmcnt({16-(16//nch)*(g+1)})")
        sums(16//nch*g, 16//nch*(g+1))
        if g < nch-1 or OPT.get('rl', 1): bar(1)
    for e in range(4): a(f"v_permlane32_swap_b32 {vr(sm+e)}, {vr(sm+4+e)}")
    for e in range(4): a(f"v_add_f32 {vr(sm+e)}, {vr(sm+e)}, {vr(sm+4+e)}")
    a(f"v_cvt_pk_bf16_f32 {vr(buf)}, {vr(sm)}, {vr(sm+1)}")
    a(f"v_cvt_pk_bf16_f32 {vr(buf+1)}, {vr(sm+2)}, {vr(sm+3)}")
    a(f"v_and_b32 {vr(vt[2])}, 31, {vr(vl)}")
    a(f"v_lshrrev_b32 {vr(vt[3])}, 5, {vr(vl)}")
    a(f"v_lshlrev_b32 {vr(vt[2])}, 4, {vr(vt[2])}")
    a(f"v_lshl_add_u32 {vr(vt[2])}, {vr(vt[3])}, 3, {vr(vt[2])}")
    a(f"buffer_store_dwordx2 {vr(buf,2)}, {vr(vt[2])}, {sr(sG,4)}, 0 offen sc1")
    stamp(5)
    a(f"s_setprio {OPT.get('lprio', 2)}")
    for _ in range(OPT.get('re', 2)): passR(); bar(1)
    passR(); a(W0)
    signal(F_B1B, s_nj)
    drain(); passR()
    poll(F_B1B, s_nj, s_mi, 16); stamp(6)
    a(f"s_lshl_b32 {sr(st[0])}, {sr(s_nj)}, 13")
    srd("ws", WS["KVF"], 8192, soff=st[0], d=sG)
    a(f"v_lshlrev_b32 {vr(vt[2])}, 4, {vr(vl)}")
    for g in range(2):
        a(f"s_mov_b32 m0, {M_KVF+4096*g}")
        a(f"s_mov_b32 {sr(st[0])}, {4096*g}")
        for j in range(4): a(f"buffer_load_dwordx4 {vr(vt[2])}, {sr(sG,4)}, {sr(st[0])} offen offset:{1024*j} sc1 lds")
    a(W0); a(L0); stamp(7)
    BAR()
    budget(19); drain()
    helper_branch()
    sp = S.alloc()
    special_pos(P3, s_mi, sp)
    a(f"""s_cmp_ge_u32 {sr(sp)}, 5
          s_cselect_b32 {sr(st[0])}, 5, 0
          s_sub_u32 {sr(st[0])}, {sr(sp)}, {sr(st[0])}
          s_lshl_b32 {sr(st[0])}, {sr(st[0])}, 14
          s_add_u32 {sr(st[0])}, {sr(st[0])}, {W_RING}
          v_lshrrev_b32 {vr(vt[0])}, 2, {vr(vl)}
          v_bfe_u32 {vr(vt[1])}, {vr(vt[0])}, 1, 2
          v_lshlrev_b32 {vr(vt[0])}, 7, {vr(vt[0])}
          v_lshl_add_u32 {vr(vt[0])}, {vr(vt[1])}, 5, {vr(vt[0])}
          v_and_b32 {vr(vt[1])}, 3, {vr(vl)}
          v_lshl_add_u32 {vr(vt[0])}, {vr(vt[1])}, 3, {vr(vt[0])}
          v_add_u32 {vr(q0)}, {sr(st[0])}, {vr(vt[0])}""")
    for t in range(1, 4): a(f"v_xor_b32 {vr(q0+t)}, {32*t}, {vr(q0)}")
    cz = buf+80
    for i in range(4): a(f"v_mov_b32 {vr(ones+i)}, 0x3f803f80")
    a(f"s_add_u32 {sr(s_left)}, {sr(sp)}, 1"); drain()
    a(f"s_sub_u32 {sr(s_left)}, 15, {sr(sp)}")
    for t in range(8):
        for h in range(4): a(f"ds_read_b64_tr_b16 {vr(fr+8*t+2*h,2)}, {vr(q0+(t&3))} offset:{(t>>2)*8192+h*2048}")
    if not OPT.get("hst", 1): stats_issue(A_HST)
    a(L0); bar(1)
    for t in range(8):
        for ks in range(2): a(f"{MF16} {vr(cz+4*t,4)}, {vr(ones,4)}, {vr(fr+8*t+4*ks,4)}, {'0' if ks == 0 else vr(cz+4*t,4)}")
    bar(1)
    for t in range(1, 4):
        a(f"v_cmp_le_u32 vcc, {16*t}, {vr(vl)}")
        for h in range(2): a(f"v_cndmask_b32 {vr(cz+16*h)}, {vr(cz+16*h)}, {vr(cz+16*h+4*t)}, vcc")
    a(f"s_lshl_b32 {sr(st[0])}, {sr(s_n7)}, 9")
    a(f"s_add_u32 {sr(st[0])}, {sr(st[0])}, {A_CIN+1792*4}")
    for h in range(2): a(f"buffer_atomic_add_f32 {vr(cz+16*h)}, {vr(vk)}, {sr(sAcc,4)}, {sr(st[0])} offen offset:{256*h} sc1")
    bar(2); a(W0)
    signal(F_C3, s_n7)
    poll(F_X, s_mi, s_nj, 32, bar)
    poll(F_C3, s_n7, s_mi, 16, bar)
    touch(".code_c3")
    until(2)
    stats_issue(A_HST); cs_get(A_CIN+1792*4, s_n7, M_CS)
    bar(1); a("s_waitcnt vmcnt(2)")
    stats_calc_h()
    drain(); stats_write_h(); a(W0); a(L0); stamp(8)
    BAR()
    T0, T1, T2 = OPT["T0"], OPT["T1"], OPT["T2"]
    budget(T0+2); drain()
    signal(F_B4, s_mi)
    budget(T1-T0-1); bar(1)
    poll(F_B4, s_mi, s_nj, 14, bar); stamp(9)
    a(f"v_lshlrev_b32 {vr(vt[2])}, 4, {vr(vl)}")
    a(f"s_lshl_b32 {sr(st[0])}, {sr(s_mi)}, 10")
    a(f"s_add_u32 {sr(st[0])}, {sr(st[0])}, {A_ZST}")
    a(f"s_mov_b32 m0, {M_ZS}")
    a(f"buffer_load_dwordx4 {vr(vt[2])}, {sr(sAcc,4)}, {sr(st[0])} offen sc1 lds")
    drain(); a(W0); stamp(10)
    BAR()
    budget(T2-T1); drain()
    signal(F_B5, s_n7); touch(".code_c4")
    budget(14-T2)
    poll(F_C4, s_n7, s_mi, 32, bar)
    until(2)
    cs_get(A_CIN, s_n7, M_CS+512)
    drain(); a(W0)
    BAR()
    if OPT.get("hmid"):
        budget(OPT["hmid"]); drain(); signal(F_B4, s_mi)
    budget(34-OPT.get("hmid", 0)); until(7); touch(".code_c5"); drain()
    helper_ret('X')
    budget(29); drain()
    stamp_out(); tb_out()

def compute():
    global v_ones
    compute_common()
    s_n1, s_n2 = S.alloc(), S.alloc()
    sO = S.alloc(4, 4); sZ = S.alloc(4, 4); sY = S.alloc(4, 4); s_so = S.alloc()
    v_ones = V.alloc(4, 4)
    T = V.alloc(64, 4); acc = V.alloc(64, 4); acc2 = V.alloc(64, 4); hres = V.alloc(16, 4)
    wphi = V.alloc(8, 4); rs = V.alloc(8, 2); scp = V.alloc(2, 2)
    adr = V.alloc(6); vo = V.alloc(2); va = V.alloc(4)
    assert V.n <= 254
    W0 = "s_waitcnt vmcnt(0)"; L0 = "s_waitcnt lgkmcnt(0)"
    def zero(b, n):
        for i in range(0, n, 2): a(f"v_mov_b64 {vr(b+i,2)}, 0")
    def lds_addr(dst, lane, sh, wave, wsh, base):
        a(f"s_lshl_b32 {sr(st[0])}, {sr(wave)}, {wsh}")
        a(f"s_add_u32 {sr(st[0])}, {sr(st[0])}, {base}")
        a(f"v_lshl_add_u32 {vr(dst)}, {vr(lane)}, {sh}, {sr(st[0])}")
    def img_srd(base, NTt, kt):
        a(f"s_mul_i32 {sr(st[0])}, {sr(s_mi)}, {NTt}")
        a(f"s_add_u32 {sr(st[0])}, {sr(st[0])}, {sr(kt)}")
        a(f"s_lshl_b32 {sr(st[0])}, {sr(st[0])}, 14")
        srd("ws", base, 16384, soff=st[0], d=sO)
    def read_rs16(base, dst):
        lds_addr(vt[0], v_r16, 2, s_wm, 8, base)
        for i in range(4): a(f"ds_read2_b32 {vr(dst+2*i,2)}, {vr(vt[0])} offset0:{16*i} offset1:{128+16*i}")
    def read_cs16(base, dst):
        lds_addr(vt[1], v_g, 4, s_wn, 8, base)
        for t in range(4): a(f"ds_read_b128 {vr(dst+4*t,4)}, {vr(vt[1])} offset:{t*64}")
    def read_g(dst):
        lds_addr(vt[0], v_r16, 4, s_wm, 10, M_G)
        for i in range(4): a(f"ds_read_b128 {vr(dst+4*i,4)}, {vr(vt[0])} offset:{256*i}")
    def row_stats(pk, npk, base):
        s12 = T+48
        for e in range(npk):
            for i in range(4):
                o = pk+npk*i+e
                a(f"v_dot2_f32_bf16 {vr(s12+2*i)}, {vr(o)}, {vr(v_ones)}, {'0' if e == 0 else vr(s12+2*i)}")
                a(f"v_dot2_f32_bf16 {vr(s12+2*i+1)}, {vr(o)}, {vr(o)}, {'0' if e == 0 else vr(s12+2*i+1)}")
        a(f"s_lshl_b32 {sr(st[0])}, {sr(s_mi)}, 10")
        a(f"s_lshl_b32 {sr(st[1])}, {sr(s_wm)}, 8")
        a(f"s_add_u32 {sr(st[0])}, {sr(st[0])}, {sr(st[1])}")
        if base: a(f"s_add_u32 {sr(st[0])}, {sr(st[0])}, {base}")
        a(f"v_lshlrev_b32 {vr(vt[0])}, 2, {vr(v_r)}")
        a(f"v_lshl_add_u32 {vr(vt[0])}, {vr(v_hf)}, 9, {vr(vt[0])}")
        quad_reduce("v_add_f32", s12)
        for p in range(2): a(f"buffer_atomic_add_f32 {vr(s12+4*p)}, {vr(vt[0])}, {sr(sAcc,4)}, {sr(st[0])} offen offset:{128*p} sc1")
    def swap16(p):
        a(f"v_permlane16_swap_b32 {vr(p)}, {vr(p+2)}")
        a(f"v_permlane16_swap_b32 {vr(p+1)}, {vr(p+3)}")
    def packn(src, dst, n):
        for i in range(n): a(f"v_cvt_pk_bf16_f32 {vr(dst+i)}, {vr(src+2*i)}, {vr(src+2*i+1)}")
    def unpackn(p, dst, n):
        for i in range(n):
            a(f"v_lshlrev_b32 {vr(dst+2*i)}, 16, {vr(p+i)}")
            a(f"v_and_b32 {vr(dst+2*i+1)}, 0xffff0000, {vr(p+i)}")

    for i in range(4): a(f"v_mov_b32 {vr(v_ones+i)}, 0x3f803f80")
    ad = Addr(P1K, adr, adr+2, [T]); ad.init()
    zero(acc, 64)
    a(f"s_xor_b32 {sr(st[1])}, {sr(s_mi)}, {sr(s_nj)}")
    NPK = special_pos(P1K, st[1], s_n1)
    a(f"s_sub_u32 {sr(s_n2)}, {NPK}, {sr(s_n1)}")
    dots = acc2
    a(f"""s_lshl3_add_u32 {sr(st[0])}, {sr(s_mi)}, {sr(s_w)}
          s_lshl_b32 {sr(st[0])}, {sr(st[0])}, 7
          s_add_u32 {sr(st[0])}, {sr(st[0])}, {A_XST}
          v_lshl_add_u32 {vr(dots+6)}, {vr(v_r)}, 2, {sr(st[0])}
          v_lshl_add_u32 {vr(dots+6)}, {vr(v_hf)}, 9, {vr(dots+6)}
          s_lshl2_add_u32 {sr(st[0])}, {sr(s_nj)}, {sr(s_w)}
          s_lshl_b32 {sr(st[0])}, {sr(st[0])}, 7
          s_add_u32 {sr(st[0])}, {sr(st[0])}, {A_CKV}
          v_lshl_add_u32 {vr(dots+7)}, {vr(v_r)}, 2, {sr(st[0])}
          v_lshl_add_u32 {vr(dots+7)}, {vr(v_hf)}, 20, {vr(dots+7)}""")
    ident = hres; aR16, aR32, aG, aW, aK, aZ = [hres+8+i for i in range(6)]
    zero(ident, 6)
    a(f"v_lshlrev_b32 {vr(vt[2])}, 2, {vr(v_g)}")
    a(f"v_sub_u32 {vr(vt[2])}, {vr(v_r16)}, {vr(vt[2])}")
    a(f"v_mov_b32 {vr(vt[3])}, 0x3f80")
    a(f"v_mov_b32 {vr(vt[4])}, 0x3f800000")
    for d in range(4):
        a(f"v_cmp_eq_u32 vcc, {d}, {vr(vt[2])}")
        a(f"v_cndmask_b32 {vr(ident+2+(d>>1))}, {vr(ident+2+(d>>1))}, {vr(vt[3+(d&1)])}, vcc")
    lds_addr(aR16, v_r16, 2, s_wm, 8, M_RS)
    lds_addr(aR32, v_r, 2, s_wm, 8, M_RS)
    lds_addr(aG, v_g, 4, s_wm, 8, M_RS)
    a(f"""v_lshrrev_b32 {vr(vt[2])}, 2, {vr(vl)}
          v_and_b32 {vr(vt[3])}, 3, {vr(vl)}
          v_lshlrev_b32 {vr(vt[3])}, 3, {vr(vt[3])}
          v_lshl_add_u32 {vr(vt[2])}, {vr(vt[2])}, 6, {vr(vt[3])}""")
    lds_addr(aW, vt[2], 0, s_wn, 11, M_WPH)
    lds_addr(vo, v_g, 4, s_wn, 7, M_CS)
    lds_addr(vo+1, v_r16, 2, s_wn, 7, M_CS+256)
    a(f"""s_lshl1_add_u32 {sr(st[0])}, {sr(s_mi)}, {sr(s_wm)}
          s_lshl_b32 {sr(st[0])}, {sr(st[0])}, 9
          v_lshl_add_u32 {vr(aK)}, {vr(v_r)}, 4, {sr(st[0])}
          v_lshl_add_u32 {vr(aK)}, {vr(v_hf)}, 14, {vr(aK)}
          s_lshl1_add_u32 {sr(st[3])}, {sr(s_nj)}, {sr(s_wn)}
          s_lshl_b32 {sr(st[0])}, {sr(st[3])}, 8
          s_add_u32 {sr(st[0])}, {sr(st[0])}, {A_Z}
          v_and_b32 {vr(vt[2])}, 0x23, {vr(vl)}
          v_and_b32 {vr(vt[3])}, 12, {vr(vl)}
          v_lshl_or_b32 {vr(vt[2])}, {vr(vt[3])}, 1, {vr(vt[2])}
          v_bfe_u32 {vr(vt[3])}, {vr(vl)}, 4, 1
          v_lshl_or_b32 {vr(vt[2])}, {vr(vt[3])}, 2, {vr(vt[2])}
          v_lshl_add_u32 {vr(aZ)}, {vr(vt[2])}, 2, {sr(st[0])}""")
    a(L0); common_srds()
    a(f"s_lshl_b32 {sr(st[0])}, {sr(st[3])}, 17")
    srd("ws", WS["KVP"], 131072, soff=st[0], d=sO)
    a(f"s_lshl_b32 {sr(st[0])}, {sr(s_mi)}, 18")
    srd("x", 0, 128*2048, soff=st[0], d=sZ)
    def warm(e):
        Lw = lab("wu")
        for w in range(4):
            Ln = lab("wn")
            if w < 3: a(f"s_cmp_lg_u32 {sr(s_w)}, {w}"); a(f"s_cbranch_scc1 {Ln}")
            for k in range(w, 12, 4): a(f"s_call_b64 {sr(s_ret,2)}, .PAD{e}_{k}")
            if w < 3: a(f"s_branch {Lw}"); a(f"{Ln}:")
        a(f"{Lw}:")
    warm(0)
    stamp(1)
    sw = [0, 0, 1, 1]
    ad.first(); stamp(2)
    ad.loop(0, acc, cnt=s_n1, swap=sw)
    ad.tile(acc, swap=sw, dots=(None if OPT.get('abl', 0) & 1 else dots))
    ad.loop(0, acc, cnt=s_n2, swap=sw)
    for q in range(2): a(f"v_permlane32_swap_b32 {vr(dots+2*q)}, {vr(dots+2*q+1)}")
    a(f"v_permlane16_swap_b32 {vr(dots+4)}, {vr(dots+5)}")
    for q in range(3): a(f"v_add_f32 {vr(dots+2*q)}, {vr(dots+2*q)}, {vr(dots+2*q+1)}")
    a(f"v_mov_b32 {vr(dots+5)}, {vr(dots+4)}")
    a(f"v_permlane16_swap_b32 {vr(dots)}, {vr(dots+2)}")
    a(f"v_permlane32_swap_b32 {vr(dots+4)}, {vr(dots+5)}")
    a(f"v_add_f32 {vr(dots)}, {vr(dots)}, {vr(dots+2)}")
    a(f"v_add_f32 {vr(dots+4)}, {vr(dots+4)}, {vr(dots+5)}")
    if not OPT.get('abl', 0) & 2:
        a(f"buffer_atomic_add_f32 {vr(dots)}, {vr(dots+6)}, {sr(sAcc,4)}, 0 offen sc1")
        a(f"buffer_atomic_add_f32 {vr(dots+4)}, {vr(dots+7)}, {sr(sAcc,4)}, 0 offen sc1")
    KD = OPT.get("kd", 1)
    ad.loop(KD, acc, swap=sw); ad.loop(14-KD-NPK, acc, swap=sw, vm0=True)
    csk, csv, x8, rsv, vpk = acc2, acc2+8, acc2+10, acc2+20, acc2+20
    rd = [f"ds_read2_b32 {vr(rs+2*i,2)}, {vr(aR16)} offset0:{16*i} offset1:{128+16*i}" for i in range(4)]
    rd += [f"ds_read_b128 {vr(csk+4*t,4)}, {vr(vo)} offset:{64*t}" for t in range(2)]
    rd += [f"ds_read_b64_tr_b16 {vr(wphi+4*u+2*h,2)}, {vr(aW)} offset:{1024*h+32*u}" for u in range(2) for h in range(2)]
    rd += [f"ds_read2_b32 {vr(scp,2)}, {vr(aR32)} offset0:0 offset1:32", f"ds_read2_b32 {vr(csv,2)}, {vr(vo+1)} offset0:0 offset1:16"]
    rd += [f"ds_read_b128 {vr(rsv+8*i+4*h,4)}, {vr(aG)} offset:{64*i+512*h}" for i in range(4) for h in range(2)]
    pairs = lambda l: [l[i:i+2] for i in range(0, len(l), 2)]
    a(".code_ck:")
    ad.tile(acc, swap=sw, last=True, tail=pairs(rd)); stamp(3)
    a(L0)
    Lg, em = T, T+32
    def logits(stride):
        for i in range(4):
            packn(acc+stride*i, acc+stride*i, 4)
        for i in range(4):
            for u in range(2): a(f"{MF16} {vr(Lg+8*i+4*u,4)}, {vr(wphi+4*u,4)}, {vr(acc+stride*i,4)}, 0")
    for i in range(4): center(acc+16*i, csk, rs+2*i, 8)
    logits(16)
    for i in range(4): a(f"v_mul_f32 {vr(rs+2*i)}, {f32(LOG2E)}, {vr(rs+2*i)}")
    for q in range(2): a(f"v_mul_f32 {vr(scp+q)}, {f32(LOG2E)}, {vr(scp+q)}")
    for i in range(4):
        for t in range(2):
            for e in range(0, 4, 2):
                x = acc+16*i+8+4*t+e
                a(f"v_pk_fma_f32 {vr(x,2)}, {vr(rsv+8*i+4+e,2)}, {vr(csv,2)}, {vr(x,2)} op_sel:[0,{t},0] op_sel_hi:[1,{t},1]")
        for t in range(2):
            for e in range(0, 4, 2):
                x = acc+16*i+8+4*t+e
                a(f"v_pk_mul_f32 {vr(x,2)}, {vr(x,2)}, {vr(rsv+8*i+e,2)}")
    for i in range(4):
        for t in range(2): packn(acc+16*i+8+4*t, vpk+((i>>1)*2+t)*4+2*(i&1), 2)
    exps(Lg, em, x8, rs, scp)
    w8 = acc2+40
    for i in range(4):
        for sg, src in enumerate((Lg, em)):
            d = w8+4*i+2*sg
            a(f"v_pk_add_f32 {vr(d,2)}, {vr(src+8*i,2)}, {vr(src+8*i+2,2)}")
    for e in (4, 6):
        for i in range(4):
            for sg, src in enumerate((Lg, em)):
                d = w8+4*i+2*sg
                a(f"v_pk_add_f32 {vr(d,2)}, {vr(d,2)}, {vr(src+8*i+e,2)}")
    for i in range(4):
        for sg in range(2): a(f"v_add_f32 {vr(x8+2*i+sg)}, {vr(w8+4*i+2*sg)}, {vr(w8+4*i+2*sg+1)}")
    quad_reduce("v_add_f32", x8)
    for q in range(2): a(f"v_rcp_f32 {vr(x8+4*q)}, {vr(x8+4*q)}")
    quad_bcast(x8)
    for i in range(4):
        for sg, src in enumerate((Lg, em)):
            for e in range(0, 8, 2): a(f"v_pk_mul_f32 {vr(src+8*i+e,2)}, {vr(src+8*i+e,2)}, {vr(x8+2*i,2)} op_sel:[0,{sg}] op_sel_hi:[1,{sg}]")
    kvp, zs = acc+32, acc2+40
    cv = lambda src, dst, n: [f"v_cvt_pk_bf16_f32 {vr(dst+i)}, {vr(src+2*i)}, {vr(src+2*i+1)}" for i in range(n)]
    def weave(mm, vv):
        for k, m in enumerate(mm):
            a(m)
            for x in vv[len(vv)*k//len(mm):len(vv)*(k+1)//len(mm)]: a(x)
    phi = lambda sg: [x for i in range(4) for x in cv((Lg, em)[sg]+8*i, acc+8*i+4*sg, 4)]
    trn = lambda sg: [f"{MF16} {vr(T+((sg*2+u)*4+i)*4,4)}, {vr(acc+8*i+4*sg,4)}, {vr(ident+2-2*u,4)}, 0" for u in range(2) for i in range(4)]
    tpk = lambda sg: [x for u in range(2) for p in range(2) for x in cv(T+16*(2*sg+u)+8*p, T+16*(2*sg+u)+4*p, 4)]
    def kvm(sg):
        out = []
        for u in range(2):
            q = 2*sg+u
            for p in range(2):
                for t in range(2):
                    d = kvp+((sg*2+t)*2+u)*4
                    out.append(f"{MF16} {vr(d,4)}, {vr(T+16*q+4*p,4)}, {vr(vpk+(p*2+t)*4,4)}, {'0' if p == 0 else vr(d,4)}")
        return out
    zm = [f"{MF16} {vr(zs+4*q,4)}, {vr(v_ones,4)}, {vr(T+16*q+4*p,4)}, {'0' if p == 0 else vr(zs+4*q,4)}" for q in range(4) for p in range(2)]
    sto = lambda j: cv(kvp+8*j, kvp+8*j, 4) + [f"buffer_store_dwordx4 {vr(kvp+8*j,4)}, {vr(aK)}, {sr(sO,4)}, {sr(st[0])} offen sc1", f"s_add_u32 {sr(st[0])}, {sr(st[0])}, 32768"]
    for x in phi(0): a(x)
    weave(trn(0), phi(1)); weave(trn(1), tpk(0)); weave(kvm(0), tpk(1))
    a(f"s_mov_b32 {sr(st[0])}, 0")
    ad = Addr(P1Q, adr, adr+2, [T, acc2])
    weave(kvm(1), [f"s_mov_b32 {sr(s_ra)}, 0", f"s_mov_b32 {sr(s_rw)}, 0"] + ad.upd()[1] + ad.upd()[2] + sto(0) + sto(1))
    weave(zm, ["s_nop 0"]*4 + sto(2) + sto(3))
    a(f"v_mov_b32 {vr(vt[0])}, {vr(zs)}")
    for q in range(1, 4):
        a(f"v_cmp_le_u32 vcc, {16*q}, {vr(vl)}")
        a(f"v_cndmask_b32 {vr(vt[0])}, {vr(vt[0])}, {vr(zs+4*q)}, vcc")
    a(f"buffer_atomic_add_f32 {vr(vt[0])}, {vr(aZ)}, {sr(sAcc,4)}, 0 offen sc1")
    for _ in range(OPT.get("idleQ", 0)): a("s_sleep 32")
    stamp(4)
    TQ = OPT["TQ"]; assert TQ % 2 == 0 and TQ >= 2
    ad.first(); stamp(5)
    ad.tile(acc, zero=True, b=0); ad.tile(acc, b=1)
    ad.loop(TQ-2, acc); ad.loop(14-TQ, acc, vm0=True)
    csq, zf, x8 = acc+32, acc+40, acc+48
    rd = [f"ds_read_b128 {vr(csq+4*t,4)}, {vr(vo)} offset:{512+64*t}" for t in range(2)]
    rd += [f"ds_read_b128 {vr(zf+4*sg,4)}, {vr(vo)} offset:{M_ZF-M_CS+64*sg}" for sg in range(2)]
    a(".code_cq:")
    ad.tile(acc, b=0); ad.tile(acc, b=1, last=True, tail=rd); stamp(6)
    def row_addr():
        a(f"""s_lshl_b32 {sr(st[0])}, {sr(s_wm)}, 17
              s_lshl1_add_u32 {sr(st[1])}, {sr(s_nj)}, {sr(s_wn)}
              s_lshl_b32 {sr(st[1])}, {sr(st[1])}, 6
              s_add_u32 {sr(st[0])}, {sr(st[0])}, {sr(st[1])}
              v_lshl_add_u32 {vr(vo)}, {vr(v_r16)}, 11, {sr(st[0])}
              v_lshl_add_u32 {vr(vo)}, {vr(v_hf)}, 4, {vr(vo)}
              v_and_b32 {vr(vt[0])}, 1, {vr(v_g)}
              v_lshl_add_u32 {vr(vo)}, {vr(vt[0])}, 5, {vr(vo)}""")
    a(L0)
    for i in range(4): center(acc+8*i, csq, rs+2*i, 8)
    logits(8)
    row_addr()
    for i in range(4):
        a(f"s_mov_b32 {sr(st[0])}, {i*32768}")
        a(f"buffer_load_dwordx4 {vr(hres+4*i,4)}, {vr(vo)}, {sr(sZ,4)}, {sr(st[0])} offen")
    img_srd(WS["O"], 16, s_nj)
    a(f"""s_lshl3_add_u32 {sr(st[0])}, {sr(s_wm)}, {sr(s_wn)}
          s_lshl_b32 {sr(st[0])}, {sr(st[0])}, 10
          v_lshl_add_u32 {vr(vo+1)}, {vr(vl)}, 4, {sr(st[0])}
          s_mov_b32 {sr(st[2])}, 4096""")
    lds_addr(vt[4], vl, 4, s_wn, 12, M_KVF)
    exps(Lg, em, x8, rs, scp)
    eq = acc
    Sm, Dn = acc2, acc2+32
    for i in range(4):
        for sg, src in enumerate((Lg, em)): packn(src+8*i, eq+8*i+4*sg, 4)
        for sg in range(2):
            a(f"{MF16} {vr(Sm+8*i+4*sg,4)}, {vr(v_ones,4)}, {vr(eq+8*i+4*sg,4)}, 0")
            a(f"{MF16} {vr(Dn+8*i+4*sg,4)}, {vr(zf+4*sg,4)}, {vr(eq+8*i+4*sg,4)}, 0")
    for i in range(4):
        for sg in range(2): a(f"v_rcp_f32 {vr(x8+2*i+sg)}, {vr(Sm+8*i+4*sg)}")
    for i in range(4): a(f"v_fmaak_f32 {vr(Dn+8*i)}, {vr(Dn+8*i)}, {vr(x8+2*i)}, {f32(1e-6)}")
    for i in range(4): a(f"v_fmac_f32 {vr(Dn+8*i)}, {vr(Dn+8*i+4)}, {vr(x8+2*i+1)}")
    for i in range(4): a(f"v_rcp_f32 {vr(Dn+8*i)}, {vr(Dn+8*i)}")
    for i in range(4): a(f"v_pk_mul_f32 {vr(x8+2*i,2)}, {vr(x8+2*i,2)}, {vr(Dn+8*i,2)} op_sel_hi:[1,0]")
    stamp(7)
    kvf = acc+32
    a("s_barrier")
    for j in range(4): a(f"ds_read_b128 {vr(kvf+4*j,4)}, {vr(vt[4])} offset:{j*1024}")
    a(L0); stamp(8)
    for i in range(4):
        for sg in range(2):
            for t in range(2): a(f"{MF16} {vr(T+16*i+8*sg+4*t,4)}, {vr(kvf+(sg*2+t)*4,4)}, {vr(eq+8*i+4*sg,4)}, 0")
    for i in range(4):
        n = T+16*i
        for e in range(0, 8, 2): a(f"v_pk_mul_f32 {vr(n+e,2)}, {vr(n+e,2)}, {vr(x8+2*i,2)} op_sel_hi:[1,0]")
        for e in range(0, 8, 2): a(f"v_pk_fma_f32 {vr(n+e,2)}, {vr(n+8+e,2)}, {vr(x8+2*i,2)}, {vr(n+e,2)} op_sel:[0,1,0] op_sel_hi:[1,1,1]")
        packn(n, n, 4)
        a(f"buffer_store_dwordx4 {vr(n,4)}, {vr(vo+1)}, {sr(sO,4)}, {sr(st[2]) if i >= 2 else 0} offen offset:{(i&1)*2048} sc1")
    handoff(F_B2); stamp(9)
    a.L.append("@PAGE")
    ad = Addr(P2, adr, adr+4, [T, acc2]); ad.init()
    for i in range(4): swap16(hres+4*i)
    unpackn(hres, acc, 16)
    img_srd(WS["H"], 16, s_nj)
    a(f"s_mov_b32 {sr(st[2])}, 4096")
    warm(1); a.L.append("@EPOCH1")
    ad.first(); stamp(10)
    fin2 = lambda i, w: cv(acc+8*i, hres+4*i, 4) + [f"buffer_store_dwordx4 {vr(hres+4*i,4)}, {vr(vo+1)}, {sr(sO,4)}, {sr(st[2]) if i >= 2 else 0} offen offset:{(i&1)*2048} sc1"]
    ad.loop(14, acc); ad.tile(acc, b=0)
    if OPT.get("fin", 7) & 1: ad.tile(acc, b=1, last=True, fin=fin2); stamp(11)
    else:
        ad.tile(acc, b=1, last=True); stamp(11)
        for i in range(4):
            for x in fin2(i, False): a(x)
    if not OPT.get("hst", 1): row_stats(hres, 4, A_HST)
    handoff(F_B3); stamp(12)
    if OPT.get("hst", 1):
        row_stats(hres, 4, A_HST); arrive(F_X, s_mi)
    helper_branch()
    a.L.append("@PAGE")
    ad = Addr(P3, adr, adr+2, [T]); ad.init()
    a(f"s_lshl1_add_u32 {sr(st[0])}, {sr(s_mi)}, {sr(s_wm)}")
    a(f"s_lshl_b32 {sr(st[0])}, {sr(st[0])}, 7")
    srd("b_sp", 0, 128, soff=st[0], d=sZ)
    a(f"v_lshlrev_b32 {vr(vt[0])}, 1, {vr(v_r16)}")
    assert rs == wphi+8
    braw = [wphi, wphi+4, scp, scp+1]
    for i in range(4): a(f"buffer_load_ushort {vr(braw[i])}, {vr(vt[0])}, {sr(sZ,4)}, 0 offen offset:{i*32}")
    zero(acc2, 64)
    aG, aC, aZ, aS = va, va+1, va+2, va+3
    lds_addr(aG, v_r16, 4, s_wm, 10, M_G); lds_addr(aC, v_g, 4, s_wn, 8, M_CS); lds_addr(aZ, v_r16, 2, s_wm, 8, M_ZS)
    a(f"""s_lshl2_add_u32 {sr(st[0])}, {sr(s_mi)}, {sr(s_wm)}
          s_lshl_b32 {sr(st[0])}, {sr(st[0])}, 8
          s_add_u32 {sr(st[0])}, {sr(st[0])}, {A_ZST}
          v_lshl_add_u32 {vr(aS)}, {vr(v_r)}, 2, {sr(st[0])}
          v_lshl_add_u32 {vr(aS)}, {vr(v_hf)}, 9, {vr(aS)}
          s_lshl1_add_u32 {sr(st[1])}, {sr(s_mi)}, {sr(s_wm)}
          s_lshl_b32 {sr(st[0])}, {sr(s_n7)}, 5
          s_add_u32 {sr(st[0])}, {sr(st[0])}, {sr(st[1])}
          s_lshl1_add_u32 {sr(st[0])}, {sr(st[0])}, {sr(s_wn)}
          s_lshl_b32 {sr(st[0])}, {sr(st[0])}, 13""")
    srd("ws", WS["Z2N"], 8192, soff=st[0], d=sY)
    a(f"""v_lshlrev_b32 {vr(vo)}, 2, {vr(v_hf)}
          v_xor_b32 {vr(vo)}, {vr(vo)}, {vr(v_r16)}
          v_lshlrev_b32 {vr(vo)}, 4, {vr(vo)}
          v_lshl_add_u32 {vr(vo)}, {vr(v_hf)}, 10, {vr(vo)}
          v_and_b32 {vr(vt[2])}, 1, {vr(v_g)}
          v_lshl_add_u32 {vr(vo)}, {vr(vt[2])}, 11, {vr(vo)}
          s_mov_b32 {sr(s_so)}, 4096
          s_lshl1_add_u32 {sr(st[1])}, {sr(s_n7)}, {sr(s_wn)}""")
    img_srd(WS["P"], 28, st[1])
    a(f"s_lshl_b32 {sr(st[0])}, {sr(s_wm)}, 13")
    a(f"v_lshl_add_u32 {vr(vo+1)}, {vr(vl)}, 4, {sr(st[0])}")
    ad.first(); stamp(13)
    cs = T; gq = T+16; u = T+32; s12 = T+48; z2 = acc2
    gc = lambda off: [f"ds_read_b128 {vr(cs+4*t,4)}, {vr(aC)} offset:{off+t*64}" for t in range(4)] + [f"ds_read_b128 {vr(gq+4*i,4)}, {vr(aG)} offset:{256*i}" for i in range(4)]
    ad4 = Addr(P4, adr, adr+2, [T])
    ad.loop(15, acc2); a(".code_c3:"); ad.tile(acc2, last=True, tail=["s_nop 0"] + gc(0) + [[f"s_mov_b32 {sr(s_ra)}, 0", f"s_mov_b32 {sr(s_rw)}, 0"]] + ad4.upd()[1] + ad4.upd()[2]); stamp(14)
    ad = ad4
    a(L0)
    for i in range(4):
        x = z2+16*i
        gelu16(x, cs, gq+4*i, u)
        a(f"v_pk_add_f32 {vr(u,2)}, {vr(x,2)}, {vr(x+2,2)}")
        a(f"v_pk_mul_f32 {vr(u+2,2)}, {vr(x,2)}, {vr(x,2)}")
        for e in range(2, 16, 2):
            if e > 2: a(f"v_pk_add_f32 {vr(u,2)}, {vr(u,2)}, {vr(x+e,2)}")
            a(f"v_pk_fma_f32 {vr(u+2,2)}, {vr(x+e,2)}, {vr(x+e,2)}, {vr(u+2,2)}")
        a(f"v_add_f32 {vr(s12+2*i)}, {vr(u)}, {vr(u+1)}")
        a(f"v_add_f32 {vr(s12+2*i+1)}, {vr(u+2)}, {vr(u+3)}")
    quad_reduce("v_add_f32", s12)
    for p in range(2): a(f"buffer_atomic_add_f32 {vr(s12+4*p)}, {vr(aS)}, {sr(sAcc,4)}, 0 offen offset:{128*p} sc1")
    stamp(15)
    T0, T1, T2 = OPT["T0"], OPT["T1"], OPT["T2"]
    zrs = rs
    ad.first(); stamp(16)
    ad.tile(acc, zero=True)
    ad.loop(T0-1, acc); ad.loop(T1-T0, acc, vm0=True)
    ad.tile(acc, tail=[('Z', f"ds_read2_b32 {vr(zrs+2*i,2)}, {vr(aZ)} offset0:{16*i} offset1:{128+16*i}") for i in range(4)])
    a(L0)
    for i in range(4): var_eps(zrs+2*i, zrs+2*i+1, 1792)
    for i in range(4): a(f"v_rsq_f32 {vr(zrs+2*i+1)}, {vr(zrs+2*i+1)}")
    for i in range(4): a(f"v_mul_f32 {vr(zrs+2*i)}, {vr(zrs+2*i)}, {vr(zrs+2*i+1)}")
    for i in range(4):
        o = z2+16*i
        for e in range(0, 16, 2):
            a(f"v_pk_fma_f32 {vr(o+e,2)}, {vr(o+e,2)}, {vr(zrs+2*i,2)}, {vr(zrs+2*i,2)} op_sel:[0,1,0] op_sel_hi:[1,1,0]")
        pack16(o, o)
        for m in range(2):
            swap16(o+4*m)
            a(f"buffer_store_dwordx4 {vr(o+4*m,4)}, {vr(vo)}, {sr(sY,4)}, {sr(s_so) if m else 0} offen offset:{i*256} sc1")
    stamp(17)
    ad.loop(T2-T1-1, acc); ad.loop(15-T2, acc, vm0=True)
    a(".code_c4:")
    ad.tile(acc, last=True, tail=["s_nop 0"] + gc(512) + [f"v_lshlrev_b32 {vr(wphi+4*i+e)}, 16, {vr(braw[i])}" for i in range(4) for e in (3, 2, 1, 0)]); stamp(18)
    ad = Addr(P5, adr, adr+2, [T]); ad.init()
    a(L0)
    z1 = acc
    for i in range(4): gelu16(z1+16*i, cs, gq+4*i, u)
    for _ in range(OPT.get("idle5", 0)): a("s_sleep 32")
    stamp(19)
    ad.first(); stamp(20)
    ad.tile(acc2, cin=wphi); ad.loop(30, acc2); a(".code_c5:"); pass
    def fin5(i, woven):
        x = acc2+16*i; out = []
        for m in range(2):
            if woven: out += [f"v_mul_f32 {vr(x+e)}, {vr(x+e)}, {vr(z1+16*i+e)}" for e in range(8*m, 8*m+8)]
            else: out += [f"v_pk_mul_f32 {vr(x+e,2)}, {vr(x+e,2)}, {vr(z1+16*i+e,2)}" for e in range(8*m, 8*m+8, 2)]
            out += cv(x+8*m, x+8*m, 4)
            out += [f"buffer_store_dwordx4 {vr(x+8*m,4)}, {vr(vo+1)}, {sr(sO,4)}, {sr(s_so) if i >= 2 else 0} offen offset:{(i&1)*2048+m*1024} sc1"]
        return out
    if OPT.get("fin", 7) & 2: ad.tile(acc2, last=True, fin=lambda i, w: fin5(i, w and i == 0), rate=OPT.get("rate5", 3)); stamp(21)
    else:
        ad.tile(acc2, last=True); stamp(21)
        for i in range(4):
            for x in fin5(i, False): a(x)
    handoff(F_B6); stamp(22)
    helper_ret('C')
    a.L.append("@PAGE")
    ad = Addr(P6, adr, adr+4, [T, acc2]); ad.init()
    unpackn(hres, acc, 16)
    a(f"s_lshl_b32 {sr(st[0])}, {sr(s_mi)}, 18")
    srd("out", 0, 128*2048, soff=st[0], d=sO)
    row_addr()
    ad.first(); stamp(23)
    opol = ['', 'sc1', 'nt', 'sc0 sc1'][OPT.get('opol', 0)]
    fin6 = lambda i, w: cv(acc+8*i, hres+4*i, 4) + [f"s_mov_b32 {sr(st[0])}, {i*32768}", f"v_permlane16_swap_b32 {vr(hres+4*i)}, {vr(hres+4*i+2)}",
        f"v_permlane16_swap_b32 {vr(hres+4*i+1)}, {vr(hres+4*i+3)}", f"buffer_store_dwordx4 {vr(hres+4*i,4)}, {vr(vo)}, {sr(sO,4)}, {sr(st[0])} offen {opol}"]
    ad.loop(26, acc); ad.tile(acc, b=0)
    if OPT.get("fin", 7) & 4: ad.tile(acc, b=1, last=True, fin=fin6); stamp(24)
    else:
        ad.tile(acc, b=1, last=True); stamp(24)
        for i in range(4):
            for x in fin6(i, False): a(x)
    if OPT["stamp"]: a(W0)
    stamp(25)
    stamp_out()
    if OPT.get("amp"):
        k0, k1 = divmod(OPT["amp"], 100)
        L = lab("am"); L2 = lab("am2")
        a(f"s_cmp_lg_u32 s2, 9"); a(f"s_cbranch_scc1 {L}")
        a(f"v_readlane_b32 {sr(st[0])}, {vr(v_stamp)}, {k0}")
        a(f"v_readlane_b32 {sr(st[1])}, {vr(v_stamp)}, {k1}")
        a(f"v_readlane_b32 {sr(st[2])}, {vr(v_stamp)}, 25")
        a(f"s_sub_u32 {sr(st[1])}, {sr(st[1])}, {sr(st[0])}")
        a(f"s_lshl_b32 {sr(st[1])}, {sr(st[1])}, 2")
        a(f"{L2}:")
        a(f"s_memrealtime {sr(s_tm,2)}"); a("s_waitcnt lgkmcnt(0)")
        a(f"s_sub_u32 {sr(st[0])}, {sr(s_tm)}, {sr(st[2])}")
        a(f"s_cmp_lt_u32 {sr(st[0])}, {sr(st[1])}"); a(f"s_cbranch_scc1 {L2}")
        a(f"{L}:")
    if OPT.get("dbgst"):
        L = lab("ds")
        a(f"s_cmp_lg_u32 s2, {OPT['dbgst']-1}"); a(f"s_cbranch_scc1 {L}"); a(f"s_cmp_lg_u32 {sr(s_w)}, 0"); a(f"s_cbranch_scc1 {L}")
        a(f"v_readlane_b32 {sr(st[0])}, {vr(v_stamp)}, 0")
        for i, k in enumerate((1, 2, 3, 4, 6, 8, 10, 11, 13, 14, 16, 18, 20, 21, 23, 24)):
            a(f"v_readlane_b32 {sr(st[1])}, {vr(v_stamp)}, {k}")
            a(f"s_sub_u32 {sr(st[1])}, {sr(st[1])}, {sr(st[0])}")
            a(f"v_writelane_b32 {vr(vt[1])}, {sr(st[1])}, {i}")
        a(f"v_lshlrev_b32 {vr(vt[0])}, 2, {vr(vl)}")
        a("s_mov_b64 exec, 0xffff")
        a(f"global_store_dword {vr(vt[0])}, {vr(vt[1])}, {sr(P['dbg'],2)}")
        a(f"{L}:")

if __name__ == "__main__":
    out = sys.argv[1]
    for arg in sys.argv[2:]:
        k, _, v = arg.partition("=")
        OPT[k] = int(v) if v else True
    for k in WS:
        if k != "STAMP": WS[k] += OPT.get("wsb", 0)*MB
    txt = build()
    open(out, "w").write(txt)
    print("vgpr hi", V.hi, "sgpr hi", S.hi, "lines", txt.count("\n"))
```

```python
import sys, struct
from asmlib import *
import hazard

NAME = "sequential_preLN__linear_kernel_hedgehog__mixer_gmlp__prompt"
KNAME = NAME + "_kernel"
MB = 1 << 20; KB = 1024
WS = dict(O=0, H=4*MB, Z2N=8*MB, P=16*MB, KVP=24*MB, KVF=32*MB, XST=32*MB+128*KB, ACC=33*MB, FLG=34*MB, STAMP=64*MB)
A_HST, A_ZST, A_CKV, A_CIN, A_Z, A_XST, A_CQ = 0, 16*KB, 32*KB, 40*KB, 56*KB, 64*KB, 80*KB
F_X, F_B2, F_B3, F_B4, F_B6, F_CKV, F_B1A, F_B1B, F_C3, F_C4, F_B5 = range(11)
A_RING, W_RING, MISC = 0, 65536, 147456
M_RS, M_CS, M_ZS, M_ZF, M_CNT, M_KVF, M_CP = MISC, MISC+1024, MISC+2048, MISC+3072, MISC+3584, MISC+4096, MISC+12288
M_WPH = M_KVF+4096
M_G = M_KVF
M_XP = M_KVF

LDS_BYTES = 163840
LOG2E = 1.4426950408889634
GC0 = -2*0.7978845608028654*LOG2E; GC1 = GC0*0.044715
MF = "v_mfma_f32_32x32x16_bf16"; MF16 = "v_mfma_f32_16x16x32_bf16"
def f32(x): return "0x%08x" % struct.unpack("<I", struct.pack("<f", x))[0]
OPT = dict(stamp=False, T0=1, T1=8, T2=12, TQ=2, TQw=2, TQp=1, rb=0, rw=2, rn=4, rl=0, rprio=2, prefetch=1, preQ=9, hl2=6, c3=0, hc3=0, hsleep=1, hn=6, c3s=5, c3n=0, late=1, opol=1, zerokv=1, pK=2, mK=1, deepA=19, spread=31, pW4=5, pA5=4, pW5=4, pW2=10, pW3=5, pW6=10, spf=0, grpsp=1, leadsp=1, forcesp=0, grpout=1, leadout=1, rotz1=12, forcez1=1, ncwo=8, grpwo=1, leadwo=1, forcewo=0, shift=3, rotwo=15, ncout=4, forceout=0, rotout=0)

a = Asm()
HOOK = None
V = Regs(1, 256); S = Regs(4, 102)
P = {}
def lab(b="L"): return a.label(b)

def srd(ptr, off, size, soff=None, d=None):
    if d is None: d = S.alloc(4, 4)
    p = P[ptr]
    if off and soff is not None:
        a(f"s_add_u32 {sr(d+2)}, {sr(soff)}, {off}")
        a(f"s_add_u32 {sr(d)}, {sr(p)}, {sr(d+2)}")
        a(f"s_addc_u32 {sr(d+1)}, {sr(p+1)}, 0")
    elif off or soff is not None:
        a(f"s_add_u32 {sr(d)}, {sr(p)}, {off if off else sr(soff)}")
        a(f"s_addc_u32 {sr(d+1)}, {sr(p+1)}, 0")
    else:
        a(f"s_mov_b64 {sr(d,2)}, {sr(p,2)}")
    a(f"s_mov_b32 {sr(d+2)}, {size}")
    a(f"s_mov_b32 {sr(d+3)}, 0x20000")
    return d
def stamp(i):
    if not OPT["stamp"]: return
    if i == 0: a(f"s_memrealtime {sr(s_m,2)}"); return
    a(f"s_memrealtime {sr(s_tm,2)}")
    a("s_waitcnt lgkmcnt(0)")
    if i == 1: a(f"v_writelane_b32 {vr(v_stamp)}, {sr(s_m)}, 0")
    if OPT.get("clk") and i < 26:
        a(f"s_memtime {sr(s_m,2)}"); a("s_waitcnt lgkmcnt(0)"); a(f"v_writelane_b32 {vr(v_stamp)}, {sr(s_m)}, {36+i}")
    a(f"v_writelane_b32 {vr(v_stamp)}, {sr(s_tm)}, {i}")
def stamp_out():
    if not OPT["stamp"]: return
    a(f"s_lshl_b32 {sr(st[0])}, s2, 3")
    a(f"s_add_u32 {sr(st[0])}, {sr(st[0])}, {sr(s_w)}")
    a(f"s_lshl_b32 {sr(st[0])}, {sr(st[0])}, 8")
    a(f"s_add_u32 {sr(st[0])}, {sr(st[0])}, {WS['STAMP']}")
    a(f"v_lshl_add_u32 {vr(vt[0])}, {vr(vl)}, 2, {sr(st[0])}")
    a(f"global_store_dword {vr(vt[0])}, {vr(v_stamp)}, {sr(P['ws'],2)}")
TR = {}
def tb_init(role):
    if OPT.get("trace") != role: return
    TR['v'] = V.alloc(8); TR['i'] = S.alloc(); TR['t'] = S.alloc(2, 2); TR['b'] = 0
    a(f"s_mov_b32 {sr(TR['i'])}, -1")
    for i in range(8): a(f"v_mov_b32 {vr(TR['v']+i)}, 0")
def tb_bank(b):
    if TR: TR['b'] = b
def BAR():
    if not TR: a("s_barrier"); return
    a("s_waitcnt lgkmcnt(0)")
    a(f"v_mov_b32 {vr(TR['v']+7)}, {sr(TR['t'])}")
    a(f"v_cmp_eq_u32 vcc, {sr(TR['i'])}, {vr(TR['v']+6)}")
    a(f"v_cndmask_b32 {vr(TR['v']+TR['b'])}, {vr(TR['v']+TR['b'])}, {vr(TR['v']+7)}, vcc")
    a(f"v_subrev_u32 {vr(TR['v']+6)}, 1, {vr(TR['v']+6)}")
    a("s_barrier")
    a(f"s_memrealtime {sr(TR['t'],2)}")
def tb_reset():
    if TR: a(f"v_subrev_u32 {vr(TR['v']+6)}, 1, {vr(vl)}")
def tb_out():
    if not TR: return
    a(f"s_lshl_b32 {sr(st[0])}, s2, 3")
    a(f"s_add_u32 {sr(st[0])}, {sr(st[0])}, {sr(s_w)}")
    a(f"s_lshl_b32 {sr(st[0])}, {sr(st[0])}, 11")
    a(f"s_add_u32 {sr(st[0])}, {sr(st[0])}, {WS['STAMP']+MB}")
    a(f"v_lshl_add_u32 {vr(vt[0])}, {vr(vl)}, 2, {sr(st[0])}")
    for i in range(8): a(f"global_store_dword {vr(vt[0])}, {vr(TR['v']+i)}, {sr(P['ws'],2)} offset:{256*i}")
    TR.clear()
def pack16(src, dst):
    for i in range(8): a(f"v_cvt_pk_bf16_f32 {vr(dst+i)}, {vr(src+2*i)}, {vr(src+2*i+1)}")
def swap8(p):
    for h in range(2):
        a(f"v_permlane32_swap_b32 {vr(p+4*h)}, {vr(p+4*h+2)}")
        a(f"v_permlane32_swap_b32 {vr(p+4*h+1)}, {vr(p+4*h+3)}")
def unpack8(p, dst):
    for i in range(8):
        a(f"v_lshlrev_b32 {vr(dst+2*i)}, 16, {vr(p+i)}")
        a(f"v_and_b32 {vr(dst+2*i+1)}, 0xffff0000, {vr(p+i)}")
def wave_sum(vs, t, full=True):
    for m in ("quad_perm:[1,0,3,2]", "quad_perm:[2,3,0,1]", "row_half_mirror", "row_mirror"):
        for v in vs: a(f"v_add_f32_dpp {vr(v)}, {vr(v)}, {vr(v)} {m} row_mask:0xf bank_mask:0xf")
    for op in ("v_permlane16_swap_b32", "v_permlane32_swap_b32")[:2 if full else 1]:
        for i, v in enumerate(vs): a(f"v_mov_b32 {vr(t+i)}, {vr(v)}")
        for i, v in enumerate(vs): a(f"{op} {vr(v)}, {vr(t+i)}")
        for i, v in enumerate(vs): a(f"v_add_f32 {vr(v)}, {vr(v)}, {vr(t+i)}")
NREP = 4
def signal(kind, grp, pre=None):
    a(f"s_lshl_b32 {sr(st[0])}, {sr(grp)}, 11")
    if pre: a(pre)
    for r in range(NREP): a(f"s_atomic_add {sr(s_one)}, {sr(sF,2)}, {sr(st[0])} offset:{kind*32768+128*r}")
def arrive(kind, grp):
    L = lab("arr")
    a(f"v_mov_b32 {vr(vt[0])}, {M_CNT+4*kind}")
    a(f"v_mov_b32 {vr(vt[1])}, 1")
    a("s_mov_b64 exec, 1")
    a("s_waitcnt vmcnt(0)")
    a(f"ds_add_rtn_u32 {vr(vt[2])}, {vr(vt[0])}, {vr(vt[1])}")
    a("s_waitcnt lgkmcnt(0)")
    a(f"v_readfirstlane_b32 {sr(st[0])}, {vr(vt[2])}")
    a("s_mov_b64 exec, -1")
    a(f"s_cmp_lg_u32 {sr(st[0])}, 3")
    a(f"s_cbranch_scc1 {L}")
    signal(kind, grp)
    a(f"{L}:")
def HM(): return 4 if OPT.get('late') == 2 else 1
def handoff(kind):
    if not OPT.get("late"):
        a("s_barrier"); arrive(kind, s_mi); return
    if OPT["late"] == 2:
        a("s_barrier"); signal(kind, s_mi, pre="s_waitcnt vmcnt(0)"); return
    L = lab("ho")
    a("s_waitcnt vmcnt(0)")
    a("s_barrier")
    a(f"s_cmp_lg_u32 {sr(s_w)}, 0"); a(f"s_cbranch_scc1 {L}")
    signal(kind, s_mi)
    a(f"{L}:")
def ctr_off(d, grp, rep):
    a(f"s_and_b32 {sr(d)}, {sr(rep)}, {NREP-1}")
    a(f"s_lshl4_add_u32 {sr(d)}, {sr(grp)}, {sr(d)}")
    a(f"s_lshl_b32 {sr(d)}, {sr(d)}, 7")
def poll(kind, grp, rep, n, bar=None, lazy=None, second=None):
    L = lab("poll"); D = lab("pdone")
    ctr_off(st[0], grp, rep)
    if second: ctr_off(st[2], second[1], second[2])
    a(f"{L}:")
    a(f"s_load_dword {sr(s_pv)}, {sr(sF,2)}, {sr(st[0])} offset:{kind*32768} glc")
    if second: a(f"s_load_dword {sr(s_pv+1)}, {sr(sF,2)}, {sr(st[2])} offset:{second[0]*32768} glc")
    if bar: bar()
    a(f"s_sub_u32 {sr(s_to)}, {sr(s_to)}, 1")
    a("s_waitcnt lgkmcnt(0)")
    a(f"s_cbranch_scc1 {D}")
    if second: a(f"s_min_u32 {sr(s_pv)}, {sr(s_pv)}, {sr(s_pv+1)}")
    if lazy:
        Z = lab("pz")
        a(f"s_cmp_lg_u32 {sr(s_pv)}, 0"); a(f"s_cbranch_scc1 {Z}"); a(f"s_sleep {lazy}"); a(f"{Z}:")
    a(f"s_cmp_lt_u32 {sr(s_pv)}, {n}")
    a(f"s_cbranch_scc1 {L}")
    a(f"{D}:")
    a(f"s_max_i32 {sr(s_to)}, {sr(s_to)}, 0")

class Ph:
    def __init__(s, name, NT, mf, am, lda, wm_, ldw, nseg, lead, nc, force=True):
        s.name, s.NT, s.mf, s.am, s.lda, s.wm, s.ldw, s.nseg, s.lead, s.nc, s.force = name, NT, mf, am, lda, wm_, ldw, nseg, lead, nc, force
        s.ld = {}
P1K = Ph("kv", 16, 16, 'row', 2048, 'sub', 6144, 2, 2, 4, force=False);  P1K.segoff = 2048
P1Q = Ph("q",  16, 16, 'row', 2048, 'sub', 6144, 1, 2, 4, force=False)
P2  = Ph("wo", 16, 16, 'frag', 0, 'sub', 2048, 1, 2, 4, force=False)
P3  = Ph("z2", 16, 16, 'frag', 0, 'seg', 7168, 2, 2, 4, force=False);    P3.segoff = 128
P4  = Ph("z1", 16, 16, 'frag', 0, 'seg', 7168, 2, 2, 4, force=False);    P4.segoff = 128
P5  = Ph("sp", 32, 16, 'row', 4096, 'blk', 0, 2, 2, 4, force=False)
P6  = Ph("out", 28, 16, 'frag', 0, 'sub', 2048, 1, 2, 4, force=False)
for _p, _b in zip((P1K, P1Q, P2, P3, P4, P5, P6), (0, 16, 32, 48, 64, 80, 112)): _p.base = _b

def order_list(ph, c):
    G = OPT.get('grp'+ph.name, 0); NT = ph.NT >> G
    lead = OPT.get('lead'+ph.name, ph.lead); force = OPT.get('force'+ph.name, ph.force)
    kl = c; kf = 1 if c == 0 else 0; ks = ph.nc if c == 0 else c; out = []
    for i in range(NT):
        t = min(kf + (NT if (i == 0 and force) else lead), NT-1)
        if kl <= t: out.append(kl); kl += ph.nc
        else:
            out.append(kf); kf += 1
        if kf == ks: kf += 1; ks += ph.nc
    assert sorted(out) == list(range(NT))
    if OPT.get('zero'+ph.name) and out[0] != 0:
        assert out[1] == 0; out[0], out[1] = out[1], out[0]
    return [(k << G) + b for k in out for b in range(1 << G)]
def special_list(ph):
    rel = (lambda c, b: 2*c+b) if OPT.get('grp'+ph.name, 0) else (lambda c, b: c+4*b)
    return [order_list(ph, c).index(rel(c, b)) for b in range(2) for c in range(4)]
def special_pos(ph, bit_src, dst):
    pos = special_list(ph)
    tab = sum(p << (4*i) for i, p in enumerate(pos))
    a(f"s_sub_u32 {sr(st[0])}, {sr(s_mi)}, {sr(s_c8)}")
    a(f"s_and_b32 {sr(st[0])}, {sr(st[0])}, 3")
    a(f"s_and_b32 {sr(dst)}, {sr(bit_src)}, 4")
    a(f"s_add_u32 {sr(st[0])}, {sr(st[0])}, {sr(dst)}")
    a(f"s_lshl_b32 {sr(st[0])}, {sr(st[0])}, 2")
    a(f"s_lshr_b32 {sr(dst)}, {tab:#x}, {sr(st[0])}")
    a(f"s_and_b32 {sr(dst)}, {sr(dst)}, 15")
    return max(pos)
def order_table(ph, dst, mul, lane_off):
    shift = 0
    if OPT.get("reuse", 3) & {P1Q: 1, P4: 2}.get(ph, 0):
        ph = {P1Q: P1K, P4: P3}[ph]; shift = 4
    ph.nc = OPT.get('nc'+ph.name, ph.nc); ph.lead = OPT.get('lead'+ph.name, ph.lead); ph.force = OPT.get('force'+ph.name, ph.force)
    NT, nc, lead = ph.NT, ph.nc, ph.lead
    c, rot = st[1], st[2]
    if nc in (2, 4):
        a(f"s_sub_u32 {sr(c)}, {sr(s_mi)}, {sr(s_c8)}"); a(f"s_and_b32 {sr(c)}, {sr(c)}, {nc-1}")
    else: a(f"s_mov_b32 {sr(c)}, {sr(s_c8)}")
    if ph is P1K:
        a(f"s_xor_b32 {sr(rot)}, {sr(s_mi)}, {sr(s_nj)}"); a(f"s_and_b32 {sr(rot)}, {sr(rot)}, 8")
    elif ph is P5:
        a(f"s_and_b32 {sr(rot)}, {sr(s_mi)}, 12"); a(f"s_lshl_b32 {sr(rot)}, {sr(rot)}, 1")
    elif OPT.get('rmul'+ph.name):
        a(f"s_and_b32 {sr(rot)}, {sr(s_mi)}, 3"); a(f"s_mul_i32 {sr(rot)}, {sr(rot)}, {OPT['rmul'+ph.name]}")
    else: a(f"s_and_b32 {sr(rot)}, {sr(s_mi)}, {8 if ph is P3 else OPT.get('rot'+ph.name, 0)}")
    mg = (1024 + nc - 1)//nc
    a(f"s_sub_u32 {sr(c)}, {nc}, {sr(c)}")
    l1, l0, lf, y, t = vt[0], vt[1], vt[2], vt[3], vt[4]
    G = OPT.get('grp'+ph.name, 0); NTs = NT >> G; kk = vl
    if G: kk = dst; a(f"v_lshrrev_b32 {vr(kk)}, {G}, {vr(vl)}")
    def Lq(d, x, add, clamp):
        if clamp:
            a(f"v_add_u32 {vr(d)}, {add}, {vr(x)}"); a(f"v_min_u32 {vr(d)}, {NTs-1}, {vr(d)}"); a(f"v_add_u32 {vr(d)}, {sr(c)}, {vr(d)}")
        elif add: a(f"v_add3_u32 {vr(d)}, {vr(x)}, {sr(c)}, {add}")
        else: a(f"v_add_u32 {vr(d)}, {sr(c)}, {vr(x)}")
        if nc & (nc-1): a(f"v_mul_u32_u24 {vr(d)}, {mg}, {vr(d)}"); a(f"v_lshrrev_b32 {vr(d)}, 10, {vr(d)}")
        else: a(f"v_lshrrev_b32 {vr(d)}, {nc.bit_length()-1}, {vr(d)}")
    Lq(l1, kk, -1, False); Lq(l0, kk, 0, False); Lq(lf, kk, lead, True)
    if ph.force: a(f"v_max_u32 {vr(lf)}, 1, {vr(lf)}")
    a(f"v_sub_u32 {vr(lf)}, {vr(lf)}, {vr(l1)}")
    a(f"v_add_u32 {vr(lf)}, {vr(lf)}, {vr(kk)}")
    a(f"v_subrev_u32 {vr(y)}, {lead}, {vr(kk)}"); a(f"v_max_i32 {vr(y)}, 0, {vr(y)}")
    Lq(t, y, -1, False)
    a(f"v_sub_u32 {vr(y)}, {vr(y)}, {vr(t)}")
    a(f"v_add_u32 {vr(y)}, {vr(y)}, {vr(l1)}")
    if ph.force:
        a(f"v_cmp_eq_u32 vcc, 0, {vr(l1)}"); a(f"v_cndmask_b32 {vr(y)}, {vr(y)}, {vr(l1)}, vcc")
    a(f"v_cmp_ne_u32 vcc, {vr(l0)}, {vr(l1)}")
    a(f"v_cndmask_b32 {vr(y)}, {vr(lf)}, {vr(y)}, vcc")
    if OPT.get('zero'+ph.name):
        a(f"v_max_u32 {vr(y)}, 1, {vr(y)}")
        for b in range(1 << G): a(f"v_writelane_b32 {vr(y)}, 0, {b}")
    if G:
        a(f"v_and_b32 {vr(l0)}, {(1 << G)-1}, {vr(vl)}"); a(f"v_lshl_add_u32 {vr(y)}, {vr(y)}, {G}, {vr(l0)}")
    if shift:
        a(f"v_add_u32 {vr(y)}, {shift}, {vr(y)}"); a(f"v_and_b32 {vr(y)}, 15, {vr(y)}")
    a(f"v_cmp_gt_u32 vcc, {NT}, {vr(vl)}")
    a(f"v_cndmask_b32 {vr(y)}, {vr(vl)}, {vr(y)}, vcc")
    a(f"v_add_lshl_u32 {vr(y)}, {vr(y)}, {lane_off & 63}, 2")
    a(f"v_add_u32 {vr(t)}, {sr(rot)}, {vr(vl)}")
    if NT & (NT-1) == 0: a(f"v_and_b32 {vr(t)}, {NT-1}, {vr(t)}")
    else:
        a(f"v_subrev_u32 {vr(l0)}, {NT}, {vr(t)}"); a(f"v_min_u32 {vr(t)}, {vr(t)}, {vr(l0)}")
    a(f"v_mul_u32_u24 {vr(t)}, {mul}, {vr(t)}")
    a(f"ds_permute_b32 {vr(dst)}, {vr(y)}, {vr(t)}")

class Loader:
    def __init__(s, kind):
        s.kind = kind
        s.slot, s.off, s.j = [S.alloc() for _ in range(3)]
        s.d = [S.alloc(4, 4) for _ in range(4)]
        s.v = [V.alloc(16) for _ in range(4)]; s.tab = [V.alloc() for _ in range(4)]
        s.off2 = S.alloc(); s.cnt = S.alloc()
    def cap(s, ph): return 4 if s.kind == 'A' else 10//ph.nseg
    def ninst(s, ph): return 8 if s.kind == 'A' else 8*ph.nseg
    def lin(s, ph): return (ph.am == 'frag') if s.kind == 'A' else (ph.wm == 'blk')
    def setup(s, ph, i, only_table=False):
        ph.ld[s.kind] = i
        v = s.v[i]; d = s.d[i]
        mul = 16384 if s.lin(ph) else 128 if s.kind == 'A' else 64*ph.ldw
        order_table(ph, s.tab[i], mul, 0)
        if only_table: return
        if s.kind == 'A':
            if ph.am == 'row':
                def mk():
                    a(f"s_mul_i32 {sr(st[0])}, {sr(s_mi)}, {128*ph.lda}")
                    srd("x" if ph is not P5 else "w_sp", 0, 128*ph.lda, soff=st[0], d=d)
                a(f"""v_lshrrev_b32 {vr(vt[0])}, 3, {vr(vl)}
                      v_lshl_add_u32 {vr(vt[0])}, {sr(s_lw)}, 6, {vr(vt[0])}
                      v_mul_u32_u24 {vr(vt[0])}, {ph.lda}, {vr(vt[0])}
                      v_lshrrev_b32 {vr(vt[2])}, 4, {vr(vl)}
                      v_and_b32 {vr(vt[1])}, 7, {vr(vl)}
                      v_xor_b32 {vr(vt[1])}, {vr(vt[1])}, {vr(vt[2])}
                      v_lshl_add_u32 {vr(v)}, {vr(vt[1])}, 4, {vr(vt[0])}
                      v_xor_b32 {vr(v+1)}, 64, {vr(v)}
                      v_add_u32 {vr(v+1)}, {8*ph.lda-1024}, {vr(v+1)}
                      v_add_u32 {vr(v+2)}, {16*ph.lda-2048}, {vr(v)}
                      v_add_u32 {vr(v+3)}, {16*ph.lda-2048}, {vr(v+1)}""")
                steps = [32*ph.lda]
            else:
                base = {P2: "O", P3: "H", P4: "H", P6: "P"}[ph]
                def mk():
                    a(f"s_mul_i32 {sr(st[0])}, {sr(s_mi)}, {ph.NT*16384}")
                    srd("ws", WS[base], ph.NT*16384, soff=st[0], d=d)
                a(f"s_lshl_b32 {sr(st[0])}, {sr(s_lw)}, 13")
                a(f"v_lshl_add_u32 {vr(v)}, {vr(vl)}, 4, {sr(st[0])}")
        else:
            if ph.wm == 'blk':
                def mk():
                    a(f"s_lshl_b32 {sr(st[0])}, {sr(s_n7)}, 19")
                    srd("ws", WS["Z2N"], 32*16384, soff=st[0], d=d)
                a(f"v_lshlrev_b32 {vr(v)}, 4, {vr(vl)}")
            else:
                ptr, col0, n, sh = {P1K: ("wqkv", 2048, s_nj, 7), P1Q: ("wqkv", 0, s_nj, 7), P2: ("wo", 0, s_nj, 7),
                                    P3: ("w_in", 3584, s_n7, 8), P4: ("w_in", 0, s_n7, 8), P6: ("w_out", 0, s_nj, 7)}[ph]
                def mk():
                    a(f"s_lshl_b32 {sr(st[0])}, {sr(n)}, {sh}")
                    srd(ptr, col0, 0, soff=st[0], d=d)
                    a(f"s_sub_u32 {sr(d+2)}, {ph.NT*64*ph.ldw-col0}, {sr(st[0])}")
                a(f"v_lshrrev_b32 {vr(vt[0])}, 3, {vr(vl)}")
                if ph.am == 'row':
                    a(f"v_lshrrev_b32 {vr(vt[2])}, 2, {vr(vl)}"); a(f"v_and_b32 {vr(vt[2])}, 4, {vr(vt[2])}")
                else:
                    a(f"v_and_b32 {vr(vt[2])}, 6, {vr(vt[0])}")
                a(f"""v_mul_u32_u24 {vr(vt[0])}, {ph.ldw}, {vr(vt[0])}
                      v_and_b32 {vr(vt[1])}, 7, {vr(vl)}
                      v_xor_b32 {vr(vt[1])}, {vr(vt[1])}, {vr(vt[2])}
                      v_lshl_add_u32 {vr(v)}, {vr(vt[1])}, 4, {vr(vt[0])}""")
                if ph.am == 'row':
                    a(f"v_xor_b32 {vr(v+1)}, 32, {vr(v)}"); a(f"v_add_u32 {vr(v+1)}, {8*ph.ldw-1024}, {vr(v+1)}")
                else: a(f"v_add_u32 {vr(v+1)}, {8*ph.ldw-1024}, {vr(v)}")
                a(f"v_add_u32 {vr(v+2)}, {16*ph.ldw-2048}, {vr(v)}")
                a(f"v_add_u32 {vr(v+3)}, {16*ph.ldw-2048}, {vr(v+1)}")
                steps = [32*ph.ldw] + ([ph.segoff, ph.segoff+32*ph.ldw] if ph.nseg == 2 else [])
        for g in range(1, s.ninst(ph)//4):
            if s.lin(ph): a(f"v_add_u32 {vr(v+g)}, {4096*g}, {vr(v)}")
            else:
                for j in range(4): a(f"v_add_u32 {vr(v+4*g+j)}, {steps[g-1]}, {vr(v+j)}")
        a("s_waitcnt lgkmcnt(0)")
        mk()
    def begin(s, ph):
        if s.kind == 'A': a(f"s_lshl_b32 {sr(s.slot)}, {sr(s_lw)}, 13")
        else: a(f"s_mov_b32 {sr(s.slot)}, {W_RING}")
        a(f"s_mov_b32 {sr(s.j)}, 0")
        a(f"s_mov_b32 m0, {sr(s.slot)}")
        a("s_waitcnt lgkmcnt(0)")
        a(f"v_readlane_b32 {sr(s.off)}, {vr(s.tab[ph.ld[s.kind]])}, 0")
        a("s_nop 4")
    def issue(s, ph, barat=None, count=False, hook=None):
        i = ph.ld[s.kind]; v = s.v[i]; d = s.d[i]; ng = s.ninst(ph)//4; lin = s.lin(ph)
        pol = " sc1" if lin else ""
        if s.kind == 'A': b = [f"s_add_u32 {sr(s.slot)}, {sr(s.slot)}, 16384", f"s_and_b32 {sr(s.slot)}, {sr(s.slot)}, 0xffff"]
        else: b = [f"s_add_u32 {sr(s.slot)}, {sr(s.slot)}, {8192*ph.nseg}", f"s_cmp_eq_u32 {sr(s.slot)}, {MISC}", f"s_cselect_b32 {sr(s.slot)}, {W_RING}, {sr(s.slot)}"]
        c = [f"s_add_u32 {sr(s.j)}, {sr(s.j)}, 1", f"v_readlane_b32 {sr(s.off2)}, {vr(s.tab[i])}, {sr(s.j)}"]
        e = [f"s_sub_u32 {sr(s.cnt)}, {sr(s.cnt)}, 1", f"s_cmp_lg_u32 {sr(s.cnt)}, 0"] if count else []
        bursts = [c + b + e] if ng == 2 else [b, c, e]
        for g in range(ng):
            for j in range(4):
                if barat == 4*g+j: BAR()
                if hook: hook()
                a(f"buffer_load_dwordx4 {vr(v+g if lin else v+4*g+j)}, {sr(d,4)}, {sr(s.off)} offen offset:{1024*j}{pol} lds")
            if g < ng-1:
                a("s_add_u32 m0, m0, 4096")
                for x in bursts[g]: a(x)
        a(f"s_mov_b32 m0, {sr(s.slot)}")
        a(f"s_mov_b32 {sr(s.off)}, {sr(s.off2)}")
    def rep(s, n, body):
        if n == 1: body(False); return
        L = lab("ll")
        a(f"s_mov_b32 {sr(s.cnt)}, {n}")
        a(f"{L}:")
        body(True)
        a(f"s_cbranch_scc1 {L}")
    def count(s):
        a(f"s_sub_u32 {sr(s.cnt)}, {sr(s.cnt)}, 1")
        a(f"s_cmp_lg_u32 {sr(s.cnt)}, 0")
    def prefill(s, ph, pre):
        s.rep(pre, lambda lp: s.issue(ph, count=lp))
    def run_spread(s, ph, pre, nxt=None, margin=2, first=0):
        n = ph.NT; ni = s.ninst(ph); cap = s.cap(ph); total = (n-pre)*ni
        lastb = n-1-margin
        pos = {}
        for t in range(-1, n-1):
            want = -(-total*(t-first)//(lastb-first)) if t > first else 0
            room = (min(n, max(t, 0)+cap)-pre)*ni if t >= 0 else 0
            need = max(0, (min(n, t+margin+1)-pre)*ni)
            pos[t] = max(min(want, room, total), min(need, total)); assert pos[t] <= room or t < 0 and pos[t] == 0, (ph.name, t, pos[t], room)
        st_ = dict(q=0, t=-1)
        def bars():
            while st_['t'] <= n-2 and pos[st_['t']] <= st_['q']:
                t = st_['t']
                a(f"s_waitcnt vmcnt({min(63, pre*ni+st_['q']-(t+2)*ni)})"); BAR(); st_['t'] += 1
        def hook(): bars(); st_['q'] += 1
        for _ in range(n-pre): s.issue(ph, hook=hook)
        bars()
        assert st_['t'] == n-1
        if nxt: nxt()
        BAR()
    def run(s, ph, pre, maxper=2, nxt=None, npf=0, cap=None, last=None):
        n = ph.NT; issued = pre; ni = s.ninst(ph); cap = cap or s.cap(ph)
        after = lambda t: min(63, ni*(issued-t-1))
        H = OPT.get("shift", 2)
        deep = OPT.get("deep"+s.kind, 0) & {P1Q: 1, P2: 2, P3: 4, P4: 8, P6: 16, P5: 32, P1K: 64}[ph]
        if deep: H = 0
        iv = []; w = after(0)
        for t in range(-1, n-1):
            new = 0
            while issued < n and (new < maxper or issued <= t+2) and issued - (t+1 if deep else max(t, 0)) < cap: new += 1; issued += 1
            iv.append((w, new, t+1 < npf, H if t >= 0 else 0))
            if t < n-2:
                assert issued > t+2
                w = after(t+2)
        assert issued == n
        i = 0
        while i < len(iv):
            j = i
            while j < len(iv) and iv[j] == iv[i]: j += 1
            def body(lp, x=iv[i]):
                a(f"s_waitcnt vmcnt({x[0]})")
                if x[1] == 0: BAR()
                inl = lp and x[1] and not x[2]
                for k in range(x[1]): s.issue(ph, barat=(x[3] if k == 0 else None), count=(inl and k == x[1]-1))
                if lp and not inl: s.count()
            s.rep(j-i, body)
            i = j
        if nxt: nxt()
        if last: last()
        BAR()

class Addr:
    def __init__(s, ph, vA, vW, bufs):
        s.ph = ph; s.vA = vA; s.vW = vW; s.bufs = bufs
        if ph.mf == 32:
            s.TM, s.TN, s.NS = 2, ph.nseg, 4; s.nA = 4; s.nW = 1
        else:
            s.TM, s.TN, s.NS = 4, 2*ph.nseg, 2
            s.nA = 2 if ph.am == 'row' else 1
            s.nW = 4 if ph.wm == 'seg' else 2
        s.full = ph.mf == 16 and ph.nseg == 1
    def init(s):
        ph = s.ph
        r_, g_ = (v_r, v_hf) if ph.mf == 32 else (v_r16, v_g)
        a(f"s_lshl_b32 {sr(st[0])}, {sr(s_wm)}, 13")
        if ph.am == 'row':
            a(f"""v_bfe_u32 {vr(vt[2])}, {vr(r_)}, 1, 3
                  v_xor_b32 {vr(vt[2])}, {vr(vt[2])}, {vr(g_)}
                  v_lshlrev_b32 {vr(vt[2])}, 4, {vr(vt[2])}
                  v_lshl_add_u32 {vr(vt[2])}, {vr(r_)}, 7, {vr(vt[2])}
                  v_add_u32 {vr(s.vA)}, {sr(st[0])}, {vr(vt[2])}""")
            for ks in range(1, s.nA): a(f"v_xor_b32 {vr(s.vA+ks)}, {ks*128//s.nA}, {vr(s.vA)}")
        else:
            a(f"v_lshl_add_u32 {vr(s.vA)}, {vr(vl)}, 4, {sr(st[0])}")
        a(f"v_lshrrev_b32 {vr(vt[2])}, 2, {vr(v_r16)}")
        if ph.am == 'row' and ph.wm == 'sub':
            a(f"""v_lshl_add_u32 {vr(vt[2])}, {vr(v_g)}, 3, {vr(vt[2])}
                  v_lshlrev_b32 {vr(vt[2])}, 7, {vr(vt[2])}
                  v_bfe_u32 {vr(vt[3])}, {vr(vl)}, 4, 1
                  v_lshl_add_u32 {vr(vt[2])}, {vr(vt[3])}, 5, {vr(vt[2])}
                  v_bfe_u32 {vr(vt[3])}, {vr(vl)}, 3, 1
                  v_lshl_add_u32 {vr(vt[2])}, {vr(vt[3])}, 6, {vr(vt[2])}
                  v_and_b32 {vr(vt[3])}, 3, {vr(vl)}
                  v_lshl_add_u32 {vr(vt[2])}, {vr(vt[3])}, 3, {vr(vt[2])}""")
        elif ph.wm == 'blk':
            a(f"""v_lshl_add_u32 {vr(vt[2])}, {vr(v_g)}, 3, {vr(vt[2])}
                  v_bfe_u32 {vr(vt[3])}, {vr(vl)}, 1, 1
                  v_lshl_add_u32 {vr(vt[2])}, {vr(vt[3])}, 2, {vr(vt[2])}
                  v_lshlrev_b32 {vr(vt[2])}, 4, {vr(vt[2])}
                  v_lshl_add_u32 {vr(vt[2])}, {vr(vt[3])}, 10, {vr(vt[2])}
                  v_and_b32 {vr(vt[3])}, 1, {vr(vl)}
                  v_lshl_add_u32 {vr(vt[2])}, {vr(vt[3])}, 3, {vr(vt[2])}""")
        else:
            a(f"""v_lshl_add_u32 {vr(vt[2])}, {vr(v_g)}, 2, {vr(vt[2])}
                  v_bfe_u32 {vr(vt[3])}, {vr(vt[2])}, 1, 2
                  v_lshlrev_b32 {vr(vt[2])}, 7, {vr(vt[2])}
                  v_lshl_add_u32 {vr(vt[2])}, {vr(vt[3])}, 5, {vr(vt[2])}
                  v_and_b32 {vr(vt[3])}, 3, {vr(vl)}
                  v_lshl_add_u32 {vr(vt[2])}, {vr(vt[3])}, 3, {vr(vt[2])}""")
        if ph.wm == 'sub':
            a(f"s_lshl_b32 {sr(st[0])}, {sr(s_wn)}, 6")
            a(f"v_xor_b32 {vr(vt[2])}, {sr(st[0])}, {vr(vt[2])}")
            a(f"v_add_u32 {vr(s.vW)}, {W_RING}, {vr(vt[2])}")
        else:
            a(f"s_lshl_b32 {sr(st[0])}, {sr(s_wn)}, 13")
            a(f"s_add_u32 {sr(st[0])}, {sr(st[0])}, {W_RING}")
            a(f"v_add_u32 {vr(s.vW)}, {sr(st[0])}, {vr(vt[2])}")
        for j in range(1, s.nW): a(f"v_xor_b32 {vr(s.vW+j)}, {64 if ph.wm == 'blk' else 32*j}, {vr(s.vW)}")
        a(f"v_mov_b32 {vr(v_bA)}, {vr(s.vA)}")
        a(f"v_mov_b32 {vr(v_bW)}, {vr(s.vW)}")
        a(f"s_mov_b32 {sr(s_ra)}, 0")
        a(f"s_mov_b32 {sr(s_rw)}, 0")
    def rewind(s):
        a(f"s_mov_b32 {sr(s_ra)}, 0"); a(f"s_mov_b32 {sr(s_rw)}, 0")
        sal, uA, uW = s.upd()
        for x in uA + uW: a(x)
    def fa(s, b, ks, i):
        if s.ph.mf == 32: return s.bufs[0]+8*ks+4*i
        if s.full: return s.bufs[b]+24*ks+4*i
        return s.bufs[0]+32*ks+4*i
    def fw(s, b, ks, j):
        if s.ph.mf == 32: return s.bufs[0]+32+8*ks+4*j
        if s.full: return s.bufs[b]+24*ks+16+4*j
        return s.bufs[0]+32*ks+16+4*j
    def rdA(s, b, ks, i):
        ph = s.ph
        if ph.mf == 32: ad, off = s.vA+ks, i*4096
        elif ph.am == 'row': ad, off = s.vA+ks, i*2048
        else: ad, off = s.vA, i*2048+ks*1024
        return [(s.fa(b,ks,i), f"ds_read_b128 {vr(s.fa(b,ks,i),4)}, {vr(ad)} offset:{off}")]
    def rdW(s, b, ks, j):
        ph = s.ph; out = []
        for h in range(2):
            if ph.am == 'row' and ph.wm == 'sub': ad, off = s.vW+(j&1), (j>>1)*8192+ks*4096+h*512
            elif ph.wm == 'blk': ad, off = s.vW+h, j*2048+ks*512
            else: ad, off = s.vW+j, ks*4096+h*2048
            out.append((s.fw(b,ks,j), f"ds_read_b64_tr_b16 {vr(s.fw(b,ks,j)+2*h,2)}, {vr(ad)} offset:{off}"))
        return out
    def reads(s, b, ks):
        out = s.rdW(b, ks, 0)
        for i in range(s.TM): out += s.rdA(b, ks, i)
        for j in range(1, s.TN): out += s.rdW(b, ks, j)
        return out
    def reads_full(s, b):
        out = s.rdW(b, 0, 0) + s.rdA(b, 0, 0) + s.rdW(b, 1, 0) + s.rdA(b, 1, 0)
        for i in range(1, 4): out += s.rdA(b, 0, i) + s.rdA(b, 1, i)
        return out + s.rdW(b, 0, 1) + s.rdW(b, 1, 1)
    def pending(s, b):
        if s.ph.mf == 32: return s.reads(b, 0) + s.reads(b, 1)
        return s.reads_full(b) if s.full else s.reads(b, 0)
    def upd(s):
        n = s.ph.nseg
        sal = [f"s_add_u32 {sr(s_ra)}, {sr(s_ra)}, 16384", f"s_and_b32 {sr(s_ra)}, {sr(s_ra)}, 0xffff",
               f"s_add_u32 {sr(s_rw)}, {sr(s_rw)}, {8192*n}", [f"s_cmp_eq_u32 {sr(s_rw)}, 81920", f"s_cselect_b32 {sr(s_rw)}, 0, {sr(s_rw)}"]]
        uA = [f"v_add_u32 {vr(s.vA)}, {sr(s_ra)}, {vr(v_bA)}"] + [f"v_xor_b32 {vr(s.vA+k)}, {k*128//s.nA}, {vr(s.vA)}" for k in range(1, s.nA)]
        uW = [f"v_add_u32 {vr(s.vW)}, {sr(s_rw)}, {vr(v_bW)}"] + [f"v_xor_b32 {vr(s.vW+j)}, {64 if s.ph.wm == 'blk' else 32*j}, {vr(s.vW)}" for j in range(1, s.nW)]
        return sal, uA, uW
    def first(s):
        a("s_waitcnt lgkmcnt(0)")
        if OPT.get("fst"): stamp(26 + [P1Q, P4, P5].index(s.ph)) if s.ph in (P1Q, P4, P5) else None
        a("s_barrier")
        if OPT.get("fst"): stamp(40 + [P1Q, P4, P5].index(s.ph)) if s.ph in (P1Q, P4, P5) else None
        for k, (_, x) in enumerate(s.pending(0)):
            a(x)
            if OPT.get("fsp") == 1: a("s_nop 0"); a("s_nop 0")
            if OPT.get("fsp") == 2 and k % 4 == 3: a("s_nop 3"); a("s_nop 3")
        sal, uA, uW = s.upd()
        flat = sal[:3] + sal[3]
        for x in flat: a(x)
        if s.full:
            for x in uA + uW + flat: a(x)
    def tile(s, acc, swap=None, last=False, cs=None, csmode='lane', vm0=False, zero=False, b=0, tail=(), dots=None, cin=None, fin=None, rate=2, weave=()):
        ph = s.ph; TM, TN = s.TM, s.TN
        op, AR = (MF, 16) if ph.mf == 32 else (MF16, 4)
        swap = swap or [0]*TN
        def mm(ks, j, i):
            d = acc+(i*TN+j)*AR; x, y = s.fw(b,ks,j), s.fa(b,ks,i)
            c = '0' if (zero and ks == 0) else vr(cin+4*i, AR) if (cin is not None and ks == 0) else vr(d, AR)
            t = f"{op} {vr(d,AR)}, {vr(y,4)}, {vr(x,4)}, {c}" if swap[j] else f"{op} {vr(d,AR)}, {vr(x,4)}, {vr(y,4)}, {c}"
            return (t, (x, y))
        def cm(ks, j):
            d = cs+AR*j; w = s.fw(b,ks,j)
            if csmode == 'lane': return (f"{op} {vr(d,AR)}, {vr(v_ones,4)}, {vr(w,4)}, {'0' if ks == 0 else vr(d,AR)}", (w,))
            return (f"{op} {vr(d,AR)}, {vr(w,4)}, {vr(v_ones,4)}, {vr(d,AR)}", (w,))
        sal, uA, uW = s.upd()
        bar = [(["s_waitcnt vmcnt(0)"] if vm0 else []) + ["s_barrier"]]
        def step(ks):
            m = []
            for j in range(TN):
                for i in (range(TM) if j % 2 == 0 else reversed(range(TM))): m.append(mm(ks, j, i))
                if cs is not None: m.append(cm(ks, j))
            return m
        N = lambda x: [] if last else x
        if ph.mf == 32:
            stages = [(step(0), s.reads(b,2) + N(uA[:2])),
                      (step(1), s.reads(b,3) + N(uW + uA[2:])),
                      (step(2), N(bar + s.reads(b,0) + sal[:2])),
                      (step(3), N(s.reads(b,1) + sal[2:]) + list(tail))]
        elif not s.full:
            if OPT.get("sched", 1) and not last and len(tail) <= 1:
                r0 = s.reads(b, 0); fl = sal[:3] + sal[3]
                st1 = bar + r0[:4] + [[r0[4+k], fl[k]] for k in range(5)] + r0[9:] + [x for t in tail for x in t]
                st1 += [[]]*(16-len(st1))
                stages = [(step(0), s.reads(b,1) + uA + uW), (step(1), st1)]
            else:
                stages = [(step(0), s.reads(b,1) + N(uA + uW)),
                          (step(1), N(bar + s.reads(b,0) + sal) + list(tail))]
        else:
            m = [mm(ks, j, i) for j in range(TN) for i in (range(TM) if j % 2 == 0 else reversed(range(TM))) for ks in range(2)]
            if OPT.get("sched", 1) and not last:
                rf = s.reads_full(b^1); fl = sal[:3] + sal[3]; up = uA + uW
                st1 = bar + [[rf[0], rf[1]], [rf[2], rf[3]], [rf[4], rf[5]], [rf[6], rf[7]], rf[8], rf[9], rf[10], rf[11], [rf[12], rf[13]], [rf[14], rf[15]],
                             up[:2], up[2:] + fl[:3-len(up[2:])+1], fl[3-len(up[2:])+1:], [x for t in tail for x in t], []]
                stages = [(m, st1)]
            else:
                stages = [(m, N(bar + s.reads_full(b^1) + uA + uW + sal) + list(tail))]
        if fin:
            m = [mm(ks, j, i) for i in range(4) for j in range(TN) for ks in (range(2) if s.full else (1,))]
            fl = [[] for _ in range(16)]; q = []
            for k in range(16):
                if k >= 6 and (k-6) % 4 == 0: q += fin((k-6)//4, True)
                fl[k], q = q[:rate], q[rate:]
            fl[15] += q + fin(3, False)
            stages[-1] = (m, fl)
        rdone = False
        fifo = [r for r, _ in s.pending(b)]
        def wait_for(need):
            nonlocal fifo
            pos = max([i for i, r in enumerate(fifo) if r in need], default=-1)
            if pos >= 0:
                a(f"s_waitcnt lgkmcnt({min(15, len(fifo)-pos-1)})"); fifo = fifo[pos+1:]
        def put(f):
            if isinstance(f, tuple):
                if f[0] == 'wait': wait_for((f[1],))
                else: fifo.append(f[0]); a(f[1])
            elif isinstance(f, list):
                for x in f: put(x)
            else: a(f)
        for si, stg in enumerate(stages):
            m, fill = stg[0], list(stg[1]); extra = list(stg[2]) if len(stg) > 2 else []
            n = len(m); base, rem = divmod(len(fill), n)
            if ph.mf == 32: cnts = [-(-len(fill)//n)]*n
            elif base == 0: cnts = [1]*n
            else:
                cnts = [(len(fill)*(k+1))//n - (len(fill)*k)//n for k in range(n)]
            for k, (t, need) in enumerate(m):
                if ph.mf == 16 and OPT.get("coarse", 1):
                    grp = (4, n) if not s.full else (2, 8, n)
                    hi = min(g for g in grp if g > k)
                    if OPT.get("shift", 2) and k == 0 and si == len(stages)-1: hi = n
                    need = set().union(*[set(x[1]) for x in m[k:hi]])
                wait_for(need)
                a(t)
                if last and not fifo and not rdone and si == len(stages)-1:
                    a("s_barrier"); rdone = True
                for _ in range(cnts[k]):
                    if fill: put(fill.pop(0))
                if extra and k >= 1: put(extra.pop(0))
                if weave:
                    g = si*n+k; tot = n*len(stages)
                    for x in weave[len(weave)*g//tot:len(weave)*(g+1)//tot]: put(x)
            assert not fill and not extra
            if dots is not None:
                z = lambda d, e: '0' if (si == 0 and e == 0) else vr(d)
                for sel, body in ((s_wn, lambda w: [x for e in range(4) for q in range(2) for x in (
                                        f"v_dot2_f32_bf16 {vr(dots+2*q)}, {vr(s.fa(b,si,2*w+q)+e)}, {vr(v_ones)}, {z(dots+2*q, e)}",
                                        f"v_dot2_f32_bf16 {vr(dots+2*q+1)}, {vr(s.fa(b,si,2*w+q)+e)}, {vr(s.fa(b,si,2*w+q)+e)}, {z(dots+2*q+1, e)}")]),
                                  (s_wm, lambda w: [f"v_dot2_f32_bf16 {vr(dots+4+q)}, {vr(s.fw(b,si,2*w+q)+e)}, {vr(v_ones)}, {z(dots+4+q, e)}" for e in range(4) for q in range(2)])):
                    L1, L2 = lab("d1"), lab("d2")
                    a(f"s_cmp_lg_u32 {sr(sel)}, 0"); a(f"s_cbranch_scc1 {L1}")
                    for x in body(0): a(x)
                    a(f"s_branch {L2}"); a(f"{L1}:")
                    for x in body(1): a(x)
                    a(f"{L2}:")
    def loop(s, n, acc, cnt=None, **kw):
        per = 2 if s.full else 1
        if cnt is None:
            if n == 0: return
            assert n % per == 0
            if n == per:
                for b in range(per): s.tile(acc, b=b, **kw)
                return
        L = lab("cl"); D = lab("cd")
        if cnt is None: a(f"s_mov_b32 {sr(s_cnt)}, {n//per}")
        else:
            a(f"s_mov_b32 {sr(s_cnt)}, {sr(cnt)}")
            a(f"s_cmp_eq_u32 {sr(s_cnt)}, 0"); a(f"s_cbranch_scc1 {D}")
        a(".p2align 6")
        a(f"{L}:")
        for b in range(per):
            s.tile(acc, b=b, tail=([[f"s_sub_u32 {sr(s_cnt)}, {sr(s_cnt)}, 1", f"s_cmp_lg_u32 {sr(s_cnt)}, 0"]] if b == per-1 else ()), **kw)
        a(f"s_cbranch_scc1 {L}")
        if cnt is not None: a(f"{D}:")
def compute_common():
    global s_wm, s_wn, s_ra, s_rw, s_cnt, v_r, v_hf, v_r16, v_g, v_bA, v_bW
    s_wm, s_wn, s_ra, s_rw, s_cnt = [S.alloc() for _ in range(5)]
    v_r, v_hf, v_r16, v_g = [V.alloc() for _ in range(4)]
    v_bA, v_bW = 254, 255
    a(f"""s_lshr_b32 {sr(s_wm)}, {sr(s_w)}, 1
          s_and_b32 {sr(s_wn)}, {sr(s_w)}, 1
          v_and_b32 {vr(v_r)}, 31, {vr(vl)}
          v_lshrrev_b32 {vr(v_hf)}, 5, {vr(vl)}
          v_and_b32 {vr(v_r16)}, 15, {vr(vl)}
          v_lshrrev_b32 {vr(v_g)}, 4, {vr(vl)}""")
def quad_reduce(op, x):
    for i in range(4): a(f"v_permlane32_swap_b32 {vr(x+2*i)}, {vr(x+2*i+1)}")
    for i in range(4): a(f"{op} {vr(x+2*i)}, {vr(x+2*i)}, {vr(x+2*i+1)}")
    for p in range(2): a(f"v_permlane16_swap_b32 {vr(x+4*p)}, {vr(x+4*p+2)}")
    for p in range(2): a(f"{op} {vr(x+4*p)}, {vr(x+4*p)}, {vr(x+4*p+2)}")
def quad_bcast(x):
    for p in range(2): a(f"v_mov_b32 {vr(x+4*p+2)}, {vr(x+4*p)}")
    for p in range(2): a(f"v_permlane16_swap_b32 {vr(x+4*p)}, {vr(x+4*p+2)}")
    for i in range(4): a(f"v_mov_b32 {vr(x+2*i+1)}, {vr(x+2*i)}")
    for i in range(4): a(f"v_permlane32_swap_b32 {vr(x+2*i)}, {vr(x+2*i+1)}")
def exps(p, em, x, rs, scp):
    for i in range(4):
        a(f"v_max3_f32 {vr(x+2*i)}, {vr(p+8*i)}, {vr(p+8*i+1)}, {vr(p+8*i+2)}")
        a(f"v_max3_f32 {vr(x+2*i+1)}, -{vr(p+8*i)}, -{vr(p+8*i+1)}, -{vr(p+8*i+2)}")
    for e in (3, 5):
        for i in range(4):
            a(f"v_max3_f32 {vr(x+2*i)}, {vr(x+2*i)}, {vr(p+8*i+e)}, {vr(p+8*i+e+1)}")
            a(f"v_max3_f32 {vr(x+2*i+1)}, {vr(x+2*i+1)}, -{vr(p+8*i+e)}, -{vr(p+8*i+e+1)}")
    for i in range(4):
        a(f"v_max_f32 {vr(x+2*i)}, {vr(x+2*i)}, {vr(p+8*i+7)}")
        a(f"v_max_f32_e64 {vr(x+2*i+1)}, {vr(x+2*i+1)}, -{vr(p+8*i+7)}")
    quad_reduce("v_max_f32", x)
    for q in range(2): a(f"v_mul_f32_e64 {vr(x+4*q)}, -{vr(scp+q)}, {vr(x+4*q)}")
    quad_bcast(x)
    for i in range(4):
        for e in range(8*i, 8*i+8, 2):
            a(f"v_pk_fma_f32 {vr(em+e,2)}, {vr(p+e,2)}, {vr(rs+2*i,2)}, {vr(x+2*i,2)} op_sel:[0,0,1] op_sel_hi:[1,0,1] neg_lo:[1,0,0] neg_hi:[1,0,0]")
            a(f"v_pk_fma_f32 {vr(p+e,2)}, {vr(p+e,2)}, {vr(rs+2*i,2)}, {vr(x+2*i,2)} op_sel:[0,0,0] op_sel_hi:[1,0,0]")
    for e in range(32):
        a(f"v_exp_f32 {vr(em+e)}, {vr(em+e)}")
        a(f"v_exp_f32 {vr(p+e)}, {vr(p+e)}")
def var_eps(m, q, n):
    a(f"v_mul_f32 {vr(m)}, {f32(-1/n)}, {vr(m)}")
    a(f"v_mul_f32 {vr(q)}, {f32(1/n)}, {vr(q)}")
    a(f"v_fma_f32 {vr(q)}, -{vr(m)}, {vr(m)}, {vr(q)}")
    a(f"v_max_f32 {vr(q)}, 0, {vr(q)}")
    a(f"v_add_f32 {vr(q)}, {f32(1e-5)}, {vr(q)}")
def center(x, cs, nm, n=16):
    for e in range(0, n, 2):
        a(f"v_pk_fma_f32 {vr(x+e,2)}, {vr(cs+e,2)}, {vr(nm,2)}, {vr(x+e,2)} op_sel:[0,1,0] op_sel_hi:[1,1,1]")
def gelu16(x, cs, g, u, out=None):
    if out is None: out = x
    center(x, cs, g)
    for e in range(0, 16, 2): a(f"v_pk_mul_f32 {vr(u+e,2)}, {vr(x+e,2)}, {vr(x+e,2)}")
    for e in range(0, 16, 2): a(f"v_pk_fma_f32 {vr(u+e,2)}, {vr(u+e,2)}, {vr(g+2,2)}, {vr(g+2,2)} op_sel:[0,0,1] op_sel_hi:[1,0,1]")
    for e in range(0, 16, 2): a(f"v_pk_mul_f32 {vr(u+e,2)}, {vr(u+e,2)}, {vr(x+e,2)}")
    for e in range(16): a(f"v_exp_f32 {vr(u+e)}, {vr(u+e)}")
    for e in range(0, 16, 2): a(f"v_pk_fma_f32 {vr(u+e,2)}, {vr(u+e,2)}, {vr(g,2)}, {vr(g,2)} op_sel_hi:[1,0,0]")
    for e in range(16): a(f"v_rcp_f32 {vr(u+e)}, {vr(u+e)}")
    for e in range(0, 16, 2): a(f"v_pk_mul_f32 {vr(out+e,2)}, {vr(x+e,2)}, {vr(u+e,2)}")
def build():
    global st, vt, vl, s_w, s_mi, s_nj, s_n7, s_c8, s_lw, s_to, s_m, sF, s_tm, v_stamp
    global sT, sAcc, s_pv, s_one, s_ret
    global Lend
    kernel_begin(a, KNAME)
    Lend, LA, LW, LX = lab("end"), lab("ldA"), lab("ldW"), lab("aux")
    a(f"s_cmp_ge_u32 s2, 256")
    a(f"s_cbranch_scc1 {Lend}")
    pb = S.alloc(24, 4)
    a(f"s_load_dwordx16 {sr(pb,16)}, s[0:1], 0")
    a(f"s_load_dwordx8 {sr(pb+16,8)}, s[0:1], 64")
    for i, n in enumerate(["x","wqkv","wphi","wo","bx","w_in","w_sp","b_sp","w_out","out","dbg","ws"]): P[n] = pb+2*i
    st = [S.alloc() for _ in range(4)]
    s_w, s_mi, s_nj, s_n7, s_c8, s_lw, s_to = [S.alloc() for _ in range(7)]
    s_one = S.alloc(); s_pv = S.alloc(2, 2); s_ret = S.alloc(2, 2); s_m = S.alloc(2, 2); s_tm = S.alloc(2, 2); sF = S.alloc(4, 4); sT = S.alloc(4, 4); sAcc = S.alloc(4, 4)
    vl = V.alloc(); vt = [V.alloc() for _ in range(5)]; v_stamp = V.alloc()
    a(f"""v_lshrrev_b32 {vr(vt[0])}, 6, v0
          v_and_b32 {vr(vl)}, 63, v0
          v_readfirstlane_b32 {sr(s_w)}, {vr(vt[0])}
          s_bfe_u32 {sr(s_c8)}, s2, 0x30003
          s_lshr_b32 {sr(st[0])}, s2, 6
          s_bfe_u32 {sr(st[1])}, s2, 0x20001
          s_lshl2_add_u32 {sr(s_mi)}, {sr(st[1])}, {sr(st[0])}
          s_and_b32 {sr(st[0])}, s2, 1
          s_lshl3_add_u32 {sr(s_nj)}, {sr(st[0])}, {sr(s_c8)}
          s_sub_u32 {sr(s_n7)}, {sr(s_nj)}, {sr(st[0])}
          s_xor_b32 {sr(s_nj)}, {sr(s_nj)}, {4 if OPT.get('remap', 1) else 0}
          s_mov_b32 {sr(s_to)}, 100000
          s_mov_b32 {sr(s_one)}, 1
          s_and_b32 {sr(s_lw)}, {sr(s_w)}, 1""")
    if HOOK: HOOK()
    if OPT["stamp"]: a(f"v_mov_b32 {vr(v_stamp)}, 0")
    stamp(0)
    LC = lab("cmp")
    a(f"""s_cmp_lt_u32 {sr(s_w)}, 4
          s_cbranch_scc1 {LC}
          s_setprio {OPT.get('lprio', 2)}
          s_cmp_eq_u32 {sr(s_w)}, 7
          s_cbranch_scc1 {LX}
          s_cmp_lt_u32 {sr(s_w)}, 6
          s_cbranch_scc1 {LA}""")
    vbase, sbase = V.n, S.n
    main = a.L; late = []
    global split
    def split():
        L = lab("cont"); a(f"s_branch {L}"); a.L = late; a.L += ["@EPOCH0", "@PAD"]; a(f"{L}:")
    for lb, role in ((LW, loaderW), (LA, loaderA), (LX, aux), (LC, compute)):
        V.n, S.n = vbase, sbase
        a.L = main
        a(f"{lb}:"); role(); a("s_endpgm")
    a.L = late
    helper_code()
    a.L = main + late
    a(f"{Lend}:")
    a("s_endpgm")
    a.L = hazard.fix(a.L)
    import layout
    a.L, pads = layout.run(a.L, s_ret, align=OPT.get("al8", 1), pages=OPT.get("pages", 1))
    for e in range(2):
        assert len(pads[e]) <= 12, len(pads[e])
        for k in range(12):
            i = a.L.index(f"    s_call_b64 {sr(s_ret,2)}, .PAD{e}_{k}")
            a.L[i] = f"    s_call_b64 {sr(s_ret,2)}, {pads[e][k]}" if k < len(pads[e]) and OPT.get("warm", 1) else "    s_nop 0"
    print("pads", pads, file=sys.stderr)
    kernel_desc(a, KNAME, 256, 256, nsgpr=102)
    ref = open(f"cdna_kernels/{NAME}.s.ref").read().split("\n")
    head = [l for l in ref if l.startswith(";") and "@launch" not in l and "Override launch" not in l and "grid=ceil" not in l]
    kw = f"kernel={KNAME} " if OPT.get("list") else ""
    return "\n".join(head) + f"\n; @launch {kw}grid=(256,1,1) block=(512,1,1) lds={LDS_BYTES}\n" + '.amdgcn_target "amdgcn-amd-amdhsa--gfx950"\n' + a.text()

def common_srds():
    srd("ws", WS["FLG"], 11*32768, d=sF); srd("ws", WS["ACC"], 86016, d=sAcc)
def helper_stream(ptr, total, ld, col0, lpr, rows, first=None, skip=0):
    if not OPT["prefetch"]: return
    lp2 = 16 if lpr <= 16 else 32
    sh = lp2.bit_length()-1; rpi = 64//lp2
    srd(ptr, 0, total, d=sT)
    if OPT.get("hown", 1):
        a(f"s_and_b32 {sr(st[1])}, s2, 1")
        a(f"s_lshl1_add_u32 {sr(st[0])}, {sr(s_mi)}, {sr(st[1])}")
    else:
        a(f"s_and_b32 {sr(st[1])}, s2, 7")
        a(f"s_lshr_b32 {sr(st[0])}, s2, 6")
        a(f"s_lshl3_add_u32 {sr(st[0])}, {sr(st[0])}, {sr(st[1])}")
    a(f"s_lshl3_add_u32 {sr(st[0])}, {sr(st[0])}, {sr(s_w)}")
    a(f"s_mul_i32 {sr(st[0])}, {sr(st[0])}, {rows*ld}")
    if col0: a(f"s_add_u32 {sr(st[0])}, {sr(st[0])}, {col0}")
    a(f"v_lshrrev_b32 {vr(vt[2])}, {sh}, {vr(vl)}")
    a(f"v_mul_u32_u24 {vr(vt[2])}, {ld}, {vr(vt[2])}")
    a(f"v_and_b32 {vr(vt[3])}, {lp2-1}, {vr(vl)}")
    if lpr != lp2: a(f"v_min_u32 {vr(vt[3])}, {lpr-1}, {vr(vt[3])}")
    a(f"v_lshl_add_u32 {vr(vt[2])}, {vr(vt[3])}, 7, {vr(vt[2])}")
    n = first or -(-rows//rpi)
    for i in range(n):
        if i >= skip:
            if OPT.get("hgap"):
                a("s_waitcnt vmcnt(0)"); a(f"s_sleep {OPT['hgap']}")
            a(f"buffer_load_dword {vr(vt[1])}, {vr(vt[2])}, {sr(sT,4)}, {sr(st[0])} offen{' nt' if OPT.get('hnt') else ''}")
        if i < n-1: a(f"s_add_u32 {sr(st[0])}, {sr(st[0])}, {rpi*ld}")
HRET = {}
L_HELP = ".helper_job"
def helper_code():
    if not HRET: return
    buf, ac, u, va, vb, vc = 48, 112, 120, 122, 123, 124
    hid, cnt = 96, 97
    a.L.append("@PAD")
    a(f"{L_HELP}:")
    a(f"""s_and_b32 {sr(st[1])}, s2, 7
          s_lshr_b32 {sr(st[0])}, s2, 6
          s_lshl3_add_u32 {sr(hid)}, {sr(st[0])}, {sr(st[1])}
""")
    srd("w_in", 0, 1024*7168, d=sT)
    a(f"""s_lshr_b32 {sr(st[0])}, {sr(hid)}, 2
          s_lshl3_add_u32 {sr(st[0])}, {sr(st[0])}, {sr(s_w)}
          s_mul_i32 {sr(st[0])}, {sr(st[0])}, {16*7168}
          s_and_b32 {sr(st[1])}, {sr(hid)}, 3
          s_mul_i32 {sr(st[2])}, {sr(st[1])}, 896
          s_add_u32 {sr(st[0])}, {sr(st[0])}, {sr(st[2])}
          v_lshl_add_u32 {vr(va)}, {vr(vl)}, 4, {sr(st[0])}
          v_mov_b32 {vr(vb)}, 0x7ffffff0
          v_cmp_gt_u32 vcc, 56, {vr(vl)}
          v_cndmask_b32 {vr(va)}, {vr(vb)}, {vr(va)}, vcc
          v_lshl_add_u32 {vr(vc)}, {sr(s_w)}, 6, {vr(vl)}
          v_lshlrev_b32 {vr(vb)}, 5, {vr(vc)}
          s_waitcnt lgkmcnt(0)
          s_barrier""")
    def slow_cols(col0):
        a(f"""s_and_b32 {sr(st[0])}, s2, 1
              s_mul_i32 {sr(st[0])}, {sr(st[0])}, 1792
              s_add_u32 {sr(st[0])}, {sr(st[0])}, {col0}
              s_add_u32 {sr(st[1])}, {sr(st[0])}, {sr(sT)}
              s_lshr_b32 {sr(st[1])}, {sr(st[1])}, 7
              s_sub_u32 {sr(st[1])}, 3, {sr(st[1])}
              s_and_b32 {sr(st[1])}, {sr(st[1])}, 7
              s_cmp_lt_u32 {sr(st[1])}, 6
              s_cselect_b32 {sr(st[2])}, 1024, 0
              s_lshl_b32 {sr(st[1])}, {sr(st[1])}, 7
              s_add_u32 {sr(st[0])}, {sr(st[0])}, {sr(st[1])}
              s_lshr_b32 {sr(st[1])}, s2, 6
              s_lshl3_add_u32 {sr(st[1])}, {sr(st[1])}, {sr(s_w)}
              v_and_b32 {vr(vt[2])}, 31, {vr(vl)}
              v_lshl_add_u32 {vr(vt[2])}, {vr(vt[2])}, 5, {sr(st[1])}
              v_mul_u32_u24 {vr(vt[2])}, 7168, {vr(vt[2])}
              v_lshrrev_b32 {vr(vt[3])}, 5, {vr(vl)}
              v_mad_u32_u24 {vr(vt[2])}, {vr(vt[3])}, {sr(st[2])}, {vr(vt[2])}
              buffer_load_dword {vr(vt[1])}, {vr(vt[2])}, {sr(sT,4)}, {sr(st[0])} offen""")
    if OPT.get("hc3", 1) & 1: slow_cols(3584)
    for half, kind in ((0, F_C4),):
        a(f"s_mov_b32 {sr(st[0])}, {3584*half}")
        for r in range(16):
            a(f"buffer_load_dwordx4 {vr(buf+4*r,4)}, {vr(va)}, {sr(sT,4)}, {sr(st[0])} offen")
            if r < 15: a(f"s_add_u32 {sr(st[0])}, {sr(st[0])}, 7168")
        for r in range(16):
            if r % 4 == 0: a(f"s_waitcnt vmcnt({12-r})")
            for e in range(4):
                d = ac+2*e if r == 0 else u
                a(f"v_lshlrev_b32 {vr(d)}, 16, {vr(buf+4*r+e)}")
                a(f"v_and_b32 {vr(d+1)}, 0xffff0000, {vr(buf+4*r+e)}")
                if r: a(f"v_pk_add_f32 {vr(ac+2*e,2)}, {vr(ac+2*e,2)}, {vr(u,2)}")
        for h in range(2): a(f"ds_write_b128 {vr(vb)}, {vr(ac+4*h,4)} offset:{16*h}")
        if OPT.get("hc3", 1) & 2: slow_cols(0)
        if OPT.get("hov", 1): helper_stream("w_sp", 2048*4096, 4096, 0, 32, 8, first=OPT.get("hfirst", 1))
        a(f"""v_lshlrev_b32 {vr(u+1)}, 2, {vr(vc)}
              s_and_b32 {sr(st[1])}, {sr(hid)}, 3
              s_mul_i32 {sr(st[1])}, {sr(st[1])}, 1792
              s_add_u32 {sr(st[1])}, {sr(st[1])}, {A_CIN+7168*half}
              s_waitcnt lgkmcnt(0)
              s_barrier""")
        for w in range(8): a(f"ds_read_b32 {vr(buf+w)}, {vr(u+1)} offset:{2048*w}")
        a("s_waitcnt lgkmcnt(0)")
        for w in range(1, 8): a(f"v_add_f32 {vr(buf)}, {vr(buf)}, {vr(buf+w)}")
        a(f"v_mov_b32 {vr(u)}, {vr(buf)}")
        stamp(35)
        L = lab("h7")
        a(f"s_cmp_eq_u32 {sr(s_w)}, 7"); a(f"s_cbranch_scc1 {L}")
        a("s_waitcnt lgkmcnt(0)")
        a(f"buffer_atomic_add_f32 {vr(u)}, {vr(u+1)}, {sr(sAcc,4)}, {sr(st[1])} offen sc1")
        a(f"{L}:")
        a("s_waitcnt vmcnt(0) lgkmcnt(0)")
        a("s_barrier")
        L = lab("h4")
        a(f"s_cmp_lg_u32 {sr(s_w)}, 0"); a(f"s_cbranch_scc1 {L}")
        a(f"v_lshrrev_b32 {vr(u)}, 2, {vr(vl)}"); a(f"v_and_b32 {vr(u+1)}, 3, {vr(vl)}")
        a(f"v_lshlrev_b32 {vr(u)}, 11, {vr(u)}"); a(f"v_lshl_add_u32 {vr(u)}, {vr(u+1)}, 7, {vr(u)}")
        a(f"v_mov_b32 {vr(u+1)}, 1")
        a(f"s_mov_b32 {sr(st[1])}, {kind*32768}")
        a(f"buffer_atomic_add {vr(u+1)}, {vr(u)}, {sr(sF,4)}, {sr(st[1])} offen sc1")
        a(f"{L}:")
    stamp(30)
    if OPT.get("hfull"):
        srd("w_sp", 0, 2048*4096, d=sT)
        L = lab("hf")
        a(f"""s_lshl3_add_u32 {sr(st[0])}, {sr(hid)}, {sr(s_w)}
              s_lshl_b32 {sr(st[0])}, {sr(st[0])}, 15
              v_lshlrev_b32 {vr(vt[2])}, 4, {vr(vl)}
              s_mov_b32 {sr(cnt)}, 8
              {L}:""")
        for j in range(4): a(f"buffer_load_dwordx4 {vr(buf+4*j,4)}, {vr(vt[2])}, {sr(sT,4)}, {sr(st[0])} offen offset:{1024*j}")
        a(f"""s_add_u32 {sr(st[0])}, {sr(st[0])}, 4096
              s_waitcnt vmcnt({OPT['hfull']-1})
              s_sub_u32 {sr(cnt)}, {sr(cnt)}, 1
              s_cmp_lg_u32 {sr(cnt)}, 0
              s_cbranch_scc1 {L}""")
    else: helper_stream("w_sp", 2048*4096, 4096, 0, 32, 8, skip=OPT.get("hfirst", 1) if OPT.get("hov", 1) else 0)
    if OPT["stamp"]: a("s_waitcnt vmcnt(0)")
    stamp(31)
    if OPT.get("hwo", 0): helper_stream("w_out", 1792*2048, 2048, 0, 16, 7)
    a("s_waitcnt vmcnt(0)")
    stamp(32)
    if OPT.get("hsleep", 1):
        L = lab("hs")
        a(f"s_cmp_lg_u32 {sr(s_w)}, 4"); a(f"s_cbranch_scc1 {L}")
        poll(F_B5, s_c8, s_mi, 16, lambda: a("s_sleep 32"))
        a(f"{L}:")
    a("s_barrier")
    if OPT.get("hl2", 3) & 1:
        a(f"s_lshl_b32 {sr(st[0])}, {sr(s_mi)}, 19")
        srd("w_sp", 0, 128*4096, soff=st[0], d=sT)
        a(f"""v_lshrrev_b32 {vr(vt[2])}, 2, {vr(vl)}
              v_lshl_add_u32 {vr(vt[2])}, {sr(s_w)}, 4, {vr(vt[2])}
              v_lshlrev_b32 {vr(vt[2])}, 12, {vr(vt[2])}
              v_and_b32 {vr(vt[3])}, 3, {vr(vl)}
              v_lshl_add_u32 {vr(vt[2])}, {vr(vt[3])}, 7, {vr(vt[2])}
              s_and_b32 {sr(st[0])}, {sr(s_mi)}, 12
              s_lshl_b32 {sr(st[0])}, {sr(st[0])}, 8""")
        for i in range(OPT.get('hn', 8)):
            a(f"buffer_load_dword {vr(vt[1])}, {vr(vt[2])}, {sr(sT,4)}, {sr(st[0])} offen")
            a(f"s_add_u32 {sr(st[0])}, {sr(st[0])}, 512"); a(f"s_and_b32 {sr(st[0])}, {sr(st[0])}, 4095")
            if OPT.get("hpace", 1): a("s_waitcnt vmcnt(0)")
        stamp(33)
    if OPT.get("hl2", 3) & 4:
        a(f"s_lshl_b32 {sr(st[0])}, {sr(s_mi)}, 19")
        srd("w_sp", 0, 128*4096, soff=st[0], d=sT)
        a(f"""v_lshrrev_b32 {vr(vt[2])}, 2, {vr(vl)}
              v_lshl_add_u32 {vr(vt[2])}, {sr(s_w)}, 4, {vr(vt[2])}
              v_lshlrev_b32 {vr(vt[2])}, 12, {vr(vt[2])}
              s_and_b32 {sr(st[0])}, {sr(s_mi)}, 12
              s_add_u32 {sr(st[1])}, {sr(s_mi)}, 1
              s_and_b32 {sr(st[1])}, {sr(st[1])}, 3
              s_lshl_b32 {sr(st[1])}, {sr(st[1])}, {OPT.get('grpsp', 0)}
              s_lshl1_add_u32 {sr(st[0])}, {sr(st[0])}, {sr(st[1])}
              v_and_b32 {vr(vt[3])}, {2 if OPT.get('grpsp') else 3}, {vr(vl)}
              v_lshl_add_u32 {vr(vt[3])}, {vr(vt[3])}, 2, {sr(st[0])}
              v_and_b32 {vr(vt[4])}, {1 if OPT.get('grpsp') else 0}, {vr(vl)}
              v_add_u32 {vr(vt[3])}, {vr(vt[3])}, {vr(vt[4])}
              v_and_b32 {vr(vt[3])}, 31, {vr(vt[3])}
              v_lshl_add_u32 {vr(vt[4])}, {vr(vt[3])}, 7, {vr(vt[2])}
              buffer_load_dword {vr(vt[1])}, {vr(vt[4])}, {sr(sT,4)}, 0 offen
              v_xor_b32 {vr(vt[4])}, 2048, {vr(vt[4])}""")
    if OPT.get("hmid"):
        poll(F_B4, s_mi, s_nj, 15, lambda: a("s_sleep 16"))
    if OPT.get("hl2", 3) & 4: a(f"buffer_load_dword {vr(vt[1])}, {vr(vt[4])}, {sr(sT,4)}, 0 offen")
    if OPT.get("hl2", 3) & 2:
        srd("w_out", 0, 1792*2048, d=sT)
        a(f"""s_lshr_b32 {sr(st[0])}, s2, 6
              s_lshl3_add_u32 {sr(st[0])}, {sr(st[0])}, {sr(s_w)}
              s_lshl_b32 {sr(st[0])}, {sr(st[0])}, 14
              s_and_b32 {sr(st[1])}, s2, 1
              s_lshl_b32 {sr(st[1])}, {sr(st[1])}, 10
              s_add_u32 {sr(st[0])}, {sr(st[0])}, {sr(st[1])}
              v_lshrrev_b32 {vr(vt[2])}, 3, {vr(vl)}
              v_lshlrev_b32 {vr(vt[2])}, 11, {vr(vt[2])}
              v_and_b32 {vr(vt[3])}, 7, {vr(vl)}
              v_lshl_add_u32 {vr(vt[2])}, {vr(vt[3])}, 7, {vr(vt[2])}""")
        a(f"v_add_u32 {vr(vt[2])}, {sr(st[0])}, {vr(vt[2])}")
        a(f"s_and_b32 {sr(st[0])}, s2, 6")
        a(f"s_lshl_b32 {sr(st[0])}, {sr(st[0])}, 19")
        ctr_off(st[2], s_mi, s_nj); Lq = lab("hq")
        if OPT.get("hfull"):
            a(f"v_readfirstlane_b32 {sr(st[1])}, {vr(vt[2])}")
            a(f"v_lshl_add_u32 {vr(vt[2])}, {vr(vl)}, 4, {sr(st[1])}")
            for j in range(1, 4): a(f"v_add_u32 {vr(va+j-1)}, {4096*j}, {vr(vt[2])}")
        for i in range(7):
            if OPT.get("hfull"):
                for j in range(8):
                    a(f"buffer_load_dwordx4 {vr(buf+4*j,4)}, {vr(vt[2] if j < 2 else va+j//2-1)}, {sr(sT,4)}, {sr(st[0])} offen offset:{2048*(j&1)}")
                    if j == 3: a(f"s_waitcnt vmcnt({OPT['hfull']-1})")
            else: a(f"buffer_load_dword {vr(vt[1])}, {vr(vt[2])}, {sr(sT,4)}, {sr(st[0])} offen")
            a(f"s_add_u32 {sr(st[0])}, {sr(st[0])}, {256*2048}")
            a(f"s_cmp_eq_u32 {sr(st[0])}, {7*256*2048}"); a(f"s_cselect_b32 {sr(st[0])}, 0, {sr(st[0])}")
            a("s_waitcnt vmcnt(0)")
            if 2 <= i < 6:
                a(f"s_load_dword {sr(s_pv)}, {sr(sF,2)}, {sr(st[2])} offset:{F_B6*32768} glc"); a("s_waitcnt lgkmcnt(0)")
                a(f"s_cmp_lg_u32 {sr(s_pv)}, 0"); a(f"s_cbranch_scc1 {Lq}")
        a(f"{Lq}:")
        a("s_waitcnt vmcnt(0)")
        stamp(34)
    a("s_waitcnt vmcnt(0)")
    a(f"s_cmp_lt_u32 {sr(s_w)}, 4"); a(f"s_cbranch_scc1 {HRET['C']}")
    a(f"s_cmp_lt_u32 {sr(s_w)}, 6"); a(f"s_cbranch_scc1 {HRET['A']}")
    a(f"s_cmp_eq_u32 {sr(s_w)}, 6"); a(f"s_cbranch_scc1 {HRET['W']}")
    a(f"s_branch {HRET['X']}")
def helper_branch():
    a.L.append("@EPOCH1")
    a(f"s_cmp_eq_u32 {sr(s_c8)}, 7"); a(f"s_cbranch_scc1 {L_HELP}")
def helper_ret(role, extra=None):
    HRET[role] = lab("hret")
    if extra:
        Lj = lab("hj"); a(f"s_branch {Lj}"); a(f"{HRET[role]}:"); extra(); a(f"{Lj}:")
    else: a(f"{HRET[role]}:")

def tlb_warm(s_cd, which):
    if OPT.get("tlb"):
        sh = OPT["tlb"]
        a(f"s_lshr_b32 {sr(st[0])}, s2, 3"); a(f"s_lshl_b32 {sr(st[2])}, s2, 8")
        for j, (ptr, nb) in enumerate([(("ws", 35*MB), ("wo", 2*MB), ("w_in", 7*MB), ("w_sp", 8*MB), ("w_out", 7*MB//2), ("out", 4*MB))[k] for k in which]):
            n = -(-nb >> sh)
            for r in range(-(-n//32)):
                a(f"s_add_u32 {sr(st[1])}, {sr(st[0])}, {32*r}")
                a(f"s_min_u32 {sr(st[1])}, {sr(st[1])}, {n-1}")
                a(f"s_lshl_b32 {sr(st[1])}, {sr(st[1])}, {sh}")
                a(f"s_add_u32 {sr(st[1])}, {sr(st[1])}, {sr(st[2])}")
                a(f"s_load_dword {sr(s_cd)}, {sr(P[ptr],2)}, {sr(st[1])} glc")
def loaderA():
    tb_init(1); L = Loader('A')
    bg = lambda ph: (lambda: L.begin(ph))
    pA = OPT.get("pA", 2)
    L.setup(P1K, 0); L.begin(P1K); L.prefill(P1K, OPT["pK"]); stamp(1)
    dm = S.alloc()
    if OPT.get("tlbw", 0) == 0: tlb_warm(dm, range(6))
    if OPT.get("tlbw", 0) == 1: tlb_warm(dm, (0, 1))
    P1Q.ld['A'] = 0; P4.ld['A'] = 2
    L.run(P1K, OPT["pK"], maxper=OPT["mK"], nxt=lambda: (split(), L.begin(P1Q))); stamp(2)
    common_srds(); L.setup(P2, 1)
    if OPT.get("tlbw", 0) == 1: tlb_warm(dm, (2, 3, 4, 5))
    if OPT.get("tlbw", 0) == 2: tlb_warm(dm, range(6))
    L.run(P1Q, 4, nxt=bg(P2)); stamp(3)
    BAR(); BAR()
    L.setup(P3, 2); L.setup(P5, 3)
    poll(F_B2, s_mi, s_nj, 16); stamp(4)
    L.prefill(P2, pA); L.run(P2, pA, nxt=bg(P3)); stamp(5)
    BAR()
    helper_branch()
    L.setup(P6, 0)
    poll(F_B3, s_mi, s_nj, 16); stamp(6)
    L.prefill(P3, pA); L.run(P3, pA, nxt=bg(P4)); stamp(7)
    L.run(P4, 4, nxt=bg(P5))
    L.prefill(P5, OPT.get("pA5", 3)); L.run(P5, OPT.get("pA5", 3), nxt=bg(P6)); stamp(8)
    BAR()
    helper_ret('A', lambda: (L.setup(P6, 0), L.begin(P6)))
    poll(F_B6, s_mi, s_nj, 14, lazy=8); stamp(9)
    L.prefill(P6, pA); L.run(P6, pA)
    stamp_out(); tb_out()

def loaderW():
    tb_init(2); tb_reset(); L = Loader('W')
    bg = lambda ph: (lambda: L.begin(ph))
    def go(ph, pre, bit, nxt=None):
        if OPT["spread"] & bit: L.run_spread(ph, pre, nxt=nxt, margin=OPT.get("sm1" if ph.nseg == 1 else "sm2", 2))
        else: L.run(ph, pre, maxper=1, nxt=nxt)
    L.setup(P1K, 0); L.begin(P1K); L.prefill(P1K, OPT["pK"]); stamp(1)
    if OPT.get("qearly", 0): L.setup(P1Q, 1)
    L.run(P1K, OPT["pK"], maxper=OPT["mK"], cap=4, nxt=lambda: (split(), None if OPT.get("qearly", 0) else L.setup(P1Q, 1), L.begin(P1Q))); stamp(2)
    L.prefill(P1Q, OPT["preQ"]); stamp(3)
    common_srds(); L.setup(P2, 0)
    go(P1Q, OPT["preQ"], 1, bg(P2))
    BAR()
    L.setup(P3, 1); L.setup(P4, 2)
    BAR()
    L.prefill(P2, OPT["pW2"]); stamp(4); go(P2, OPT["pW2"], 2, bg(P3))
    L.setup(P5, 3)
    BAR()
    helper_branch()
    tb_bank(1); tb_reset()
    L.prefill(P3, OPT["pW3"]); stamp(5); go(P3, OPT["pW3"], 4, bg(P4))
    L.prefill(P4, OPT["pW4"]); stamp(6); go(P4, OPT["pW4"], 8, lambda: (L.begin(P5), ctr_off(st[0], s_n7, s_mi),
          a(f"s_load_dword {sr(s_pv)}, {sr(sF,2)}, {sr(st[0])} offset:{F_B5*32768} glc")))
    Lk = lab("b5")
    a("s_waitcnt lgkmcnt(0)"); a(f"s_cmp_ge_u32 {sr(s_pv)}, 16"); a(f"s_cbranch_scc1 {Lk}")
    poll(F_B5, s_n7, s_mi, 16)
    a(f"{Lk}:"); stamp(7); tb_bank(2); tb_reset()
    L.prefill(P5, OPT.get("pW5", 3)); L.run(P5, OPT.get("pW5", 3), maxper=1, cap=4)
    Lj = lab("w6")
    L.setup(P6, 0); L.begin(P6)
    BAR()
    helper_ret('W', lambda: (L.setup(P6, 0), L.begin(P6)))
    L.prefill(P6, OPT["pW6"]); stamp(8); go(P6, OPT["pW6"], 16)
    stamp_out(); tb_out()

def aux():
    s_left = S.alloc(); sG = S.alloc(4, 4); sH = S.alloc(4, 4)
    buf = V.alloc(128, 4); ac = V.alloc(16, 4); vp = V.alloc(); vk = V.alloc(2)
    def bar(n=1):
        for _ in range(n):
            L = lab("nb")
            a(f"s_cmp_eq_u32 {sr(s_left)}, 0")
            a(f"s_cbranch_scc1 {L}")
            BAR()
            a(f"s_sub_u32 {sr(s_left)}, {sr(s_left)}, 1")
            a(f"{L}:")
    bar2 = lambda: bar(2)
    def until(n):
        Lw = lab("w4"); Lx = lab("w4d")
        a(f"{Lw}:"); a(f"s_cmp_le_u32 {sr(s_left)}, {n}"); a(f"s_cbranch_scc1 {Lx}"); bar(1); a(f"s_branch {Lw}"); a(f"{Lx}:")
    s_cb = S.alloc(2, 2); s_cd = S.alloc(2, 2)
    def touch(label):
        if not OPT.get("touch", 1): return
        a(f"s_mov_b32 {sr(st[3])}, {label}-{KNAME}")
        a(f"s_and_b32 {sr(st[3])}, {sr(st[3])}, 0xfff80")
        for j in range(4): a(f"s_load_dwordx2 {sr(s_cd,2)}, {sr(s_cb,2)}, {sr(st[3])} offset:{128*j+60}")
    def budget(n): a(f"s_mov_b32 {sr(s_left)}, {n}")
    def drain():
        L = lab("dr"); D = lab("dd")
        a(f"{L}:")
        a(f"s_cmp_eq_u32 {sr(s_left)}, 0")
        a(f"s_cbranch_scc1 {D}")
        BAR()
        a(f"s_sub_u32 {sr(s_left)}, {sr(s_left)}, 1")
        a(f"s_branch {L}")
        a(f"{D}:")
    W0 = "s_waitcnt vmcnt(0)"; L0 = "s_waitcnt lgkmcnt(0)"
    def cs_add(base, grp):
        a(f"v_lshlrev_b32 {vr(vt[2])}, 2, {vr(vl)}")
        a(f"v_add_u32 {vr(vt[3])}, {M_CP}, {vr(vt[2])}")
        a(f"ds_read2_b32 {vr(ac,2)}, {vr(vt[3])} offset0:0 offset1:64")
        a(f"s_lshl_b32 {sr(st[0])}, {sr(grp)}, 9")
        a(f"s_add_u32 {sr(st[0])}, {sr(st[0])}, {base}")
        a(L0)
        for h in range(2): a(f"buffer_atomic_add_f32 {vr(ac+h)}, {vr(vt[2])}, {sr(sAcc,4)}, {sr(st[0])} offen offset:{256*h} sc1")
    def cs_get(base, grp, dst):
        a(f"v_lshlrev_b32 {vr(vt[2])}, 2, {vr(vl)}")
        a(f"s_lshl_b32 {sr(st[0])}, {sr(grp)}, 9")
        a(f"s_add_u32 {sr(st[0])}, {sr(st[0])}, {base}")
        a(f"s_mov_b32 m0, {dst}")
        for h in range(2): a(f"buffer_load_dword {vr(vt[2])}, {sr(sAcc,4)}, {sr(st[0])} offen offset:{256*h} sc1 lds")
    def stats_issue(base):
        a(f"v_lshlrev_b32 {vr(vt[2])}, 3, {vr(vl)}")
        a(f"s_lshl_b32 {sr(st[0])}, {sr(s_mi)}, 10")
        if base: a(f"s_add_u32 {sr(st[0])}, {sr(st[0])}, {base}")
        for h in range(2): a(f"buffer_load_dwordx2 {vr(buf+2*h,2)}, {vr(vt[2])}, {sr(sAcc,4)}, {sr(st[0])} offen offset:{512*h} sc1")
    def stats_fin_x():
        for r in range(2):
            var_eps(buf+r, buf+2+r, 1024); a(f"v_rsq_f32 {vr(ac+r)}, {vr(buf+2+r)}")
        a(f"v_lshlrev_b32 {vr(vt[2])}, 3, {vr(vl)}")
        a(f"v_add_u32 {vr(vt[2])}, {M_RS}, {vr(vt[2])}")
        a(f"ds_write_b64 {vr(vt[2])}, {vr(ac,2)}")
        a(f"ds_write_b64 {vr(vt[2])}, {vr(buf,2)} offset:512")
    def stats_calc_h():
        for r in range(2):
            g = ac+4*r
            var_eps(buf+r, buf+2+r, 1024)
            a(f"v_rsq_f32 {vr(g+3)}, {vr(buf+2+r)}")
            a(f"v_mov_b32 {vr(g+1)}, {vr(buf+r)}")
            a(f"v_mul_f32 {vr(g)}, {vr(buf+2+r)}, {vr(g+3)}")
            a(f"v_mul_f32 {vr(g+2)}, {vr(g+3)}, {vr(g+3)}")
            a(f"v_mul_f32 {vr(g+3)}, {f32(GC0)}, {vr(g+3)}")
            a(f"v_mul_f32 {vr(g+2)}, {f32(0.044715)}, {vr(g+2)}")
            a(f"v_mul_f32 {vr(g+2)}, {vr(g+2)}, {vr(g+3)}")
    def stats_write_h():
        a(f"v_lshlrev_b32 {vr(vt[2])}, 5, {vr(vl)}")
        a(f"v_add_u32 {vr(vt[2])}, {M_G}, {vr(vt[2])}")
        for r in range(2): a(f"ds_write_b128 {vr(vt[2])}, {vr(ac+4*r,4)} offset:{16*r}")
    def prefetch(ptr, total, ld, col0, xs, lpr, part):
        if not OPT["prefetch"]: return
        lp2 = 8 if lpr <= 8 else 16
        sh = lp2.bit_length()-1; rpi = 64//lp2
        srd(ptr, 0, total, d=sG)
        a(f"s_lshr_b32 {sr(st[0])}, s2, 1")
        a(f"s_mul_i32 {sr(st[0])}, {sr(st[0])}, {8*ld}")
        a(f"s_and_b32 {sr(st[1])}, s2, 1")
        a(f"s_mul_i32 {sr(st[1])}, {sr(st[1])}, {xs}")
        a(f"s_add_u32 {sr(st[0])}, {sr(st[0])}, {sr(st[1])}")
        if col0 + part*rpi*ld: a(f"s_add_u32 {sr(st[0])}, {sr(st[0])}, {col0 + part*rpi*ld}")
        a(f"v_lshrrev_b32 {vr(vt[2])}, {sh}, {vr(vl)}")
        a(f"v_mul_u32_u24 {vr(vt[2])}, {ld}, {vr(vt[2])}")
        a(f"v_and_b32 {vr(vt[3])}, {lp2-1}, {vr(vl)}")
        if lpr != lp2: a(f"v_min_u32 {vr(vt[3])}, {lpr-1}, {vr(vt[3])}")
        a(f"v_lshl_add_u32 {vr(vt[2])}, {vr(vt[3])}, 7, {vr(vt[2])}")
        a(f"buffer_load_dword {vr(vp)}, {vr(vt[2])}, {sr(sG,4)}, {sr(st[0])} offen")
    if OPT.get("codepf", 1):
        a(f"s_getpc_b64 {sr(sG,2)}")
        Lc = lab("pc"); a(f"{Lc}:")
        a(f"s_sub_u32 {sr(sG)}, {sr(sG)}, {Lc}-{KNAME}")
        a(f"s_subb_u32 {sr(sG+1)}, {sr(sG+1)}, 0")
        a(f"s_lshr_b32 {sr(st[0])}, s2, 3")
        a(f"s_lshl_b32 {sr(st[0])}, {sr(st[0])}, 8")
        a(f"s_add_u32 {sr(s_cb)}, {sr(sG)}, {sr(st[0])}")
        a(f"s_addc_u32 {sr(s_cb+1)}, {sr(sG+1)}, 0")
        a(f"s_mov_b32 {sr(sG+2)}, {Lend}-{KNAME}")
        a(f"s_mov_b32 {sr(sG+3)}, 0x20000")
        a(f"s_lshr_b32 {sr(st[0])}, s2, 3")
        a(f"s_lshl_b32 {sr(st[0])}, {sr(st[0])}, 11")
        a(f"v_lshl_add_u32 {vr(vt[2])}, {vr(vl)}, 5, {sr(st[0])}")
        a(f"buffer_load_dword {vr(vp)}, {vr(vt[2])}, {sr(sG,4)}, 0 offen")
    a(f"v_lshlrev_b32 {vr(vk)}, 2, {vr(vl)}")
    for i in range(4): a(f"v_mov_b32 {vr(ac+i)}, 0")
    a(f"v_add_u32 {vr(vt[2])}, {M_CNT}, {vr(vk)}")
    a(f"ds_write_b32 {vr(vt[2])}, {vr(ac)}")
    a(f"""s_mul_i32 {sr(st[0])}, s2, 22
          v_add_u32 {vr(vt[0])}, {sr(st[0])}, {vr(vl)}
          v_and_b32 {vr(vt[1])}, 3, {vr(vt[0])}
          v_lshrrev_b32 {vr(vt[0])}, 2, {vr(vt[0])}
          v_lshlrev_b32 {vr(vt[0])}, 11, {vr(vt[0])}
          v_lshl_add_u32 {vr(vt[0])}, {vr(vt[1])}, 7, {vr(vt[0])}
          v_lshlrev_b32 {vr(vt[3])}, 4, {vr(vl)}
          s_mul_i32 {sr(st[1])}, s2, 2688""")
    a(L0); common_srds()
    Lz = lab("nz")
    a("s_cmp_ge_u32 s2, 32"); a(f"s_cbranch_scc1 {Lz}")
    a("s_mov_b64 exec, 0x3fffff")
    a(f"buffer_store_dword {vr(ac)}, {vr(vt[0])}, {sr(sF,4)}, 0 offen sc1")
    a("s_mov_b64 exec, -1")
    for o in (0, 1024, 1664): a(f"buffer_store_dwordx4 {vr(ac,4)}, {vr(vt[3])}, {sr(sAcc,4)}, {sr(st[1])} offen offset:{o} sc1")
    a(f"{Lz}:")
    a(f"s_lshl_b32 {sr(st[0])}, {sr(s_nj)}, 12")
    srd("wphi", 0, 4096, soff=st[0], d=sG)
    a(f"v_lshlrev_b32 {vr(vt[2])}, 4, {vr(vl)}")
    a(f"s_mov_b32 m0, {M_WPH}")
    for j in range(4): a(f"buffer_load_dwordx4 {vr(vt[2])}, {sr(sG,4)}, 0 offen offset:{1024*j} lds")
    NP = max(special_list(P1K))
    if OPT.get("g0late", 1): BAR()
    Lz = lab("nz")
    a("s_cmp_ge_u32 s2, 32"); a(f"s_cbranch_scc1 {Lz}")
    a(f"s_lshl_b32 {sr(st[0])}, s2, 2"); a(f"s_and_b32 {sr(st[0])}, {sr(st[0])}, 28")
    a("s_waitcnt vmcnt(4)")
    a(f"s_atomic_add {sr(s_one)}, {sr(P['dbg'],2)}, {sr(st[0])} offset:64")
    a(f"{Lz}:")
    if not OPT.get("g0late", 1): BAR()
    split(); budget(NP)
    bar(3)
    Lp, Ld = lab("g0"), lab("g0d")
    g8 = S.alloc(8, 4)
    a(f"s_load_dwordx8 {sr(g8,8)}, {sr(P['dbg'],2)}, 64")
    bar(2); a(L0)
    for i in range(1, 8): a(f"s_add_u32 {sr(g8)}, {sr(g8)}, {sr(g8+i)}")
    a(f"s_cmp_ge_u32 {sr(g8)}, 32"); a(f"s_cbranch_scc1 {Ld}")
    srd("dbg", 64, 32, d=sH)
    a(f"{Lp}:")
    a(f"buffer_load_dword {vr(vt[1])}, {vr(vk)}, {sr(sH,4)}, 0 offen sc1")
    a(f"s_sub_u32 {sr(s_to)}, {sr(s_to)}, 1")
    a(W0)
    a(f"s_cbranch_scc1 {Ld}")
    a(f"v_cmp_le_u32 vcc, 4, {vr(vt[1])}")
    a("s_cmp_eq_u32 vcc_lo, 0xff")
    a(f"s_cbranch_scc0 {Lp}")
    a(f"{Ld}:")
    a(f"s_max_i32 {sr(s_to)}, {sr(s_to)}, 0")
    stamp(1)
    a(f"s_add_u32 {sr(s_left)}, {sr(s_left)}, {2+OPT.get('kd', 1)}"); drain()
    budget(13-OPT.get('kd', 1)-NP)
    signal(F_X, s_mi); signal(F_CKV, s_nj); stamp(2)
    bar(1); touch(".code_ck")
    bar(2)
    poll(F_X, s_mi, s_nj, 16, bar, second=(F_CKV, s_nj, s_mi))
    until(OPT.get("kt", 2))
    stats_issue(A_XST); cs_get(A_CKV, s_nj, M_CS)
    a(f"s_mul_i32 {sr(st[0])}, {sr(s_mi)}, {64*6144}")
    a(f"s_lshl_b32 {sr(st[1])}, {sr(s_nj)}, 7")
    a(f"s_add_u32 {sr(st[0])}, {sr(st[0])}, {sr(st[1])}")
    srd("wqkv", 0, 63*6144+128, soff=st[0], d=sG)
    q0 = buf+8
    a(f"v_lshrrev_b32 {vr(vt[0])}, 3, {vr(vl)}")
    a(f"v_mul_u32_u24 {vr(vt[0])}, 6144, {vr(vt[0])}")
    a(f"v_and_b32 {vr(vt[1])}, 7, {vr(vl)}")
    a(f"v_lshl_add_u32 {vr(q0)}, {vr(vt[1])}, 4, {vr(vt[0])}")
    for j in range(1, 4): a(f"v_add_u32 {vr(q0+j)}, {j*(8*6144-1024)}, {vr(q0)}")
    drain(); a(W0)
    stats_fin_x(); a(L0); stamp(3)
    QS = W_RING+9*8192
    a(f"s_mov_b32 m0, {QS}")
    a(f"s_mov_b32 {sr(st[0])}, {32*6144}")
    BAR()
    for g in range(2):
        if g: a(f"s_mov_b32 m0, {QS+4096}")
        for j in range(4): a(f"buffer_load_dwordx4 {vr(q0+j)}, {sr(sG,4)}, {sr(st[0]) if g else 0} offen offset:{1024*j} lds")
    ones, fr, cq = buf+12, buf+16, buf+48
    for i in range(4): a(f"v_mov_b32 {vr(ones+i)}, 0x3f803f80")
    a(f"v_lshrrev_b32 {vr(vt[0])}, 2, {vr(vl)}")
    a(f"v_and_b32 {vr(vt[1])}, 3, {vr(vl)}")
    a(f"v_lshlrev_b32 {vr(vt[1])}, 3, {vr(vt[1])}")
    a(f"v_lshl_add_u32 {vr(vt[0])}, {vr(vt[0])}, 7, {vr(vt[1])}")
    a(f"v_add_u32 {vr(vt[0])}, {QS}, {vr(vt[0])}")
    a(W0)
    for t in range(4):
        for h in range(4): a(f"ds_read_b64_tr_b16 {vr(fr+8*t+2*h,2)}, {vr(vt[0])} offset:{h*2048+t*32}")
    a(L0)
    for t in range(4):
        for ks in range(2): a(f"{MF16} {vr(cq+4*t,4)}, {vr(ones,4)}, {vr(fr+8*t+4*ks,4)}, {'0' if ks == 0 else vr(cq+4*t,4)}")
    for t in range(1, 4):
        a(f"v_cmp_le_u32 vcc, {16*t}, {vr(vl)}")
        a(f"v_cndmask_b32 {vr(cq)}, {vr(cq)}, {vr(cq+4*t)}, vcc")
    a(f"s_lshl_b32 {sr(st[0])}, {sr(s_nj)}, 8")
    a(f"s_add_u32 {sr(st[0])}, {sr(st[0])}, {A_CQ}")
    a(f"buffer_atomic_add_f32 {vr(cq)}, {vr(vk)}, {sr(sAcc,4)}, {sr(st[0])} offen sc1")
    if OPT.get("pfo", 0): prefetch("wo", 1024*2048, 2048, 0, 1024, 8, 0)
    budget(OPT["TQ"]+2)
    if OPT.get("pfz"):
        bar(OPT["pfz"]); a(W0)
        prefetch("w_in", 1024*7168, 7168, 3584, 1792, 14, 0); prefetch("w_in", 1024*7168, 7168, 3584, 1792, 14, 1)
        drain()
    else:
        drain(); a(W0)
    signal(F_B1A, s_nj); touch(".code_cq")
    budget(14-OPT["TQ"]); bar(OPT.get("TQw", 2))
    poll(F_B1A, s_nj, s_mi, 16, lambda: bar(OPT.get("TQp", 2))); stamp(4)
    a(f"s_lshl_b32 {sr(st[0])}, {sr(s_nj)}, 8")
    a(f"s_add_u32 {sr(st[0])}, {sr(st[0])}, {A_CQ}")
    a(f"s_mov_b32 m0, {M_CS+512}")
    a(f"buffer_load_dword {vr(vk)}, {sr(sAcc,4)}, {sr(st[0])} offen sc1 lds")
    def zwrite():
        a(f"v_cvt_pk_bf16_f32 {vr(ac)}, {vr(ac)}, {vr(ac+1)}")
        a(f"v_add_u32 {vr(vt[0])}, {M_ZF}, {vr(vk)}")
        a(f"ds_write_b32 {vr(vt[0])}, {vr(ac)}")
    a(f"s_lshl4_add_u32 {sr(st[2])}, {sr(s_nj)}, {sr(s_mi)}")
    a(f"s_lshl_b32 {sr(st[0])}, {sr(st[2])}, 14")
    srd("ws", WS["KVP"], 16384, soff=st[0], d=sG)
    a(f"v_lshlrev_b32 {vr(vt[4])}, 4, {vr(vl)}")
    a(f"v_lshlrev_b32 {vr(vt[0])}, 3, {vr(vl)}")
    a(f"s_lshl_b32 {sr(st[1])}, {sr(s_nj)}, 9")
    a(f"s_add_u32 {sr(st[1])}, {sr(st[1])}, {A_Z}")
    a(f"buffer_load_dwordx2 {vr(ac,2)}, {vr(vt[0])}, {sr(sAcc,4)}, {sr(st[1])} offen sc1")
    a(f"s_mov_b32 {sr(st[0])}, 0")
    for p in range(16):
        a(f"buffer_load_dwordx4 {vr(buf+4*p,4)}, {vr(vt[4])}, {sr(sG,4)}, {sr(st[0])} offen offset:{(p&3)*1024} sc1")
        if p % 4 == 3 and p < 15: a(f"s_add_u32 {sr(st[0])}, {sr(st[0])}, 4096")
        if p % 8 == 7 and OPT.get('rb', 1): bar()
    a(f"s_lshl_b32 {sr(st[0])}, {sr(st[2])}, 9")
    srd("ws", WS["KVF"], 512, soff=st[0], d=sG)
    sm, u2 = buf+64, buf+72
    def sums(lo, hi):
        for p in range(lo, hi):
            for e in range(4):
                d = sm+2*e if p == 0 else u2
                a(f"v_lshlrev_b32 {vr(d)}, 16, {vr(buf+4*p+e)}")
                a(f"v_and_b32 {vr(d+1)}, 0xffff0000, {vr(buf+4*p+e)}")
                if p:
                    a(f"v_add_f32 {vr(sm+2*e)}, {vr(sm+2*e)}, {vr(u2)}")
                    a(f"v_add_f32 {vr(sm+2*e+1)}, {vr(sm+2*e+1)}, {vr(u2+1)}")
    s_z = S.alloc()
    def passR():
        L = lab("pr")
        a(f"s_or_b32 {sr(st[3])}, {sr(s_left)}, {sr(s_z)}"); a(f"s_cbranch_scc1 {L}")
        zwrite(); a(L0); BAR(); a(f"s_mov_b32 {sr(s_z)}, 1")
        a(f"{L}:")
    a(f"s_mov_b32 {sr(s_z)}, 0")
    bar(OPT.get("rw", 2))
    a("s_waitcnt vmcnt(16)")
    a(f"s_setprio {OPT.get('rprio', 0)}")
    nch = OPT.get("rn", 4)
    for g in range(nch):
        passR()
        a(f"s_waitcnt vmcnt({16-(16//nch)*(g+1)})")
        sums(16//nch*g, 16//nch*(g+1))
        if g < nch-1 or OPT.get('rl', 1): bar(1)
    for e in range(4): a(f"v_permlane32_swap_b32 {vr(sm+e)}, {vr(sm+4+e)}")
    for e in range(4): a(f"v_add_f32 {vr(sm+e)}, {vr(sm+e)}, {vr(sm+4+e)}")
    a(f"v_cvt_pk_bf16_f32 {vr(buf)}, {vr(sm)}, {vr(sm+1)}")
    a(f"v_cvt_pk_bf16_f32 {vr(buf+1)}, {vr(sm+2)}, {vr(sm+3)}")
    a(f"v_and_b32 {vr(vt[2])}, 31, {vr(vl)}")
    a(f"v_lshrrev_b32 {vr(vt[3])}, 5, {vr(vl)}")
    a(f"v_lshlrev_b32 {vr(vt[2])}, 4, {vr(vt[2])}")
    a(f"v_lshl_add_u32 {vr(vt[2])}, {vr(vt[3])}, 3, {vr(vt[2])}")
    a(f"buffer_store_dwordx2 {vr(buf,2)}, {vr(vt[2])}, {sr(sG,4)}, 0 offen sc1")
    stamp(5)
    a(f"s_setprio {OPT.get('lprio', 2)}")
    for _ in range(OPT.get('re', 2)): passR(); bar(1)
    passR(); a(W0)
    signal(F_B1B, s_nj)
    drain(); passR()
    poll(F_B1B, s_nj, s_mi, 16); stamp(6)
    a(f"s_lshl_b32 {sr(st[0])}, {sr(s_nj)}, 13")
    srd("ws", WS["KVF"], 8192, soff=st[0], d=sG)
    a(f"v_lshlrev_b32 {vr(vt[2])}, 4, {vr(vl)}")
    for g in range(2):
        a(f"s_mov_b32 m0, {M_KVF+4096*g}")
        a(f"s_mov_b32 {sr(st[0])}, {4096*g}")
        for j in range(4): a(f"buffer_load_dwordx4 {vr(vt[2])}, {sr(sG,4)}, {sr(st[0])} offen offset:{1024*j} sc1 lds")
    a(W0); a(L0); stamp(7)
    BAR()
    budget(19); drain()
    helper_branch()
    sp = S.alloc()
    special_pos(P3, s_mi, sp)
    a(f"""s_cmp_ge_u32 {sr(sp)}, 5
          s_cselect_b32 {sr(st[0])}, 5, 0
          s_sub_u32 {sr(st[0])}, {sr(sp)}, {sr(st[0])}
          s_lshl_b32 {sr(st[0])}, {sr(st[0])}, 14
          s_add_u32 {sr(st[0])}, {sr(st[0])}, {W_RING}
          v_lshrrev_b32 {vr(vt[0])}, 2, {vr(vl)}
          v_bfe_u32 {vr(vt[1])}, {vr(vt[0])}, 1, 2
          v_lshlrev_b32 {vr(vt[0])}, 7, {vr(vt[0])}
          v_lshl_add_u32 {vr(vt[0])}, {vr(vt[1])}, 5, {vr(vt[0])}
          v_and_b32 {vr(vt[1])}, 3, {vr(vl)}
          v_lshl_add_u32 {vr(vt[0])}, {vr(vt[1])}, 3, {vr(vt[0])}
          v_add_u32 {vr(q0)}, {sr(st[0])}, {vr(vt[0])}""")
    for t in range(1, 4): a(f"v_xor_b32 {vr(q0+t)}, {32*t}, {vr(q0)}")
    cz = buf+80
    for i in range(4): a(f"v_mov_b32 {vr(ones+i)}, 0x3f803f80")
    a(f"s_add_u32 {sr(s_left)}, {sr(sp)}, 1"); drain()
    a(f"s_sub_u32 {sr(s_left)}, 15, {sr(sp)}")
    for t in range(8):
        for h in range(4): a(f"ds_read_b64_tr_b16 {vr(fr+8*t+2*h,2)}, {vr(q0+(t&3))} offset:{(t>>2)*8192+h*2048}")
    if not OPT.get("hst", 1): stats_issue(A_HST)
    a(L0); bar(1)
    for t in range(8):
        for ks in range(2): a(f"{MF16} {vr(cz+4*t,4)}, {vr(ones,4)}, {vr(fr+8*t+4*ks,4)}, {'0' if ks == 0 else vr(cz+4*t,4)}")
    bar(1)
    for t in range(1, 4):
        a(f"v_cmp_le_u32 vcc, {16*t}, {vr(vl)}")
        for h in range(2): a(f"v_cndmask_b32 {vr(cz+16*h)}, {vr(cz+16*h)}, {vr(cz+16*h+4*t)}, vcc")
    a(f"s_lshl_b32 {sr(st[0])}, {sr(s_n7)}, 9")
    a(f"s_add_u32 {sr(st[0])}, {sr(st[0])}, {A_CIN+1792*4}")
    for h in range(2): a(f"buffer_atomic_add_f32 {vr(cz+16*h)}, {vr(vk)}, {sr(sAcc,4)}, {sr(st[0])} offen offset:{256*h} sc1")
    bar(2); a(W0)
    signal(F_C3, s_n7)
    poll(F_X, s_mi, s_nj, 32, bar)
    poll(F_C3, s_n7, s_mi, 16, bar)
    touch(".code_c3")
    until(2)
    stats_issue(A_HST); cs_get(A_CIN+1792*4, s_n7, M_CS)
    bar(1); a("s_waitcnt vmcnt(2)")
    stats_calc_h()
    drain(); stats_write_h(); a(W0); a(L0); stamp(8)
    BAR()
    T0, T1, T2 = OPT["T0"], OPT["T1"], OPT["T2"]
    budget(T0+2); drain()
    signal(F_B4, s_mi)
    budget(T1-T0-1); bar(1)
    poll(F_B4, s_mi, s_nj, 14, bar); stamp(9)
    a(f"v_lshlrev_b32 {vr(vt[2])}, 4, {vr(vl)}")
    a(f"s_lshl_b32 {sr(st[0])}, {sr(s_mi)}, 10")
    a(f"s_add_u32 {sr(st[0])}, {sr(st[0])}, {A_ZST}")
    a(f"s_mov_b32 m0, {M_ZS}")
    a(f"buffer_load_dwordx4 {vr(vt[2])}, {sr(sAcc,4)}, {sr(st[0])} offen sc1 lds")
    drain(); a(W0); stamp(10)
    BAR()
    budget(T2-T1); drain()
    signal(F_B5, s_n7); touch(".code_c4")
    budget(14-T2)
    poll(F_C4, s_n7, s_mi, 32, bar)
    until(2)
    cs_get(A_CIN, s_n7, M_CS+512)
    drain(); a(W0)
    BAR()
    if OPT.get("hmid"):
        budget(OPT["hmid"]); drain(); signal(F_B4, s_mi)
    budget(34-OPT.get("hmid", 0)); until(7); touch(".code_c5"); drain()
    helper_ret('X')
    budget(29); drain()
    stamp_out(); tb_out()

def compute():
    global v_ones
    compute_common()
    s_n1, s_n2 = S.alloc(), S.alloc()
    sO = S.alloc(4, 4); sZ = S.alloc(4, 4); sY = S.alloc(4, 4); s_so = S.alloc()
    v_ones = V.alloc(4, 4)
    T = V.alloc(64, 4); acc = V.alloc(64, 4); acc2 = V.alloc(64, 4); hres = V.alloc(16, 4)
    wphi = V.alloc(8, 4); rs = V.alloc(8, 2); scp = V.alloc(2, 2)
    adr = V.alloc(6); vo = V.alloc(2); va = V.alloc(4)
    assert V.n <= 254
    W0 = "s_waitcnt vmcnt(0)"; L0 = "s_waitcnt lgkmcnt(0)"
    def zero(b, n):
        for i in range(0, n, 2): a(f"v_mov_b64 {vr(b+i,2)}, 0")
    def lds_addr(dst, lane, sh, wave, wsh, base):
        a(f"s_lshl_b32 {sr(st[0])}, {sr(wave)}, {wsh}")
        a(f"s_add_u32 {sr(st[0])}, {sr(st[0])}, {base}")
        a(f"v_lshl_add_u32 {vr(dst)}, {vr(lane)}, {sh}, {sr(st[0])}")
    def img_srd(base, NTt, kt):
        a(f"s_mul_i32 {sr(st[0])}, {sr(s_mi)}, {NTt}")
        a(f"s_add_u32 {sr(st[0])}, {sr(st[0])}, {sr(kt)}")
        a(f"s_lshl_b32 {sr(st[0])}, {sr(st[0])}, 14")
        srd("ws", base, 16384, soff=st[0], d=sO)
    def read_rs16(base, dst):
        lds_addr(vt[0], v_r16, 2, s_wm, 8, base)
        for i in range(4): a(f"ds_read2_b32 {vr(dst+2*i,2)}, {vr(vt[0])} offset0:{16*i} offset1:{128+16*i}")
    def read_cs16(base, dst):
        lds_addr(vt[1], v_g, 4, s_wn, 8, base)
        for t in range(4): a(f"ds_read_b128 {vr(dst+4*t,4)}, {vr(vt[1])} offset:{t*64}")
    def read_g(dst):
        lds_addr(vt[0], v_r16, 4, s_wm, 10, M_G)
        for i in range(4): a(f"ds_read_b128 {vr(dst+4*i,4)}, {vr(vt[0])} offset:{256*i}")
    def row_stats(pk, npk, base):
        s12 = T+48
        for e in range(npk):
            for i in range(4):
                o = pk+npk*i+e
                a(f"v_dot2_f32_bf16 {vr(s12+2*i)}, {vr(o)}, {vr(v_ones)}, {'0' if e == 0 else vr(s12+2*i)}")
                a(f"v_dot2_f32_bf16 {vr(s12+2*i+1)}, {vr(o)}, {vr(o)}, {'0' if e == 0 else vr(s12+2*i+1)}")
        a(f"s_lshl_b32 {sr(st[0])}, {sr(s_mi)}, 10")
        a(f"s_lshl_b32 {sr(st[1])}, {sr(s_wm)}, 8")
        a(f"s_add_u32 {sr(st[0])}, {sr(st[0])}, {sr(st[1])}")
        if base: a(f"s_add_u32 {sr(st[0])}, {sr(st[0])}, {base}")
        a(f"v_lshlrev_b32 {vr(vt[0])}, 2, {vr(v_r)}")
        a(f"v_lshl_add_u32 {vr(vt[0])}, {vr(v_hf)}, 9, {vr(vt[0])}")
        quad_reduce("v_add_f32", s12)
        for p in range(2): a(f"buffer_atomic_add_f32 {vr(s12+4*p)}, {vr(vt[0])}, {sr(sAcc,4)}, {sr(st[0])} offen offset:{128*p} sc1")
    def swap16(p):
        a(f"v_permlane16_swap_b32 {vr(p)}, {vr(p+2)}")
        a(f"v_permlane16_swap_b32 {vr(p+1)}, {vr(p+3)}")
    def packn(src, dst, n):
        for i in range(n): a(f"v_cvt_pk_bf16_f32 {vr(dst+i)}, {vr(src+2*i)}, {vr(src+2*i+1)}")
    def unpackn(p, dst, n):
        for i in range(n):
            a(f"v_lshlrev_b32 {vr(dst+2*i)}, 16, {vr(p+i)}")
            a(f"v_and_b32 {vr(dst+2*i+1)}, 0xffff0000, {vr(p+i)}")

    for i in range(4): a(f"v_mov_b32 {vr(v_ones+i)}, 0x3f803f80")
    ad = Addr(P1K, adr, adr+2, [T]); ad.init()
    zero(acc, 64)
    a(f"s_xor_b32 {sr(st[1])}, {sr(s_mi)}, {sr(s_nj)}")
    NPK = special_pos(P1K, st[1], s_n1)
    a(f"s_sub_u32 {sr(s_n2)}, {NPK}, {sr(s_n1)}")
    dots = acc2
    a(f"""s_lshl3_add_u32 {sr(st[0])}, {sr(s_mi)}, {sr(s_w)}
          s_lshl_b32 {sr(st[0])}, {sr(st[0])}, 7
          s_add_u32 {sr(st[0])}, {sr(st[0])}, {A_XST}
          v_lshl_add_u32 {vr(dots+6)}, {vr(v_r)}, 2, {sr(st[0])}
          v_lshl_add_u32 {vr(dots+6)}, {vr(v_hf)}, 9, {vr(dots+6)}
          s_lshl2_add_u32 {sr(st[0])}, {sr(s_nj)}, {sr(s_w)}
          s_lshl_b32 {sr(st[0])}, {sr(st[0])}, 7
          s_add_u32 {sr(st[0])}, {sr(st[0])}, {A_CKV}
          v_lshl_add_u32 {vr(dots+7)}, {vr(v_r)}, 2, {sr(st[0])}
          v_lshl_add_u32 {vr(dots+7)}, {vr(v_hf)}, 20, {vr(dots+7)}""")
    ident = hres; aR16, aR32, aG, aW, aK, aZ = [hres+8+i for i in range(6)]
    zero(ident, 6)
    a(f"v_lshlrev_b32 {vr(vt[2])}, 2, {vr(v_g)}")
    a(f"v_sub_u32 {vr(vt[2])}, {vr(v_r16)}, {vr(vt[2])}")
    a(f"v_mov_b32 {vr(vt[3])}, 0x3f80")
    a(f"v_mov_b32 {vr(vt[4])}, 0x3f800000")
    for d in range(4):
        a(f"v_cmp_eq_u32 vcc, {d}, {vr(vt[2])}")
        a(f"v_cndmask_b32 {vr(ident+2+(d>>1))}, {vr(ident+2+(d>>1))}, {vr(vt[3+(d&1)])}, vcc")
    lds_addr(aR16, v_r16, 2, s_wm, 8, M_RS)
    lds_addr(aR32, v_r, 2, s_wm, 8, M_RS)
    lds_addr(aG, v_g, 4, s_wm, 8, M_RS)
    a(f"""v_lshrrev_b32 {vr(vt[2])}, 2, {vr(vl)}
          v_and_b32 {vr(vt[3])}, 3, {vr(vl)}
          v_lshlrev_b32 {vr(vt[3])}, 3, {vr(vt[3])}
          v_lshl_add_u32 {vr(vt[2])}, {vr(vt[2])}, 6, {vr(vt[3])}""")
    lds_addr(aW, vt[2], 0, s_wn, 11, M_WPH)
    lds_addr(vo, v_g, 4, s_wn, 7, M_CS)
    lds_addr(vo+1, v_r16, 2, s_wn, 7, M_CS+256)
    a(f"""s_lshl1_add_u32 {sr(st[0])}, {sr(s_mi)}, {sr(s_wm)}
          s_lshl_b32 {sr(st[0])}, {sr(st[0])}, 9
          v_lshl_add_u32 {vr(aK)}, {vr(v_r)}, 4, {sr(st[0])}
          v_lshl_add_u32 {vr(aK)}, {vr(v_hf)}, 14, {vr(aK)}
          s_lshl1_add_u32 {sr(st[3])}, {sr(s_nj)}, {sr(s_wn)}
          s_lshl_b32 {sr(st[0])}, {sr(st[3])}, 8
          s_add_u32 {sr(st[0])}, {sr(st[0])}, {A_Z}
          v_and_b32 {vr(vt[2])}, 0x23, {vr(vl)}
          v_and_b32 {vr(vt[3])}, 12, {vr(vl)}
          v_lshl_or_b32 {vr(vt[2])}, {vr(vt[3])}, 1, {vr(vt[2])}
          v_bfe_u32 {vr(vt[3])}, {vr(vl)}, 4, 1
          v_lshl_or_b32 {vr(vt[2])}, {vr(vt[3])}, 2, {vr(vt[2])}
          v_lshl_add_u32 {vr(aZ)}, {vr(vt[2])}, 2, {sr(st[0])}""")
    a(L0); common_srds()
    a(f"s_lshl_b32 {sr(st[0])}, {sr(st[3])}, 17")
    srd("ws", WS["KVP"], 131072, soff=st[0], d=sO)
    a(f"s_lshl_b32 {sr(st[0])}, {sr(s_mi)}, 18")
    srd("x", 0, 128*2048, soff=st[0], d=sZ)
    def warm(e):
        Lw = lab("wu")
        for w in range(4):
            Ln = lab("wn")
            if w < 3: a(f"s_cmp_lg_u32 {sr(s_w)}, {w}"); a(f"s_cbranch_scc1 {Ln}")
            for k in range(w, 12, 4): a(f"s_call_b64 {sr(s_ret,2)}, .PAD{e}_{k}")
            if w < 3: a(f"s_branch {Lw}"); a(f"{Ln}:")
        a(f"{Lw}:")
    warm(0)
    stamp(1)
    sw = [0, 0, 1, 1]
    ad.first(); stamp(2)
    ad.loop(0, acc, cnt=s_n1, swap=sw)
    ad.tile(acc, swap=sw, dots=(None if OPT.get('abl', 0) & 1 else dots))
    ad.loop(0, acc, cnt=s_n2, swap=sw)
    for q in range(2): a(f"v_permlane32_swap_b32 {vr(dots+2*q)}, {vr(dots+2*q+1)}")
    a(f"v_permlane16_swap_b32 {vr(dots+4)}, {vr(dots+5)}")
    for q in range(3): a(f"v_add_f32 {vr(dots+2*q)}, {vr(dots+2*q)}, {vr(dots+2*q+1)}")
    a(f"v_mov_b32 {vr(dots+5)}, {vr(dots+4)}")
    a(f"v_permlane16_swap_b32 {vr(dots)}, {vr(dots+2)}")
    a(f"v_permlane32_swap_b32 {vr(dots+4)}, {vr(dots+5)}")
    a(f"v_add_f32 {vr(dots)}, {vr(dots)}, {vr(dots+2)}")
    a(f"v_add_f32 {vr(dots+4)}, {vr(dots+4)}, {vr(dots+5)}")
    if not OPT.get('abl', 0) & 2:
        a(f"buffer_atomic_add_f32 {vr(dots)}, {vr(dots+6)}, {sr(sAcc,4)}, 0 offen sc1")
        a(f"buffer_atomic_add_f32 {vr(dots+4)}, {vr(dots+7)}, {sr(sAcc,4)}, 0 offen sc1")
    KD = OPT.get("kd", 1)
    ad.loop(KD, acc, swap=sw); ad.loop(14-KD-NPK, acc, swap=sw, vm0=True)
    csk, csv, x8, rsv, vpk = acc2, acc2+8, acc2+10, acc2+20, acc2+20
    rd = [f"ds_read2_b32 {vr(rs+2*i,2)}, {vr(aR16)} offset0:{16*i} offset1:{128+16*i}" for i in range(4)]
    rd += [f"ds_read_b128 {vr(csk+4*t,4)}, {vr(vo)} offset:{64*t}" for t in range(2)]
    rd += [f"ds_read_b64_tr_b16 {vr(wphi+4*u+2*h,2)}, {vr(aW)} offset:{1024*h+32*u}" for u in range(2) for h in range(2)]
    rd += [f"ds_read2_b32 {vr(scp,2)}, {vr(aR32)} offset0:0 offset1:32", f"ds_read2_b32 {vr(csv,2)}, {vr(vo+1)} offset0:0 offset1:16"]
    rd += [f"ds_read_b128 {vr(rsv+8*i+4*h,4)}, {vr(aG)} offset:{64*i+512*h}" for i in range(4) for h in range(2)]
    pairs = lambda l: [l[i:i+2] for i in range(0, len(l), 2)]
    a(".code_ck:")
    ad.tile(acc, swap=sw, last=True, tail=pairs(rd)); stamp(3)
    a(L0)
    Lg, em = T, T+32
    def logits(stride):
        for i in range(4):
            packn(acc+stride*i, acc+stride*i, 4)
        for i in range(4):
            for u in range(2): a(f"{MF16} {vr(Lg+8*i+4*u,4)}, {vr(wphi+4*u,4)}, {vr(acc+stride*i,4)}, 0")
    for i in range(4): center(acc+16*i, csk, rs+2*i, 8)
    logits(16)
    for i in range(4): a(f"v_mul_f32 {vr(rs+2*i)}, {f32(LOG2E)}, {vr(rs+2*i)}")
    for q in range(2): a(f"v_mul_f32 {vr(scp+q)}, {f32(LOG2E)}, {vr(scp+q)}")
    for i in range(4):
        for t in range(2):
            for e in range(0, 4, 2):
                x = acc+16*i+8+4*t+e
                a(f"v_pk_fma_f32 {vr(x,2)}, {vr(rsv+8*i+4+e,2)}, {vr(csv,2)}, {vr(x,2)} op_sel:[0,{t},0] op_sel_hi:[1,{t},1]")
        for t in range(2):
            for e in range(0, 4, 2):
                x = acc+16*i+8+4*t+e
                a(f"v_pk_mul_f32 {vr(x,2)}, {vr(x,2)}, {vr(rsv+8*i+e,2)}")
    for i in range(4):
        for t in range(2): packn(acc+16*i+8+4*t, vpk+((i>>1)*2+t)*4+2*(i&1), 2)
    exps(Lg, em, x8, rs, scp)
    w8 = acc2+40
    for i in range(4):
        for sg, src in enumerate((Lg, em)):
            d = w8+4*i+2*sg
            a(f"v_pk_add_f32 {vr(d,2)}, {vr(src+8*i,2)}, {vr(src+8*i+2,2)}")
    for e in (4, 6):
        for i in range(4):
            for sg, src in enumerate((Lg, em)):
                d = w8+4*i+2*sg
                a(f"v_pk_add_f32 {vr(d,2)}, {vr(d,2)}, {vr(src+8*i+e,2)}")
    for i in range(4):
        for sg in range(2): a(f"v_add_f32 {vr(x8+2*i+sg)}, {vr(w8+4*i+2*sg)}, {vr(w8+4*i+2*sg+1)}")
    quad_reduce("v_add_f32", x8)
    for q in range(2): a(f"v_rcp_f32 {vr(x8+4*q)}, {vr(x8+4*q)}")
    quad_bcast(x8)
    for i in range(4):
        for sg, src in enumerate((Lg, em)):
            for e in range(0, 8, 2): a(f"v_pk_mul_f32 {vr(src+8*i+e,2)}, {vr(src+8*i+e,2)}, {vr(x8+2*i,2)} op_sel:[0,{sg}] op_sel_hi:[1,{sg}]")
    kvp, zs = acc+32, acc2+40
    cv = lambda src, dst, n: [f"v_cvt_pk_bf16_f32 {vr(dst+i)}, {vr(src+2*i)}, {vr(src+2*i+1)}" for i in range(n)]
    def weave(mm, vv):
        for k, m in enumerate(mm):
            a(m)
            for x in vv[len(vv)*k//len(mm):len(vv)*(k+1)//len(mm)]: a(x)
    phi = lambda sg: [x for i in range(4) for x in cv((Lg, em)[sg]+8*i, acc+8*i+4*sg, 4)]
    trn = lambda sg: [f"{MF16} {vr(T+((sg*2+u)*4+i)*4,4)}, {vr(acc+8*i+4*sg,4)}, {vr(ident+2-2*u,4)}, 0" for u in range(2) for i in range(4)]
    tpk = lambda sg: [x for u in range(2) for p in range(2) for x in cv(T+16*(2*sg+u)+8*p, T+16*(2*sg+u)+4*p, 4)]
    def kvm(sg):
        out = []
        for u in range(2):
            q = 2*sg+u
            for p in range(2):
                for t in range(2):
                    d = kvp+((sg*2+t)*2+u)*4
                    out.append(f"{MF16} {vr(d,4)}, {vr(T+16*q+4*p,4)}, {vr(vpk+(p*2+t)*4,4)}, {'0' if p == 0 else vr(d,4)}")
        return out
    zm = [f"{MF16} {vr(zs+4*q,4)}, {vr(v_ones,4)}, {vr(T+16*q+4*p,4)}, {'0' if p == 0 else vr(zs+4*q,4)}" for q in range(4) for p in range(2)]
    sto = lambda j: cv(kvp+8*j, kvp+8*j, 4) + [f"buffer_store_dwordx4 {vr(kvp+8*j,4)}, {vr(aK)}, {sr(sO,4)}, {sr(st[0])} offen sc1", f"s_add_u32 {sr(st[0])}, {sr(st[0])}, 32768"]
    for x in phi(0): a(x)
    weave(trn(0), phi(1)); weave(trn(1), tpk(0)); weave(kvm(0), tpk(1))
    a(f"s_mov_b32 {sr(st[0])}, 0")
    ad = Addr(P1Q, adr, adr+2, [T, acc2])
    weave(kvm(1), [f"s_mov_b32 {sr(s_ra)}, 0", f"s_mov_b32 {sr(s_rw)}, 0"] + ad.upd()[1] + ad.upd()[2] + sto(0) + sto(1))
    weave(zm, ["s_nop 0"]*4 + sto(2) + sto(3))
    a(f"v_mov_b32 {vr(vt[0])}, {vr(zs)}")
    for q in range(1, 4):
        a(f"v_cmp_le_u32 vcc, {16*q}, {vr(vl)}")
        a(f"v_cndmask_b32 {vr(vt[0])}, {vr(vt[0])}, {vr(zs+4*q)}, vcc")
    a(f"buffer_atomic_add_f32 {vr(vt[0])}, {vr(aZ)}, {sr(sAcc,4)}, 0 offen sc1")
    for _ in range(OPT.get("idleQ", 0)): a("s_sleep 32")
    stamp(4)
    TQ = OPT["TQ"]; assert TQ % 2 == 0 and TQ >= 2
    ad.first(); stamp(5)
    ad.tile(acc, zero=True, b=0); ad.tile(acc, b=1)
    ad.loop(TQ-2, acc); ad.loop(14-TQ, acc, vm0=True)
    csq, zf, x8 = acc+32, acc+40, acc+48
    rd = [f"ds_read_b128 {vr(csq+4*t,4)}, {vr(vo)} offset:{512+64*t}" for t in range(2)]
    rd += [f"ds_read_b128 {vr(zf+4*sg,4)}, {vr(vo)} offset:{M_ZF-M_CS+64*sg}" for sg in range(2)]
    a(".code_cq:")
    ad.tile(acc, b=0); ad.tile(acc, b=1, last=True, tail=rd); stamp(6)
    def row_addr():
        a(f"""s_lshl_b32 {sr(st[0])}, {sr(s_wm)}, 17
              s_lshl1_add_u32 {sr(st[1])}, {sr(s_nj)}, {sr(s_wn)}
              s_lshl_b32 {sr(st[1])}, {sr(st[1])}, 6
              s_add_u32 {sr(st[0])}, {sr(st[0])}, {sr(st[1])}
              v_lshl_add_u32 {vr(vo)}, {vr(v_r16)}, 11, {sr(st[0])}
              v_lshl_add_u32 {vr(vo)}, {vr(v_hf)}, 4, {vr(vo)}
              v_and_b32 {vr(vt[0])}, 1, {vr(v_g)}
              v_lshl_add_u32 {vr(vo)}, {vr(vt[0])}, 5, {vr(vo)}""")
    a(L0)
    for i in range(4): center(acc+8*i, csq, rs+2*i, 8)
    logits(8)
    row_addr()
    for i in range(4):
        a(f"s_mov_b32 {sr(st[0])}, {i*32768}")
        a(f"buffer_load_dwordx4 {vr(hres+4*i,4)}, {vr(vo)}, {sr(sZ,4)}, {sr(st[0])} offen")
    img_srd(WS["O"], 16, s_nj)
    a(f"""s_lshl3_add_u32 {sr(st[0])}, {sr(s_wm)}, {sr(s_wn)}
          s_lshl_b32 {sr(st[0])}, {sr(st[0])}, 10
          v_lshl_add_u32 {vr(vo+1)}, {vr(vl)}, 4, {sr(st[0])}
          s_mov_b32 {sr(st[2])}, 4096""")
    lds_addr(vt[4], vl, 4, s_wn, 12, M_KVF)
    exps(Lg, em, x8, rs, scp)
    eq = acc
    Sm, Dn = acc2, acc2+32
    for i in range(4):
        for sg, src in enumerate((Lg, em)): packn(src+8*i, eq+8*i+4*sg, 4)
        for sg in range(2):
            a(f"{MF16} {vr(Sm+8*i+4*sg,4)}, {vr(v_ones,4)}, {vr(eq+8*i+4*sg,4)}, 0")
            a(f"{MF16} {vr(Dn+8*i+4*sg,4)}, {vr(zf+4*sg,4)}, {vr(eq+8*i+4*sg,4)}, 0")
    for i in range(4):
        for sg in range(2): a(f"v_rcp_f32 {vr(x8+2*i+sg)}, {vr(Sm+8*i+4*sg)}")
    for i in range(4): a(f"v_fmaak_f32 {vr(Dn+8*i)}, {vr(Dn+8*i)}, {vr(x8+2*i)}, {f32(1e-6)}")
    for i in range(4): a(f"v_fmac_f32 {vr(Dn+8*i)}, {vr(Dn+8*i+4)}, {vr(x8+2*i+1)}")
    for i in range(4): a(f"v_rcp_f32 {vr(Dn+8*i)}, {vr(Dn+8*i)}")
    for i in range(4): a(f"v_pk_mul_f32 {vr(x8+2*i,2)}, {vr(x8+2*i,2)}, {vr(Dn+8*i,2)} op_sel_hi:[1,0]")
    stamp(7)
    kvf = acc+32
    a("s_barrier")
    for j in range(4): a(f"ds_read_b128 {vr(kvf+4*j,4)}, {vr(vt[4])} offset:{j*1024}")
    a(L0); stamp(8)
    for i in range(4):
        for sg in range(2):
            for t in range(2): a(f"{MF16} {vr(T+16*i+8*sg+4*t,4)}, {vr(kvf+(sg*2+t)*4,4)}, {vr(eq+8*i+4*sg,4)}, 0")
    for i in range(4):
        n = T+16*i
        for e in range(0, 8, 2): a(f"v_pk_mul_f32 {vr(n+e,2)}, {vr(n+e,2)}, {vr(x8+2*i,2)} op_sel_hi:[1,0]")
        for e in range(0, 8, 2): a(f"v_pk_fma_f32 {vr(n+e,2)}, {vr(n+8+e,2)}, {vr(x8+2*i,2)}, {vr(n+e,2)} op_sel:[0,1,0] op_sel_hi:[1,1,1]")
        packn(n, n, 4)
        a(f"buffer_store_dwordx4 {vr(n,4)}, {vr(vo+1)}, {sr(sO,4)}, {sr(st[2]) if i >= 2 else 0} offen offset:{(i&1)*2048} sc1")
    handoff(F_B2); stamp(9)
    a.L.append("@PAGE")
    ad = Addr(P2, adr, adr+4, [T, acc2]); ad.init()
    for i in range(4): swap16(hres+4*i)
    unpackn(hres, acc, 16)
    img_srd(WS["H"], 16, s_nj)
    a(f"s_mov_b32 {sr(st[2])}, 4096")
    warm(1); a.L.append("@EPOCH1")
    ad.first(); stamp(10)
    fin2 = lambda i, w: cv(acc+8*i, hres+4*i, 4) + [f"buffer_store_dwordx4 {vr(hres+4*i,4)}, {vr(vo+1)}, {sr(sO,4)}, {sr(st[2]) if i >= 2 else 0} offen offset:{(i&1)*2048} sc1"]
    ad.loop(14, acc); ad.tile(acc, b=0)
    if OPT.get("fin", 7) & 1: ad.tile(acc, b=1, last=True, fin=fin2); stamp(11)
    else:
        ad.tile(acc, b=1, last=True); stamp(11)
        for i in range(4):
            for x in fin2(i, False): a(x)
    if not OPT.get("hst", 1): row_stats(hres, 4, A_HST)
    handoff(F_B3); stamp(12)
    if OPT.get("hst", 1):
        row_stats(hres, 4, A_HST); arrive(F_X, s_mi)
    helper_branch()
    a.L.append("@PAGE")
    ad = Addr(P3, adr, adr+2, [T]); ad.init()
    a(f"s_lshl1_add_u32 {sr(st[0])}, {sr(s_mi)}, {sr(s_wm)}")
    a(f"s_lshl_b32 {sr(st[0])}, {sr(st[0])}, 7")
    srd("b_sp", 0, 128, soff=st[0], d=sZ)
    a(f"v_lshlrev_b32 {vr(vt[0])}, 1, {vr(v_r16)}")
    assert rs == wphi+8
    braw = [wphi, wphi+4, scp, scp+1]
    for i in range(4): a(f"buffer_load_ushort {vr(braw[i])}, {vr(vt[0])}, {sr(sZ,4)}, 0 offen offset:{i*32}")
    zero(acc2, 64)
    aG, aC, aZ, aS = va, va+1, va+2, va+3
    lds_addr(aG, v_r16, 4, s_wm, 10, M_G); lds_addr(aC, v_g, 4, s_wn, 8, M_CS); lds_addr(aZ, v_r16, 2, s_wm, 8, M_ZS)
    a(f"""s_lshl2_add_u32 {sr(st[0])}, {sr(s_mi)}, {sr(s_wm)}
          s_lshl_b32 {sr(st[0])}, {sr(st[0])}, 8
          s_add_u32 {sr(st[0])}, {sr(st[0])}, {A_ZST}
          v_lshl_add_u32 {vr(aS)}, {vr(v_r)}, 2, {sr(st[0])}
          v_lshl_add_u32 {vr(aS)}, {vr(v_hf)}, 9, {vr(aS)}
          s_lshl1_add_u32 {sr(st[1])}, {sr(s_mi)}, {sr(s_wm)}
          s_lshl_b32 {sr(st[0])}, {sr(s_n7)}, 5
          s_add_u32 {sr(st[0])}, {sr(st[0])}, {sr(st[1])}
          s_lshl1_add_u32 {sr(st[0])}, {sr(st[0])}, {sr(s_wn)}
          s_lshl_b32 {sr(st[0])}, {sr(st[0])}, 13""")
    srd("ws", WS["Z2N"], 8192, soff=st[0], d=sY)
    a(f"""v_lshlrev_b32 {vr(vo)}, 2, {vr(v_hf)}
          v_xor_b32 {vr(vo)}, {vr(vo)}, {vr(v_r16)}
          v_lshlrev_b32 {vr(vo)}, 4, {vr(vo)}
          v_lshl_add_u32 {vr(vo)}, {vr(v_hf)}, 10, {vr(vo)}
          v_and_b32 {vr(vt[2])}, 1, {vr(v_g)}
          v_lshl_add_u32 {vr(vo)}, {vr(vt[2])}, 11, {vr(vo)}
          s_mov_b32 {sr(s_so)}, 4096
          s_lshl1_add_u32 {sr(st[1])}, {sr(s_n7)}, {sr(s_wn)}""")
    img_srd(WS["P"], 28, st[1])
    a(f"s_lshl_b32 {sr(st[0])}, {sr(s_wm)}, 13")
    a(f"v_lshl_add_u32 {vr(vo+1)}, {vr(vl)}, 4, {sr(st[0])}")
    ad.first(); stamp(13)
    cs = T; gq = T+16; u = T+32; s12 = T+48; z2 = acc2
    gc = lambda off: [f"ds_read_b128 {vr(cs+4*t,4)}, {vr(aC)} offset:{off+t*64}" for t in range(4)] + [f"ds_read_b128 {vr(gq+4*i,4)}, {vr(aG)} offset:{256*i}" for i in range(4)]
    ad4 = Addr(P4, adr, adr+2, [T])
    ad.loop(15, acc2); a(".code_c3:"); ad.tile(acc2, last=True, tail=["s_nop 0"] + gc(0) + [[f"s_mov_b32 {sr(s_ra)}, 0", f"s_mov_b32 {sr(s_rw)}, 0"]] + ad4.upd()[1] + ad4.upd()[2]); stamp(14)
    ad = ad4
    a(L0)
    for i in range(4):
        x = z2+16*i
        gelu16(x, cs, gq+4*i, u)
        a(f"v_pk_add_f32 {vr(u,2)}, {vr(x,2)}, {vr(x+2,2)}")
        a(f"v_pk_mul_f32 {vr(u+2,2)}, {vr(x,2)}, {vr(x,2)}")
        for e in range(2, 16, 2):
            if e > 2: a(f"v_pk_add_f32 {vr(u,2)}, {vr(u,2)}, {vr(x+e,2)}")
            a(f"v_pk_fma_f32 {vr(u+2,2)}, {vr(x+e,2)}, {vr(x+e,2)}, {vr(u+2,2)}")
        a(f"v_add_f32 {vr(s12+2*i)}, {vr(u)}, {vr(u+1)}")
        a(f"v_add_f32 {vr(s12+2*i+1)}, {vr(u+2)}, {vr(u+3)}")
    quad_reduce("v_add_f32", s12)
    for p in range(2): a(f"buffer_atomic_add_f32 {vr(s12+4*p)}, {vr(aS)}, {sr(sAcc,4)}, 0 offen offset:{128*p} sc1")
    stamp(15)
    T0, T1, T2 = OPT["T0"], OPT["T1"], OPT["T2"]
    zrs = rs
    ad.first(); stamp(16)
    ad.tile(acc, zero=True)
    ad.loop(T0-1, acc); ad.loop(T1-T0, acc, vm0=True)
    ad.tile(acc, tail=[('Z', f"ds_read2_b32 {vr(zrs+2*i,2)}, {vr(aZ)} offset0:{16*i} offset1:{128+16*i}") for i in range(4)])
    NW = OPT.get("nw", 0)
    keep = a.L; a.L = []
    for i in range(4): var_eps(zrs+2*i, zrs+2*i+1, 1792)
    for i in range(4): a(f"v_rsq_f32 {vr(zrs+2*i+1)}, {vr(zrs+2*i+1)}")
    for i in range(4): a(f"v_mul_f32 {vr(zrs+2*i)}, {vr(zrs+2*i)}, {vr(zrs+2*i+1)}")
    for i in range(4):
        o = z2+16*i
        if NW:
            for e in range(16): a(f"v_fma_f32 {vr(o+e)}, {vr(o+e)}, {vr(zrs+2*i+1)}, {vr(zrs+2*i)}")
        else:
            for e in range(0, 16, 2):
                a(f"v_pk_fma_f32 {vr(o+e,2)}, {vr(o+e,2)}, {vr(zrs+2*i,2)}, {vr(zrs+2*i,2)} op_sel:[0,1,0] op_sel_hi:[1,1,0]")
        pack16(o, o)
        for m in range(2): swap16(o+4*m)
        for m in range(2):
            a(f"buffer_store_dwordx4 {vr(o+4*m,4)}, {vr(vo)}, {sr(sY,4)}, {sr(s_so) if m else 0} offen offset:{i*256} sc1")
    norm = [x.strip() for x in a.L]; a.L = keep
    a(L0)
    if NW:
        for t in range(NW): ad.tile(acc, weave=norm[len(norm)*t//NW:len(norm)*(t+1)//NW])
    else:
        for x in norm: a(x)
    stamp(17)
    ad.loop(T2-T1-1-NW, acc); ad.loop(15-T2, acc, vm0=True)
    a(".code_c4:")
    ad.tile(acc, last=True, tail=["s_nop 0"] + gc(512) + [f"v_lshlrev_b32 {vr(wphi+4*i+e)}, 16, {vr(braw[i])}" for i in range(4) for e in (3, 2, 1, 0)]); stamp(18)
    ad = Addr(P5, adr, adr+2, [T]); ad.init()
    a(L0)
    z1 = acc
    for i in range(4): gelu16(z1+16*i, cs, gq+4*i, u)
    for _ in range(OPT.get("idle5", 0)): a("s_sleep 32")
    stamp(19)
    ad.first(); stamp(20)
    ad.tile(acc2, cin=wphi); ad.loop(30, acc2); a(".code_c5:"); pass
    def fin5(i, woven):
        x = acc2+16*i; out = []
        for m in range(2):
            if woven: out += [f"v_mul_f32 {vr(x+e)}, {vr(x+e)}, {vr(z1+16*i+e)}" for e in range(8*m, 8*m+8)]
            else: out += [f"v_pk_mul_f32 {vr(x+e,2)}, {vr(x+e,2)}, {vr(z1+16*i+e,2)}" for e in range(8*m, 8*m+8, 2)]
            out += cv(x+8*m, x+8*m, 4)
            out += [f"buffer_store_dwordx4 {vr(x+8*m,4)}, {vr(vo+1)}, {sr(sO,4)}, {sr(s_so) if i >= 2 else 0} offen offset:{(i&1)*2048+m*1024} sc1"]
        return out
    if OPT.get("fin", 7) & 2: ad.tile(acc2, last=True, fin=lambda i, w: fin5(i, w and i == 0), rate=OPT.get("rate5", 3)); stamp(21)
    else:
        ad.tile(acc2, last=True); stamp(21)
        for i in range(4):
            for x in fin5(i, False): a(x)
    handoff(F_B6); stamp(22)
    helper_ret('C')
    a.L.append("@PAGE")
    ad = Addr(P6, adr, adr+4, [T, acc2]); ad.init()
    unpackn(hres, acc, 16)
    a(f"s_lshl_b32 {sr(st[0])}, {sr(s_mi)}, 18")
    srd("out", 0, 128*2048, soff=st[0], d=sO)
    row_addr()
    ad.first(); stamp(23)
    opol = ['', 'sc1', 'nt', 'sc0 sc1'][OPT.get('opol', 0)]
    fin6 = lambda i, w: cv(acc+8*i, hres+4*i, 4) + [f"s_mov_b32 {sr(st[0])}, {i*32768}", f"v_permlane16_swap_b32 {vr(hres+4*i)}, {vr(hres+4*i+2)}",
        f"v_permlane16_swap_b32 {vr(hres+4*i+1)}, {vr(hres+4*i+3)}", f"buffer_store_dwordx4 {vr(hres+4*i,4)}, {vr(vo)}, {sr(sO,4)}, {sr(st[0])} offen {opol}"]
    ad.loop(26, acc); ad.tile(acc, b=0)
    if OPT.get("fin", 7) & 4: ad.tile(acc, b=1, last=True, fin=fin6); stamp(24)
    else:
        ad.tile(acc, b=1, last=True); stamp(24)
        for i in range(4):
            for x in fin6(i, False): a(x)
    if OPT["stamp"]: a(W0)
    stamp(25)
    stamp_out()
    if OPT.get("amp"):
        k0, k1 = divmod(OPT["amp"], 100)
        L = lab("am"); L2 = lab("am2")
        a(f"s_cmp_lg_u32 s2, 9"); a(f"s_cbranch_scc1 {L}")
        a(f"v_readlane_b32 {sr(st[0])}, {vr(v_stamp)}, {k0}")
        a(f"v_readlane_b32 {sr(st[1])}, {vr(v_stamp)}, {k1}")
        a(f"v_readlane_b32 {sr(st[2])}, {vr(v_stamp)}, 25")
        a(f"s_sub_u32 {sr(st[1])}, {sr(st[1])}, {sr(st[0])}")
        a(f"s_lshl_b32 {sr(st[1])}, {sr(st[1])}, 2")
        a(f"{L2}:")
        a(f"s_memrealtime {sr(s_tm,2)}"); a("s_waitcnt lgkmcnt(0)")
        a(f"s_sub_u32 {sr(st[0])}, {sr(s_tm)}, {sr(st[2])}")
        a(f"s_cmp_lt_u32 {sr(st[0])}, {sr(st[1])}"); a(f"s_cbranch_scc1 {L2}")
        a(f"{L}:")
    if OPT.get("dbgst"):
        L = lab("ds")
        a(f"s_cmp_lg_u32 s2, {OPT['dbgst']-1}"); a(f"s_cbranch_scc1 {L}"); a(f"s_cmp_lg_u32 {sr(s_w)}, 0"); a(f"s_cbranch_scc1 {L}")
        a(f"v_readlane_b32 {sr(st[0])}, {vr(v_stamp)}, 0")
        for i, k in enumerate((1, 2, 3, 4, 6, 8, 10, 11, 13, 14, 16, 18, 20, 21, 23, 24)):
            a(f"v_readlane_b32 {sr(st[1])}, {vr(v_stamp)}, {k}")
            a(f"s_sub_u32 {sr(st[1])}, {sr(st[1])}, {sr(st[0])}")
            a(f"v_writelane_b32 {vr(vt[1])}, {sr(st[1])}, {i}")
        a(f"v_lshlrev_b32 {vr(vt[0])}, 2, {vr(vl)}")
        a("s_mov_b64 exec, 0xffff")
        a(f"global_store_dword {vr(vt[0])}, {vr(vt[1])}, {sr(P['dbg'],2)}")
        a(f"{L}:")

if __name__ == "__main__":
    out = sys.argv[1]
    for arg in sys.argv[2:]:
        k, _, v = arg.partition("=")
        OPT[k] = int(v) if v else True
    for k in WS:
        if k != "STAMP": WS[k] += OPT.get("wsb", 0)*MB
    txt = build()
    open(out, "w").write(txt)
    print("vgpr hi", V.hi, "sgpr hi", S.hi, "lines", txt.count("\n"))
```
